```python
import torch

def _softmax(x, axis=-1):
    return torch.softmax(x, dim=axis)
def _gelu(x):
    return torch.nn.functional.gelu(x, approximate="tanh")
def _silu(x):
    return torch.nn.functional.silu(x)
def _sigmoid(x):
    return torch.sigmoid(x)
def _layernorm(x, axis=-1, eps=1e-5):
    m = x.mean(dim=axis, keepdim=True)
    v = x.var(dim=axis, keepdim=True, unbiased=False)
    return (x - m) / torch.sqrt(v + eps)
def _scatter_add(tgt, idx, src, axis=0):
    return tgt.clone().index_add_(axis, idx, src)
def _segment_sum(src, seg, n):
    out = torch.zeros((n,) + src.shape[1:], dtype=src.dtype)
    return out.index_add_(0, seg, src)
def _pad(x, pw):
    flat = tuple(v for pair in reversed(pw) for v in pair)
    return torch.nn.functional.pad(x, flat)

kernel_name = 'standalone__weight_only_int_quip__decode'

def setup_inputs():

    _w = (lambda a: (lambda t: t.to(torch.bfloat16) if t.is_floating_point() else t)(torch.as_tensor(a)))
    B, S, D, F = 4, 1, 576, 4608
    G = 32 if 32 > 0 else D
    D = (D // G) * G
    ng = D // G
    bits = 4 if 4 > 0 else 4
    qmax = 1 << bits
    qw = torch.randint(0, qmax, (D, F)).to(torch.int32)
    U, _ = (lambda *_a, **_k: torch.linalg.qr(*[torch.as_tensor(_x).float() for _x in _a], **_k))((lambda *s: torch.randn(*s, dtype=torch.bfloat16) * 0.05)(D, D))
    V, _ = (lambda *_a, **_k: torch.linalg.qr(*[torch.as_tensor(_x).float() for _x in _a], **_k))((lambda *s: torch.randn(*s, dtype=torch.bfloat16) * 0.05)(F, F))
    return {
        "x": _w((lambda *s: torch.randn(*s, dtype=torch.bfloat16) * 0.05)(B, S, D)),
        "qw": _w(qw),
        "scales": _w(torch.abs((lambda *s: torch.randn(*s, dtype=torch.bfloat16) * 0.05)(ng, F)) * 0.02 + 0.005),
        "zeros": _w(torch.full((ng, F), qmax / 2.0, dtype=float)),
        "U": _w(U.to(float)),
        "V": _w(V.to(float)),
    }

def reference(x, qw, scales, zeros, U, V):
    B, S, D = x.shape
    ng, F = scales.shape
    G = D // ng
    s = (lambda x, n, axis: torch.repeat_interleave(x, n, dim=axis))(scales, G, axis=0)
    z = (lambda x, n, axis: torch.repeat_interleave(x, n, dim=axis))(zeros, G, axis=0)
    wq = ((lambda x, dt: x.to(dt))(qw, x.dtype) - z) * s
    xr = torch.einsum("bsd,de->bse", x, U)
    h  = torch.einsum("bse,ef->bsf", xr, wq)
    y  = torch.einsum("bsf,fg->bsg", h, V)
    return y
```

```python
import sys, os
NAME = "standalone__weight_only_int_quip__decode"
KN = NAME + "_kernel"
D1 = int(os.environ.get("D1", "18"))
D2 = int(os.environ.get("D2", "32"))
TK = int(os.environ.get("TK", "0"))
RND = (D1 + 8)//9
STAMPS = bool(os.environ.get("STAMPS"))
TB = int(os.environ.get("TB", "10"))
SPIN = 1 << 16
out = []
def A(s): out.append(s)
def ST(k):
    if STAMPS: A(f"; STAMP {k}")
TM = (1 << TB) - 1

XR, HA, CNT, SCL, ZL, XL, VL = 0, 768, 2048, 2304, 3328, 4352, 7168
R_U, R_Q, R_X, R_H, C_A, C_Q, C_XW, C_H, R_E = [CNT + 4*i for i in range(9)]
LDS_BYTES = VL + 17*9216
QL = LDS_BYTES - 41472
UL = QL - 18432
assert LDS_BYTES == 163840 and UL >= VL + 10*9216
EP_OFF, YC_OFF, XP_OFF, FL_OFF, HP_OFF, YP_OFF, WS_BYTES = 0, 1024, 4096, 65536, 131072, 1 << 20, 4 << 20

A(f"""; Kernarg layout for this problem (72 bytes, ptrs only, base s[0:1]):
; @launch grid=(256,1,1) block=(704,1,1) lds={LDS_BYTES}
.amdgcn_target "amdgcn-amd-amdhsa--gfx950"
.text
.globl {KN}
.p2align 8
.type {KN},@function
{KN}:""")

sQW, sSC, sZ, sV, sWS, sOUT, sU, sX = 24, 28, 32, 36, 40, 44, 48, 52
def kl(r, off): A(f"s_load_dwordx2 s[{r}:{r+1}], s[0:1], {off}")
def setsrd(r, nb):
    A(f"s_mov_b32 s{r+2}, {nb}")
    A(f"s_mov_b32 s{r+3}, 0x00020000")
def load_tags(): A(f"s_load_dword s7, s[{sWS}:{sWS+1}], {EP_OFF}")
def make_tags():
    step = (1 << TB) * 31 // 100
    for i in range(4):
        A(f"s_add_u32 s{60+i}, s7, {1 + i*step}")
        A(f"s_and_b32 s{60+i}, s{60+i}, {TM:#x}")
    A("s_add_u32 s7, s7, 1")
def tag(r):
    for i in range(4): A(f"v_add_u32 v{r+i}, {1 << (TB-1):#x}, v{r+i}")
    for i in range(4): A(f"v_and_or_b32 v{r+i}, v{r+i}, v5, s{60+i}")
def check(r, t):
    for i in range(4): A(f"v_xor_b32 v{r+i}, s{60+i}, v{r+i}")
    A(f"v_or3_b32 v{t}, v{r}, v{r+1}, v{r+2}")
    A(f"v_or_b32 v{t}, v{t}, v{r+3}")
def masks():
    A("s_mov_b32 s56, 0x22222222"); A("s_mov_b32 s57, 0x22222222")
    A("s_mov_b32 s58, 0x44444444"); A("s_mov_b32 s59, 0x44444444")
    A("s_mov_b32 s64, 0x88888888"); A("s_mov_b32 s65, 0x88888888")
def sel4(h):
    A(f"v_cndmask_b32 v{h}, v{h}, v{h+1}, s[56:57]")
    A(f"v_cndmask_b32 v{h}, v{h}, v{h+2}, s[58:59]")
    A(f"v_cndmask_b32 v{h}, v{h}, v{h+3}, s[64:65]")
def ldspin(label, addr, target, tmp=14):
    A(f"s_mov_b32 s22, {SPIN*4}")
    A(f"{label}:")
    A(f"ds_read_b32 v{tmp}, v13 offset:{addr}")
    A("s_waitcnt lgkmcnt(0)")
    A(f"v_readfirstlane_b32 s23, v{tmp}")
    A(f"s_cmp_ge_u32 s23, {target}")
    A(f"s_cbranch_scc1 {label}_D")
    A("s_sleep 1")
    A("s_sub_u32 s22, s22, 1")
    A(f"s_cbranch_scc0 {label}")
    A(f"{label}_D:")

A("s_cmp_ge_u32 s2, 256")
A("s_cbranch_scc1 L_END")
kl(sQW, 8); kl(sSC, 16); kl(sZ, 24); kl(sU, 32); kl(sX, 0); kl(sV, 40); kl(sWS, 64); kl(sOUT, 48)
ST(0)
A("v_lshrrev_b32 v1, 6, v0")
A("v_and_b32 v2, 63, v0")
A("v_readfirstlane_b32 s6, v1")
if os.environ.get("MAP", "g") == "g":
    A("s_bfe_u32 s4, s2, 0x30003")
    A("s_and_b32 s5, s2, 7")
    A("s_lshl_b32 s5, s5, 2")
    A("s_lshr_b32 s3, s2, 6")
    A("s_add_u32 s5, s5, s3")
else:
    A("s_and_b32 s4, s2, 7")
    A("s_lshr_b32 s5, s2, 3")
A("s_lshl_b32 s3, s5, 3")
A("s_add_u32 s3, s3, s4")
setsrd(sWS, WS_BYTES)
setsrd(sV, 4608*9216)
A("v_mov_b32 v13, 0")
A("v_lshrrev_b32 v8, 3, v2")
A("v_and_b32 v9, 6, v8")
A("v_and_b32 v10, 7, v2")
A("v_xor_b32 v9, v9, v10")
A("v_mul_u32_u24 v11, 9216, v8")
A("v_lshl_add_u32 v11, v9, 4, v11")
A("s_mul_i32 s20, s5, 144*9216")
A("s_mul_i32 s21, s4, 1152")
A("s_add_u32 s20, s20, s21")
A("s_mul_i32 s10, s2, 57")
A("s_lshr_b32 s10, s10, 9")
A("s_mul_i32 s11, s10, 9")
A("s_sub_u32 s11, s2, s11")
setsrd(sOUT, 4*9216)
A("s_cmp_eq_u32 s6, 0")
A("s_cbranch_scc1 L_LOADER")
A("s_getpc_b64 s[8:9]")
A("L_PC:")
A("v_lshlrev_b32 v14, 2, v2")
A(f"ds_write_b32 v14, v13 offset:{CNT}")
A("s_cmp_lg_u32 s6, 1")
A("s_cbranch_scc1 L_NOPF")
A("v_lshlrev_b32 v14, 7, v2")
A("v_min_u32 v14, L_CODE_END-L_PC-4, v14")
A("global_load_dword v99, v14, s[8:9]")
A("L_NOPF:")
A("s_waitcnt lgkmcnt(0)")
load_tags()
A("s_barrier")
A("s_branch L_NOT0")

A("L_LOADER:")
setsrd(sQW, 576*4608*4); setsrd(sU, 576*1152); setsrd(sSC, 18*9216); setsrd(sZ, 18*9216); setsrd(sX, 4*1152)
A("v_mul_u32_u24 v27, 3641, v2")
A("v_lshrrev_b32 v27, 16, v27")
A("v_lshlrev_b32 v29, 4, v2")
A("v_mul_u32_u24 v28, 864, v27")
A("v_add_u32 v28, v28, v29")
A("v_mul_u32_u24 v27, 8928, v27")
A("v_add_u32 v27, v27, v29")
A("s_mul_i32 s16, s4, 9")
A("s_lshr_b32 s16, s16, 2")
A("s_mul_i32 s16, s16, 9216")
A("s_mul_i32 s17, s5, 288")
A("s_add_u32 s16, s16, s17")
A("s_mul_i32 s17, s10, 288")
A("s_add_u32 s18, s17, 3*864+1024")
A("v_lshlrev_b32 v30, 20, v2")
A("v_mul_u32_u24 v12, 1152, v8")
A("v_lshl_add_u32 v12, v9, 4, v12")
A("v_mul_u32_u24 v14, 1821, v2")
A("v_lshlrev_b32 v15, 4, v2")
A("s_movk_i32 s12, 17856")
QO = 16
for i in range(9):
    A(f"v_lshrrev_b32 v{QO+i}, 16, v14")
    A(f"v_mad_u32_u24 v{QO+i}, v{QO+i}, s12, v15")
    if i < 8:
        A(f"v_add_u32 v14, {64*1821}, v14")
        A(f"v_add_u32 v15, 1024, v15")
A("s_mul_i32 s12, s4, 72*18432")
A("s_mul_i32 s13, s5, 576")
A("s_add_u32 s12, s12, s13")
A("s_mul_i32 s14, s10, 144*1152")
A("s_lshl_b32 s13, s11, 7")
A("s_add_u32 s14, s14, s13")
A("v_mov_b32 v26, 1")
A("s_cmp_ge_u32 s2, 36")
A(f"s_mov_b32 m0, {XL}")
A("s_waitcnt lgkmcnt(0)")
A("s_cbranch_scc1 L_NOU")
A(f"buffer_load_dwordx4 v28, s[{sX}:{sX+3}], s17 offen lds")
A(f"s_mov_b32 m0, {XL+1024}")
A("s_mov_b64 exec, 0xff")
A(f"buffer_load_dwordx4 v29, s[{sX}:{sX+3}], s18 offen lds")
A(f"s_mov_b32 m0, {UL}")
A("s_mov_b64 exec, -1")
for o in range(18):
    A(f"buffer_load_dwordx4 v12, s[{sU}:{sU+3}], s14 offen nt lds")
    if o < 17:
        A("s_add_u32 m0, m0, 1024")
        A(f"s_add_u32 s14, s14, {8*1152}")
A("L_NOU:")
A(f"s_mov_b32 m0, {SCL}")
A("s_mov_b32 exec_hi, 0x3fffff")
A(f"buffer_load_dwordx4 v27, s[{sSC}:{sSC+3}], s16 offen lds")
A(f"s_mov_b32 m0, {ZL}")
A("s_nop 0")
A(f"buffer_load_dwordx4 v27, s[{sZ}:{sZ+3}], s16 offen lds")
A("s_mov_b64 exec, 15")
A(f"buffer_load_dword v31, v30, s[{sWS}:{sWS+3}], 0 offen offset:256")
A("s_mov_b64 exec, 3")
A(f"buffer_load_dword v32, v30, s[{sV}:{sV+3}], s20 offen")
A("s_mov_b64 exec, 1")
A(f"buffer_load_dword v33, v13, s[{sOUT}:{sOUT+3}], 0 offen")
A("s_mov_b64 exec, -1")
A(f"s_mov_b32 s15, {QL}")
A("s_mov_b32 s16, 0")
A("s_barrier")
A("L_QLOOP:")
for i in range(9):
    A(f"s_add_u32 m0, s15, {1024*i}")
    A(f"s_waitcnt vmcnt({D1-1})")
    A(f"buffer_load_dwordx4 v{QO+i}, s[{sQW}:{sQW+3}], s12 offen nt lds")
A(f"s_add_u32 s12, s12, {16*18432}")
A("s_add_u32 s15, s15, 9216")
A("s_add_u32 s16, s16, 1")
A(f"s_cmp_eq_u32 s16, {RND}")
A("s_cbranch_scc0 L_QNU")
A(f"s_waitcnt vmcnt({9*RND})")
A(f"ds_write_b32 v13, v26 offset:{R_U}")
A("L_QNU:")
A("s_cmp_lt_u32 s16, 4")
A("s_cbranch_scc1 L_QLOOP")
for i in range(5):
    A(f"s_add_u32 m0, s15, {1024*i}")
    if i == 4: A("s_mov_b32 exec_hi, 0")
    A(f"s_waitcnt vmcnt({D1-1})")
    A(f"buffer_load_dwordx4 v{QO+i}, s[{sQW}:{sQW+3}], s12 offen nt lds")
A("s_mov_b32 exec_hi, -1")
ST(1)
A(f"s_add_u32 s12, s20, {128*9216}")
A(f"s_mov_b32 s15, {VL}")
A("s_mov_b32 s16, 0")
def vround(depth, lo=0, hi=9):
    for cg in range(lo, hi):
        A(f"s_add_u32 m0, s15, {cg*1024 - cg*128}")
        A(f"s_waitcnt vmcnt({depth-1})")
        A(f"buffer_load_dwordx4 v11, s[{sV}:{sV+3}], s12 offen offset:{cg*128} nt lds")
A("L_V1:")
A(f"ds_read_b32 v34, v13 offset:{dict(A=C_A, H=C_H, Q=C_Q)[os.environ.get('SWC', 'A')]}")
vround(D1)
A(f"s_add_u32 s12, s12, {8*9216}")
A("s_cmp_eq_u32 s16, 0")
A("s_cselect_b32 s12, s20, s12")
A("s_add_u32 s15, s15, 9216")
A("s_add_u32 s16, s16, 1")
A(f"s_cmp_eq_u32 s16, {RND}")
A("s_cbranch_scc0 L_VNQ")
A(f"s_waitcnt vmcnt({9*RND})")
A(f"ds_write_b32 v13, v26 offset:{R_Q}")
ST(2)
A("L_VNQ:")
A("s_cmp_eq_u32 s16, 10")
A("s_cbranch_scc0 L_VNW")
ldspin("L_WQ", C_Q, 9)
A("L_VNW:")
A("s_cmp_eq_u32 s16, 16")
A("s_cbranch_scc1 L_V3")
A("s_waitcnt lgkmcnt(0)")
A("v_readfirstlane_b32 s23, v34")
A("s_cmp_lt_u32 s23, 9")
A("s_cbranch_scc1 L_V1")
ST(7)
A("L_V2:")
vround(D2)
A(f"s_add_u32 s12, s12, {8*9216}")
A("s_add_u32 s15, s15, 9216")
A("s_add_u32 s16, s16, 1")
A("s_cmp_lt_u32 s16, 16")
A("s_cbranch_scc1 L_V2")
A("L_V3:")
vround(D2, 0, 9-TK)
A("v_lshlrev_b32 v12, 10, v2")
A("s_lshl_b32 s16, s4, 7")
A(f"s_add_u32 s17, s16, {YC_OFF}")
A(f"s_add_u32 s16, s16, {FL_OFF + 64}")
ST(3)
ldspin("L_WH", C_A, 9)
A(f"ds_read_b32 v14, v13 offset:{R_E}")
A("s_mov_b64 exec, 1")
A(f"buffer_atomic_add v26, v13, s[{sWS}:{sWS+3}], s17 offen sc0 sc1")
A("s_mov_b64 exec, -1")
vround(D2+1, 9-TK, 9)
A("s_lshl_b32 s18, s3, 7")
A(f"s_add_u32 s18, s{sWS}, s18")
A(f"s_addc_u32 s19, s{sWS+1}, 0")
A(f"s_add_u32 s18, s18, {FL_OFF}")
A("s_addc_u32 s19, s19, 0")
A("s_waitcnt vmcnt(37) lgkmcnt(0)")
A("v_readfirstlane_b32 s7, v14")
ST(4)
A("s_barrier")
ST(5)
A(f"s_waitcnt vmcnt({TK})")
A("v_readfirstlane_b32 s23, v26")
A("s_cmp_lg_u32 s23, 31")
A("s_cbranch_scc1 L_NOTLAST")
A("s_mov_b32 exec_hi, 0")
A(f"buffer_store_dword v14, v12, s[{sWS}:{sWS+3}], s16 offen sc1")
A("s_waitcnt vmcnt(1)")
A("s_branch L_LB2")
A("L_NOTLAST:")
A("s_waitcnt vmcnt(0)")
A("L_LB2:")
ST(6)
A("s_barrier")
A(f"s_mov_b32 s22, {SPIN}")
A("L_YFL:")
A("s_load_dword s23, s[18:19], 64 glc")
A("s_waitcnt lgkmcnt(0)")
A("s_cmp_eq_u32 s23, s7")
A("s_cbranch_scc1 L_YFLD")
A("s_sub_u32 s22, s22, 1")
A("s_cbranch_scc0 L_YFL")
A("L_YFLD:")
A("s_barrier")
if STAMPS:
    A("; STAMPDUMP 0 8")
A("L_END:")
A("s_endpgm")

A("L_NOT0:")
A(f"v_mov_b32 v5, {0xffffffff ^ TM:#x}")
A("v_lshrrev_b32 v3, 4, v2")
A("v_and_b32 v4, 15, v2")
A("v_bfe_u32 v6, v2, 2, 2")
A("v_and_b32 v7, 3, v2")
masks()
A("s_cmp_eq_u32 s6, 10")
A("s_cbranch_scc0 L_COMP")
A("s_setprio 3")
A("s_lshl_b32 s18, s3, 7")
A(f"s_add_u32 s18, s{sWS}, s18")
A(f"s_addc_u32 s19, s{sWS+1}, 0")
A(f"s_add_u32 s18, s18, {FL_OFF}")
A("s_addc_u32 s19, s19, 0")
A("v_lshrrev_b32 v14, 2, v2")
A("v_mul_u32_u24 v15, 576, v7")
A("v_add_lshl_u32 v15, v15, v14, 4")
A("s_mul_i32 s17, s4, 72*16")
A(f"s_add_u32 s17, s17, {XP_OFF}")
A("v_lshl_add_u32 v16, v6, 2, v7")
A("v_mul_u32_u24 v16, 48, v16")
A("v_lshl_add_u32 v16, v3, 1, v16")
A("v_mov_b32 v17, 1")
A("s_waitcnt lgkmcnt(0)")
make_tags()
A("v_mov_b32 v18, s7")
A(f"ds_write_b32 v13, v18 offset:{R_E}")
ST(1)
def spoll(nm, off):
    A(f"s_mov_b32 s22, {SPIN}")
    A(f"L_SP{nm}:")
    A(f"s_load_dwordx8 s[8:15], s[18:19], {off} glc")
    A("s_waitcnt lgkmcnt(0)")
    for i in range(8): A(f"s_xor_b32 s{8+i}, s{8+i}, s7")
    A("s_or_b64 s[8:9], s[8:9], s[10:11]")
    A("s_or_b64 s[12:13], s[12:13], s[14:15]")
    A("s_or_b64 s[8:9], s[8:9], s[12:13]")
    A(f"s_cbranch_scc0 L_SP{nm}D")
    A("s_sub_u32 s22, s22, 1")
    A(f"s_cbranch_scc0 L_SP{nm}")
    A(f"L_SP{nm}D:")
spoll("X", 0)
ST(2)
G = 20
A(f"s_mov_b32 s22, {SPIN}")
A("L_XPOLL:")
for u in range(5):
    if u == 4: A("s_mov_b32 exec_hi, 0")
    A(f"buffer_load_dwordx4 v[{G+4*u}:{G+4*u+3}], v15, s[{sWS}:{sWS+3}], s17 offen offset:{256*u} sc1")
A("s_waitcnt vmcnt(0)")
A("s_mov_b32 exec_hi, -1")
A("v_mov_b32 v44, 0")
A("s_mov_b32 exec_hi, 0")
check(G+16, 44)
A("s_mov_b32 exec_hi, -1")
for u in range(4): check(G+4*u, 40+u)
A("v_or3_b32 v40, v40, v41, v42")
A("v_or3_b32 v40, v40, v43, v44")
A(f"v_and_b32 v40, {TM:#x}, v40")
A("v_cmp_ne_u32 vcc, 0, v40")
A("s_cmp_eq_u64 vcc, 0")
A("s_cbranch_scc1 L_XDONE")
A("s_sub_u32 s22, s22, 1")
A("s_cbranch_scc0 L_XPOLL")
A("L_XDONE:")
ST(3)
for qp in ("[1,0,3,2]", "[2,3,0,1]"):
    for i in range(20):
        A(f"v_add_f32_dpp v{G+i}, v{G+i}, v{G+i} quad_perm:{qp} row_mask:0xf bank_mask:0xf")
for u in range(5): sel4(G+4*u)
A(f"v_cvt_pk_bf16_f32 v{G}, v{G}, v{G+4}")
A(f"v_cvt_pk_bf16_f32 v{G+8}, v{G+8}, v{G+12}")
A(f"v_cvt_pk_bf16_f32 v{G+16}, v{G+16}, v{G+16}")
A(f"ds_write_b16 v16, v{G} offset:{XR}")
A(f"ds_write_b16_d16_hi v16, v{G} offset:{XR+8}")
A(f"ds_write_b16 v16, v{G+8} offset:{XR+16}")
A(f"ds_write_b16_d16_hi v16, v{G+8} offset:{XR+24}")
A("s_mov_b32 exec_hi, 0")
A(f"ds_write_b16 v16, v{G+16} offset:{XR+32}")
A(f"ds_write_b32 v13, v17 offset:{R_X}")
ST(4)
spoll("H", 32)
A(f"ds_write_b32 v13, v17 offset:{R_H}")
ST(5)
if STAMPS:
    A("s_waitcnt vmcnt(0) lgkmcnt(0)")
    A("; STAMPDUMP 0 6")
A("s_endpgm")

A("L_COMP:")
A("s_sub_u32 s6, s6, 1")
A("v_and_b32 v89, 1, v3")
A("v_lshl_add_u32 v89, v89, 2, v6")
A("v_lshlrev_b32 v88, 7, v89")
A("v_lshl_add_u32 v88, v7, 3, v88")
A("v_lshrrev_b32 v89, 1, v89")
A("v_lshrrev_b32 v90, 1, v3")
A("v_mov_b32 v60, 1")
A("v_lshlrev_b32 v55, 4, v2")
SZ = 64
A("s_waitcnt lgkmcnt(0)")
make_tags()
ST(1)
A("s_cmp_ge_u32 s2, 36")
A("s_cbranch_scc1 L_NOX")
A("s_cmp_ge_u32 s6, 4")
A("s_cbranch_scc1 L_NOX")
A("s_setprio 2")
XA = 16
A("v_mul_u32_u24 v15, 288, v7")
A("v_lshl_add_u32 v15, v3, 3, v15")
A(f"v_add_u32 v15, {XL}, v15")
A(f"v_mov_b32 v{XA+18}, 0"); A(f"v_mov_b32 v{XA+19}, 0")
A("s_or_b32 s13, s2, s6")
A("s_cbranch_scc1 L_XNZ")
A("v_lshlrev_b32 v61, 7, v2")
A("s_mov_b64 exec, 0xff")
A(f"buffer_store_dword v13, v61, s[{sWS}:{sWS+3}], 0 offen offset:{YC_OFF} sc1")
A("s_mov_b64 exec, -1")
A("L_XNZ:")
A("v_xor_b32 v56, s6, v89")
A("v_lshl_add_u32 v56, v56, 5, v88")
A("v_lshl_add_u32 v56, v90, 10, v56")
A(f"v_add_u32 v56, {UL}, v56")
XB = 36
XB = 100
A(f"v_mov_b32 v{XB+18}, 0"); A(f"v_mov_b32 v{XB+19}, 0")
A("s_mul_i32 s17, s10, 576*16")
A("s_lshl_b32 s18, s11, 10")
A("s_add_u32 s17, s17, s18")
A("s_lshl_b32 s18, s6, 8")
A("s_add_u32 s17, s17, s18")
A(f"s_add_u32 s17, s17, {XP_OFF}")
A("v_and_b32 v57, 31, v2")
A("v_lshlrev_b32 v57, 10, v57")
A("v_lshrrev_b32 v58, 5, v2")
A("v_mul_u32_u24 v58, 124, v58")
A("v_sub_u32 v57, v57, v58")
A("v_add_u32 v57, 128, v57")
A("s_lshl_b32 s18, s11, 7")
A("s_lshl_b32 s19, s10, 3")
A("s_add_u32 s18, s18, s19")
A(f"s_add_u32 s18, s18, {FL_OFF - 128}")
A("s_cmp_eq_u32 s11, 8")
A("s_cselect_b32 s8, 0, -1")
A("s_cmp_eq_u32 s11, 0")
A("s_cselect_b32 s9, 0, -1")
A("v_mov_b32 v58, s7")
ldspin("L_RU", R_U, 1)
for t in range(5):
    if t < 4: A(f"ds_read2_b64 v[{XA+4*t}:{XA+4*t+3}], v15 offset0:{8*t} offset1:{8*t+4}")
    else: A(f"ds_read_b64 v[{XA+4*t}:{XA+4*t+1}], v15 offset:{64*t}")
    A(f"ds_read_b64_tr_b16 v[{XB+4*t}:{XB+4*t+1}], v56 offset:{4*t*1024}")
    if t < 4: A(f"ds_read_b64_tr_b16 v[{XB+4*t+2}:{XB+4*t+3}], v56 offset:{(4*t+2)*1024}")
A("s_waitcnt vmcnt(0)")
for t in range(5):
    A(f"s_waitcnt lgkmcnt({max(0, 11-3*t)})")
    c = "0" if t == 0 else "v[40:43]"
    A(f"v_mfma_f32_16x16x32_bf16 v[40:43], v[{XA+4*t}:{XA+4*t+3}], v[{XB+4*t}:{XB+4*t+3}], {c}")
A("s_mov_b64 exec, 0xffff")
A("s_nop 6")
tag(40)
A(f"buffer_store_dwordx4 v[40:43], v55, s[{sWS}:{sWS+3}], s17 offen sc1")
A("s_mov_b64 exec, 1")
A(f"ds_add_rtn_u32 v14, v13, v60 offset:{C_XW}")
A("s_waitcnt lgkmcnt(0)")
A("v_readfirstlane_b32 s23, v14")
A("s_cmp_lg_u32 s23, 3")
A("s_cbranch_scc1 L_XNF")
A("s_mov_b64 exec, s[8:9]")
A(f"buffer_store_dword v58, v57, s[{sWS}:{sWS+3}], s18 offen sc1")
A("L_XNF:")
A("s_mov_b64 exec, -1")
A("s_setprio 0")
A("L_NOX:")
ST(2)
A("v_mul_u32_u24 v15, 576, v3")
A("v_lshl_add_u32 v15, v4, 2, v15")
A("s_lshl_b32 s12, s6, 6")
A(f"s_add_u32 s12, s12, {QL}")
A("v_add_u32 v15, s12, v15")
A("v_lshl_add_u32 v56, v3, 2, v7")
A("v_mul_u32_u24 v56, 48, v56")
A("s_and_b32 s12, s4, 3")
for k in (1, 2, 3):
    A(f"s_cmp_ge_u32 s12, {k}")
    A(f"s_cselect_b64 s[{12+2*k}:{13+2*k}], -1, 0")
A("v_lshlrev_b32 v57, 1, v4")
A("s_lshl_b32 s12, s6, 5")
A("v_add_u32 v57, s12, v57")
ldspin("L_RU2", R_U, 1)
for g in range(3):
    A(f"ds_read_u16 v{SZ+g}, v57 offset:{SCL + 288*g}")
    A(f"ds_read_u16 v{SZ+3+g}, v57 offset:{ZL + 288*g}")
A("s_waitcnt lgkmcnt(0)")
for g in range(6): A(f"v_lshlrev_b32 v{SZ+g}, 16, v{SZ+g}")
SP, ZP = 70, 79
def pairsz(p):
    base = p >> 2
    r = p & 3
    if r == 0: return SZ+base, SZ+3+base
    return SP+p, ZP+p
for p in range(9):
    base, r = p >> 2, p & 3
    if r:
        k = 4 - r
        A(f"v_cndmask_b32 v{SP+p}, v{SZ+base}, v{SZ+base+1}, s[{12+2*k}:{13+2*k}]")
        A(f"v_cndmask_b32 v{ZP+p}, v{SZ+3+base}, v{SZ+3+base+1}, s[{12+2*k}:{13+2*k}]")
QW = 16
B = 36
AX = 100
for r in (B+9, B+10, B+11, AX+9, AX+10, AX+11): A(f"v_mov_b32 v{r}, 0")
A("s_mul_i32 s18, s3, 2304")
A("s_lshl_b32 s19, s6, 8")
A("s_add_u32 s18, s18, s19")
A(f"s_add_u32 s18, s18, {HP_OFF}")
A("s_mul_i32 s17, s5, 8*2304")
A("s_add_u32 s17, s17, s19")
A(f"s_add_u32 s17, s17, {HP_OFF}")
A("v_lshlrev_b32 v61, 7, v2")
A("v_mov_b32 v62, s7")
A("s_lshl_b32 s16, s5, 10")
A("s_lshl_b32 s19, s4, 2")
A("s_add_u32 s16, s16, s19")
A(f"s_add_u32 s16, s16, {FL_OFF + 32}")
ldspin("L_RQ", R_Q, 1)
ST(3)
for p in range(9):
    A(f"ds_read2st64_b32 v[{QW+2*p}:{QW+2*p+1}], v15 offset0:{18*p} offset1:{18*p+9}")
for p in range(9):
    A(f"s_waitcnt lgkmcnt({8-p})")
    if p == 8:
        A("s_mov_b64 exec, 1")
        A(f"ds_add_u32 v13, v60 offset:{C_Q}")
        A("s_mov_b64 exec, -1")
    r0, r1 = QW+2*p, QW+2*p+1
    sr, zr = pairsz(p)
    A(f"v_cvt_f32_i32 v{r0}, v{r0}")
    A(f"v_cvt_f32_i32 v{r1}, v{r1}")
    A(f"v_sub_f32 v{r0}, v{r0}, v{zr}")
    A(f"v_sub_f32 v{r1}, v{r1}, v{zr}")
    A(f"v_cvt_pk_bf16_f32 v{r1}, v{r0}, v{r1}")
    A(f"v_lshlrev_b32 v{r0}, 16, v{r1}")
    A(f"v_and_b32 v{r1}, 0xffff0000, v{r1}")
    A(f"v_mul_f32 v{r0}, v{r0}, v{sr}")
    A(f"v_mul_f32 v{r1}, v{r1}, v{sr}")
    A(f"v_cvt_pk_bf16_f32 v{B+p}, v{r0}, v{r1}")
ldspin("L_RX", R_X, 1)
A(f"ds_read_b128 v[{AX}:{AX+3}], v56 offset:{XR}")
A(f"ds_read_b128 v[{AX+4}:{AX+7}], v56 offset:{XR+16}")
A(f"ds_read_b32 v{AX+8}, v56 offset:{XR+32}")
for t in range(3):
    A(f"s_waitcnt lgkmcnt({2-t})")
    c = "0" if t == 0 else "v[48:51]"
    A(f"v_mfma_f32_16x16x32_bf16 v[48:51], v[{AX+4*t}:{AX+4*t+3}], v[{B+4*t}:{B+4*t+3}], {c}")
A("s_mov_b64 exec, 0xffff")
A("s_nop 6")
tag(48)
A(f"buffer_store_dwordx4 v[48:51], v55, s[{sWS}:{sWS+3}], s18 offen sc1")
A("s_mov_b64 exec, 1")
A(f"ds_add_rtn_u32 v14, v13, v60 offset:{C_H}")
A("s_waitcnt lgkmcnt(0)")
A("v_readfirstlane_b32 s23, v14")
A("s_cmp_lg_u32 s23, 8")
A("s_cbranch_scc1 L_HNF")
A("s_mov_b64 exec, 0xff")
A(f"buffer_store_dword v62, v61, s[{sWS}:{sWS+3}], s16 offen sc1")
A("L_HNF:")
A("s_mov_b64 exec, -1")
REM = 112
A("s_lshl_b32 s21, s6, 7")
A("s_add_u32 s20, s20, s21")
A(f"s_add_u32 s20, s20, {136*9216}")
A(f"buffer_load_dwordx4 v[{REM}:{REM+3}], v11, s[{sV}:{sV+3}], s20 offen nt")
ST(4)
A("v_mul_u32_u24 v96, 2304, v10")
A("v_lshl_add_u32 v96, v8, 4, v96")
A("v_lshrrev_b32 v58, 2, v8")
A("v_lshlrev_b32 v58, 6, v58")
A("v_lshl_add_u32 v58, v7, 4, v58")
A("v_and_b32 v59, 3, v8")
A("v_lshl_add_u32 v58, v59, 1, v58")
A("s_lshr_b32 s18, s6, 1")
A("s_lshl_b32 s18, s18, 8")
A("s_and_b32 s19, s6, 1")
A("s_lshl_b32 s19, s19, 3")
A("s_add_u32 s18, s18, s19")
A("v_add_u32 v97, s18, v58")
A("v_mov_b32 v9, v55")
A("v_mov_b32 v15, v60")
AV = 16
def areg(t, i): return AV + 16*t + 4*i
A("v_mul_u32_u24 v98, 9216, v90")
A("v_add_u32 v98, v98, v88")
A("s_lshl_b32 s18, s6, 10")
A(f"s_add_u32 s18, s18, {VL}")
A("v_add_u32 v98, s18, v98")
TRA, TRB = 100, 104
for i in range(4):
    A(f"v_xor_b32 v99, {i}, v89")
    A(f"v_lshl_add_u32 v{TRA+i}, v99, 5, v98")
    A(f"v_add_u32 v{TRB+i}, 73728, v{TRA+i}")
A("v_add_u32 v99, s18, v9")
A("v_lshlrev_b32 v98, 6, v3")
A("v_lshl_add_u32 v98, v7, 4, v98")
for r in range(16, 96): A(f"v_mov_b32 v{r}, 0")
A("s_lshl_b32 s16, s4, 5")
A("s_add_u32 s14, s16, s5")
A("s_mul_i32 s14, s14, 9216")
A("s_lshl_b32 s19, s6, 10")
A("s_add_u32 s14, s14, s19")
A(f"s_add_u32 s14, s14, {YP_OFF}")
A("v_and_b32 v10, 31, v2")
A("v_mul_u32_u24 v10, 9216, v10")
A("v_lshrrev_b32 v11, 5, v2")
A("v_lshl_add_u32 v10, v11, 4, v10")
A("s_mul_i32 s16, s16, 9216")
A("s_mul_i32 s19, s5, 288")
A("s_add_u32 s16, s16, s19")
A("s_lshl_b32 s19, s6, 5")
A("s_add_u32 s16, s16, s19")
A(f"s_add_u32 s16, s16, {YP_OFF}")
A("v_mul_u32_u24 v12, 9216, v7")
A("v_lshl_add_u32 v12, v11, 1, v12")
A("s_mul_i32 s15, s4, 1152")
A("s_mul_i32 s19, s5, 36")
A("s_add_u32 s15, s15, s19")
A("s_lshl_b32 s19, s6, 2")
A("s_add_u32 s15, s15, s19")
BT = 120
ldspin("L_RH", R_H, 1)
H0, H1 = 120, 124
A(f"s_mov_b32 s22, {SPIN}")
A("L_HPOLL:")
A(f"buffer_load_dwordx4 v[{H0}:{H0+3}], v96, s[{sWS}:{sWS+3}], s17 offen sc1")
A(f"buffer_load_dwordx4 v[{H1}:{H1+3}], v96, s[{sWS}:{sWS+3}], s17 offen offset:128 sc1")
A("s_waitcnt vmcnt(0)")
check(H0, 128)
check(H1, 129)
A("v_or_b32 v128, v128, v129")
A(f"v_and_b32 v128, {TM:#x}, v128")
A("v_cmp_ne_u32 vcc, 0, v128")
A("s_and_b64 exec, vcc, vcc")
A("s_cbranch_scc0 L_HDONE")
A("s_sub_u32 s22, s22, 1")
A("s_cbranch_scc0 L_HPOLL")
A("L_HDONE:")
A("s_mov_b64 exec, -1")
ST(5)
for dp in ("quad_perm:[1,0,3,2]", "quad_perm:[2,3,0,1]", "row_half_mirror"):
    for i in range(8):
        A(f"v_add_f32_dpp v{H0+i}, v{H0+i}, v{H0+i} {dp} row_mask:0xf bank_mask:0xf")
sel4(H0); sel4(H1)
A(f"v_cvt_pk_bf16_f32 v{H0}, v{H0}, v{H1}")
A(f"ds_write_b16 v97, v{H0} offset:{HA}")
A(f"ds_write_b16_d16_hi v97, v{H0} offset:{HA+128}")
A("s_mov_b64 exec, 1")
A(f"ds_add_u32 v13, v15 offset:{C_A}")
A("s_mov_b64 exec, -1")
A("s_mov_b32 s18, 0x000f000f")
A("s_mov_b32 s19, 0x000f000f")
ldspin("L_CA", C_A, 9)
for i in range(4):
    A("s_mov_b64 exec, s[18:19]")
    for t in range(4):
        a = areg(t, i)
        A(f"ds_read_b128 v[{a}:{a+3}], v98 offset:{HA + 256*t}")
    a = areg(4, i)
    A(f"ds_read_b64 v[{a}:{a+1}], v98 offset:{HA + 1024}")
    if i < 3: A("s_lshl_b64 s[18:19], s[18:19], 4")
A("s_mov_b64 exec, -1")
Y = 108
def trreads(t, base):
    tr = TRA if t < 2 else TRB
    o = (1 + 4*(t % 2))*9216
    for i in range(4):
        A(f"ds_read_b64_tr_b16 v[{base+4*i}:{base+4*i+1}], v{tr+i} offset:{o}")
        A(f"ds_read_b64_tr_b16 v[{base+4*i+2}:{base+4*i+3}], v{tr+i} offset:{o + 2*9216}")
def mfmas(t, base, first=False):
    for i in range(4):
        a = areg(t, i)
        c = "0" if (first and i == 0) else f"v[{Y}:{Y+3}]"
        A(f"v_mfma_f32_16x16x32_bf16 v[{Y}:{Y+3}], v[{a}:{a+3}], v[{base+4*i}:{base+4*i+3}], {c}")
A("s_waitcnt lgkmcnt(0)")
ST(6)
A("s_barrier")
ST(7)
trreads(0, BT)
A(f"ds_write_b128 v99, v[{REM}:{REM+3}] offset:9216")
trreads(1, BT+16)
A("s_waitcnt lgkmcnt(9)")
mfmas(0, BT, True)
trreads(2, BT+32)
A("s_waitcnt lgkmcnt(8)")
mfmas(1, BT+16)
for i in range(4):
    A(f"ds_read_b64_tr_b16 v[{BT+4*i}:{BT+4*i+1}], v{TRA+i}")
for i in range(4):
    A(f"v_mov_b32 v{BT+4*i+2}, 0"); A(f"v_mov_b32 v{BT+4*i+3}, 0")
A("s_waitcnt lgkmcnt(4)")
mfmas(2, BT+32)
A("s_waitcnt lgkmcnt(0)")
mfmas(4, BT)
ST(8)
A("s_barrier")
ST(9)
trreads(3, BT+16)
for i in range(4):
    a = areg(3, i)
    A(f"s_waitcnt lgkmcnt({6-2*i})")
    A(f"v_mfma_f32_16x16x32_bf16 v[{Y}:{Y+3}], v[{a}:{a+3}], v[{BT+16+4*i}:{BT+16+4*i+3}], v[{Y}:{Y+3}]")
A(f"s_mov_b32 s22, {SPIN}")
A("s_nop 6")
tag(Y)
A(f"buffer_store_dwordx4 v[{Y}:{Y+3}], v9, s[{sWS}:{sWS+3}], s14 offen sc1")
ST(10)
A("s_barrier")
YG = 112
A("s_branch L_YP0")
A("L_YPOLL:")
A("s_sleep 2")
A("L_YP0:")
A(f"buffer_load_dwordx4 v[{YG}:{YG+3}], v10, s[{sWS}:{sWS+3}], s16 offen sc1")
A("s_waitcnt vmcnt(0)")
check(YG, 116)
A(f"v_and_b32 v116, {TM:#x}, v116")
A("v_cmp_ne_u32 vcc, 0, v116")
A("s_and_b64 exec, vcc, vcc")
A("s_cbranch_scc0 L_YDONE")
A("s_sub_u32 s22, s22, 1")
A("s_cbranch_scc0 L_YPOLL")
A("L_YDONE:")
A("s_mov_b64 exec, -1")
ST(11)
for dp in ("quad_perm:[1,0,3,2] row_mask:0xf", "quad_perm:[2,3,0,1] row_mask:0xf", "row_half_mirror row_mask:0xf", "row_mirror row_mask:0xf", "row_bcast:15 row_mask:0xa"):
    for i in range(4):
        A(f"v_add_f32_dpp v{YG+i}, v{YG+i}, v{YG+i} {dp} bank_mask:0xf")
sel4(YG)
A(f"v_cvt_pk_bf16_f32 v{YG}, v{YG}, v{YG}")
A("s_mov_b32 exec_lo, 0x000f0000")
A("s_mov_b32 exec_hi, 0x000f0000")
A(f"buffer_store_short v{YG}, v12, s[{sOUT}:{sOUT+3}], s15 offen")
A("s_or_b32 s19, s2, s6")
A("s_cbranch_scc1 L_CEND")
A("s_mov_b64 exec, 1")
A("v_mov_b32 v14, s7")
A(f"buffer_store_dword v14, v13, s[{sWS}:{sWS+3}], 0 offen offset:{EP_OFF}")
A("L_CEND:")
if STAMPS:
    A("s_waitcnt vmcnt(0)")
    A("; STAMPDUMP 0 12")
A("s_endpgm")
A("L_CODE_END:")

VG = 168
A('.section .rodata,"a"')
A(".p2align 6")
A(f""".amdhsa_kernel {KN}
  .amdhsa_next_free_vgpr {VG}
  .amdhsa_next_free_sgpr 70
  .amdhsa_accum_offset {(VG+3)//4*4}
  .amdhsa_group_segment_fixed_size 0
  .amdhsa_kernarg_size 72
  .amdhsa_user_sgpr_count 2
  .amdhsa_user_sgpr_kernarg_segment_ptr 1
  .amdhsa_system_sgpr_workgroup_id_x 1
  .amdhsa_float_denorm_mode_32 3
.end_amdhsa_kernel""")
dst = sys.argv[1]
if STAMPS:
    open(dst + ".pre", "w").write("\n".join(out) + "\n")
    import subprocess
    subprocess.check_call([sys.executable, "stamp.py", dst + ".pre", dst])
else:
    open(dst, "w").write("\n".join(out) + "\n")
```

```python
import sys, os
NAME = "standalone__weight_only_int_quip__decode"
KN = NAME + "_kernel"
E = lambda k, d: int(os.environ.get(k, str(d)))
D1 = E("D1", 18); D3 = E("D3", 45); TK = E("TK", 8); PH = E("PH", 8)
D2 = E("D2", 0)
HY = E("HY", 0)
PP = E("PP", 0)
TA = E("TA", 205); TBk = E("TBK", 32)
TB = E("TB", 10)
STAMPS = bool(os.environ.get("STAMPS"))
SPIN = 1 << 16
RND = (D1 + 8)//9
out = []
def A(s): out.append(s)
def ST(k):
    if STAMPS: A(f"; STAMP {k}")
TM = (1 << TB) - 1

XR, HA, CNT, SCL, ZL, XL, VL = 0, 768, 2048, 2304, 3328, 4352, 7168
R_U, R_Q, R_X, R_H, C_A, C_Q, C_XW, C_H, R_E, PROG, C_U = [CNT + 4*i for i in range(11)]
LDS_BYTES = VL + 17*9216
QL = LDS_BYTES - 41472
UL = QL - 18432
assert LDS_BYTES == 163840 and UL >= VL + 10*9216
EP_OFF, YC_OFF, XP_OFF, AG_OFF, FL_OFF, HP_OFF, YP_OFF, WS_BYTES = 0, 1024, 4096, 49152, 65536, 131072, 1 << 20, 4 << 20

A(f"""; Kernarg layout for this problem (72 bytes, ptrs only, base s[0:1]):
; @launch grid=(256,1,1) block=(704,1,1) lds={LDS_BYTES}
.amdgcn_target "amdgcn-amd-amdhsa--gfx950"
.text
.globl {KN}
.p2align 8
.type {KN},@function
{KN}:""")

sQW, sSC, sZ, sV, sWS, sOUT, sU, sX = 24, 28, 32, 36, 40, 44, 48, 52
def kl(r, off): A(f"s_load_dwordx2 s[{r}:{r+1}], s[0:1], {off}")
def setsrd(r, nb):
    A(f"s_mov_b32 s{r+2}, {nb}")
    A(f"s_mov_b32 s{r+3}, 0x00020000")
def load_tags(): A(f"s_load_dword s7, s[{sWS}:{sWS+1}], {EP_OFF}")
def make_tags():
    step = (1 << TB) * 31 // 100
    for i in range(4):
        A(f"s_add_u32 s{60+i}, s7, {1 + i*step}")
        A(f"s_and_b32 s{60+i}, s{60+i}, {TM:#x}")
    A("s_add_u32 s7, s7, 1")
def tag(r):
    for i in range(4): A(f"v_add_u32 v{r+i}, {1 << (TB-1):#x}, v{r+i}")
    for i in range(4): A(f"v_and_or_b32 v{r+i}, v{r+i}, v5, s{60+i}")
def check(r, t):
    for i in range(4): A(f"v_xor_b32 v{r+i}, s{60+i}, v{r+i}")
    A(f"v_or3_b32 v{t}, v{r}, v{r+1}, v{r+2}")
    A(f"v_or_b32 v{t}, v{t}, v{r+3}")
def masks():
    A("s_mov_b32 s56, 0x22222222"); A("s_mov_b32 s57, 0x22222222")
    A("s_mov_b32 s58, 0x44444444"); A("s_mov_b32 s59, 0x44444444")
    A("s_mov_b32 s64, 0x88888888"); A("s_mov_b32 s65, 0x88888888")
def sel4(h):
    A(f"v_cndmask_b32 v{h}, v{h}, v{h+1}, s[56:57]")
    A(f"v_cndmask_b32 v{h}, v{h}, v{h+2}, s[58:59]")
    A(f"v_cndmask_b32 v{h}, v{h}, v{h+3}, s[64:65]")
def ldspin(label, addr, target, tmp=14):
    A(f"s_mov_b32 s22, {SPIN*4}")
    A(f"{label}:")
    A(f"ds_read_b32 v{tmp}, v13 offset:{addr}")
    A("s_waitcnt lgkmcnt(0)")
    A(f"v_readfirstlane_b32 s23, v{tmp}")
    A(f"s_cmp_ge_u32 s23, {target}")
    A(f"s_cbranch_scc1 {label}_D")
    A("s_sleep 1")
    A("s_sub_u32 s22, s22, 1")
    A(f"s_cbranch_scc0 {label}")
    A(f"{label}_D:")
def swz():
    A("v_lshrrev_b32 v8, 3, v2")
    A("v_and_b32 v9, 6, v8")
    A("v_and_b32 v10, 7, v2")
    A("v_xor_b32 v9, v9, v10")
def vaddr():
    A("v_mul_u32_u24 v11, 9216, v8")
    A("v_lshl_add_u32 v11, v9, 4, v11")
    A("s_mul_i32 s20, s5, 144*9216")
    A("s_mul_i32 s21, s4, 1152")
    A("s_add_u32 s20, s20, s21")
def xids():
    A("s_mul_i32 s10, s2, 57")
    A("s_lshr_b32 s10, s10, 9")
    A("s_mul_i32 s11, s10, 9")
    A("s_sub_u32 s11, s2, s11")
def logid():
    A("s_lshl_b32 s3, s5, 3")
    A("s_add_u32 s3, s3, s4")
def flagline():
    A("s_lshl_b32 s18, s3, 7")
    A(f"s_add_u32 s18, s18, {FL_OFF}")
    A(f"s_add_u32 s18, s{sWS}, s18")
    A(f"s_addc_u32 s19, s{sWS+1}, 0")

A("s_cmp_ge_u32 s2, 256")
A("s_cbranch_scc1 L_END")
kl(sQW, 8)
A("s_getpc_b64 s[8:9]")
A("L_PC:")
A("v_lshlrev_b32 v14, 4, v0")
A("v_min_u32 v14, L_CODE_END-L_PC-4, v14")
A("global_load_dword v99, v14, s[8:9]")
kl(sU, 32); kl(sWS, 64)
A("v_readfirstlane_b32 s6, v0")
ST(0)
A("s_bfe_u32 s4, s2, 0x30003")
A("s_and_b32 s5, s2, 7")
A("s_lshl_b32 s5, s5, 2")
A("s_lshr_b32 s3, s2, 6")
A("s_add_u32 s5, s5, s3")
A("v_and_b32 v2, 63, v0")
A("v_mov_b32 v13, 0")
A("s_lshr_b32 s6, s6, 6")
A("s_cbranch_scc1 L_NOTL")
A("s_memrealtime s[66:67]")
setsrd(sQW, 576*4608*4)
A("v_mul_u32_u24 v14, 1821, v2")
A("v_lshlrev_b32 v15, 4, v2")
A("s_movk_i32 s13, 17856")
A("s_mul_i32 s12, s4, 72*18432")
A("s_mul_i32 s14, s5, 576")
A("s_add_u32 s12, s12, s14")
A(f"s_mov_b32 m0, {QL}")
QO = 16
A(f"v_lshrrev_b32 v{QO}, 16, v14")
A(f"v_mad_u32_u24 v{QO}, v{QO}, s13, v15")
A("s_cmp_ge_u32 s2, 36")
A("s_cbranch_scc1 L_QGO")
A("s_barrier")
A("L_QGO:")
A("s_waitcnt lgkmcnt(0)")
kl(sV, 40)
for i in range(9):
    if i:
        A(f"v_add_u32 v14, {64*1821}, v14")
        if i % 4 == 0:
            A("s_add_u32 m0, m0, 4096")
            A("s_add_u32 s12, s12, 4096")
        A(f"v_lshrrev_b32 v{QO+i}, 16, v14")
        A(f"v_mad_u32_u24 v{QO+i}, v{QO+i}, s13, v15")
    A(f"buffer_load_dwordx4 v{QO+i}, s[{sQW}:{sQW+3}], s12 offen offset:{1024*(i%4)} nt lds")
A("s_mov_b32 s16, 1")
A("L_QLOOP:")
for i in range(9):
    if i % 4 == 0:
        A(f"s_add_u32 m0, m0, {4096 if i else 1024}")
        A(f"s_add_u32 s12, s12, {4096 if i else 16*18432 - 8192}")
    if i == 4:
        A("s_cmp_eq_u32 s16, 4")
        A("s_cselect_b32 exec_hi, 0, -1")
    A(f"s_waitcnt vmcnt({D1-1})")
    A(f"buffer_load_dwordx4 v{QO+i}, s[{sQW}:{sQW+3}], s12 offen offset:{1024*(i%4)} nt lds")
    if i == 4: A("s_cbranch_scc1 L_QDONE")
A("s_add_u32 s16, s16, 1")
A("s_cmp_lg_u32 s16, 2")
A("s_cbranch_scc1 L_QLOOP")
A("s_cmp_lt_u32 s2, 36")
A("s_cbranch_scc1 L_QLOOP")
A("s_barrier")
A("s_branch L_QLOOP")

A("L_NOTL:")
A("s_cmp_eq_u32 s6, 1")
A("s_cbranch_scc1 L_AUX")
A("v_lshlrev_b32 v14, 2, v2")
A(f"ds_write_b32 v14, v13 offset:{CNT}")
swz()
A("s_cmp_ge_u32 s2, 36")
A("s_cbranch_scc1 L_NOU")
xids()
setsrd(sU, 576*1152)
A("v_mul_u32_u24 v12, 1152, v8")
A("v_lshl_add_u32 v12, v9, 4, v12")
A("s_mul_i32 s14, s10, 144*1152")
A("s_lshl_b32 s13, s11, 7")
A("s_add_u32 s14, s14, s13")
A("s_mul_i32 s13, s6, 16*1152")
A("s_add_u32 s14, s14, s13")
A(f"s_sub_u32 s14, s14, {32*1152}")
A("s_lshl_b32 s13, s6, 11")
A(f"s_add_u32 m0, s13, {UL - 4096}")
A(f"s_add_u32 s15, s14, {8*1152 - 1024}")
A("s_waitcnt lgkmcnt(0)")
A(f"buffer_load_dwordx4 v12, s[{sU}:{sU+3}], s14 offen nt lds")
A(f"buffer_load_dwordx4 v12, s[{sU}:{sU+3}], s15 offen offset:1024 nt lds")
A("L_NOU:")
A("s_waitcnt lgkmcnt(0)")
kl(sV, 40); kl(sOUT, 48)
load_tags()
A("s_barrier")
A("s_branch L_COMP")
A("L_AUX:")
kl(sX, 0); kl(sSC, 16); kl(sZ, 24)
A("v_mul_u32_u24 v27, 3641, v2")
A("v_lshrrev_b32 v27, 16, v27")
A("v_lshlrev_b32 v29, 4, v2")
A("v_lshlrev_b32 v14, 7, v2")
A("s_cmp_ge_u32 s2, 36")
A("s_cbranch_scc1 L_NOXL")
setsrd(sX, 4*1152)
A("s_mul_i32 s10, s2, 57")
A("s_lshr_b32 s10, s10, 9")
A("v_mul_u32_u24 v28, 864, v27")
A("v_add_u32 v28, v28, v29")
A("s_mul_i32 s17, s10, 288")
A(f"s_mov_b32 m0, {XL}")
A("s_add_u32 s18, s17, 3*864")
A("s_waitcnt lgkmcnt(0)")
A(f"buffer_load_dwordx4 v28, s[{sX}:{sX+3}], s17 offen lds")
A("s_mov_b64 exec, 0xff")
A(f"buffer_load_dwordx4 v29, s[{sX}:{sX+3}], s18 offen offset:1024 lds")
A("s_cmp_lg_u32 s2, 0")
A("s_cbranch_scc1 L_NOZ")
A(f"global_store_dword v14, v13, s[{sWS}:{sWS+1}] offset:{YC_OFF} sc1")
A("L_NOZ:")
A("s_mov_b64 exec, -1")
A("L_NOXL:")
A("s_barrier")
setsrd(sSC, 18*9216); setsrd(sZ, 18*9216); setsrd(sWS, WS_BYTES)
A("v_mul_u32_u24 v27, 8928, v27")
A("v_add_u32 v27, v27, v29")
A("s_mul_i32 s16, s4, 9")
A("s_lshr_b32 s16, s16, 2")
A("s_mul_i32 s16, s16, 9216")
A("s_mul_i32 s17, s5, 288")
A("s_add_u32 s16, s16, s17")
A(f"s_mov_b32 m0, {SCL}")
A("s_mov_b32 exec_hi, 0x3fffff")
A("s_waitcnt lgkmcnt(0)")
load_tags()
A(f"buffer_load_dwordx4 v27, s[{sSC}:{sSC+3}], s16 offen lds")
A(f"s_mov_b32 m0, {ZL}")
A("s_nop 0")
A(f"buffer_load_dwordx4 v27, s[{sZ}:{sZ+3}], s16 offen lds")
A("s_mov_b64 exec, -1")
A("s_branch L_SYNC")

A("L_QDONE:")
A("s_mov_b32 exec_hi, -1")
ST(1)
setsrd(sV, 4608*9216); setsrd(sWS, WS_BYTES)
swz(); vaddr(); logid()
A("v_mov_b32 v26, 1")
A(f"s_add_u32 s12, s20, {128*9216}")
A(f"s_mov_b32 s15, {VL}")
A("s_mov_b32 s16, 0")
A("s_waitcnt lgkmcnt(0)")
A(f"s_add_u32 s66, s66, {TA}")
def vround(depth):
    for cg in range(9):
        A(f"s_add_u32 m0, s15, {cg*1024 - cg*128}")
        A(f"s_waitcnt vmcnt({depth-1})")
        A(f"buffer_load_dwordx4 v11, s[{sV}:{sV+3}], s12 offen offset:{cg*128} nt lds")
A("L_V1:")
vround(D1)
if HY: A("s_mov_b32 s13, 0")
A("L_VT:")
A(f"s_add_u32 s12, s12, {8*9216}")
A("s_cmp_eq_u32 s16, 0")
A("s_cselect_b32 s12, s20, s12")
A("s_add_u32 s15, s15, 9216")
A("s_memrealtime s[68:69]")
if D2: A(f"ds_read_b32 v35, v13 offset:{C_A}")
A("s_add_u32 s16, s16, 1")
A("v_mov_b32 v34, s16")
A(f"ds_write_b32 v13, v34 offset:{PROG}")
A(f"s_cmp_eq_u32 s16, {RND}")
A("s_cbranch_scc0 L_VNQ")
A(f"s_waitcnt vmcnt({9*RND})")
A(f"ds_write_b32 v13, v26 offset:{R_Q}")
ST(2)
A("L_VNQ:")
A("s_cmp_eq_u32 s16, 10")
A("s_cbranch_scc0 L_VNW")
ldspin("L_WQ", C_Q, 9)
A("L_VNW:")
A("s_cmp_eq_u32 s16, 17")
A("s_cbranch_scc1 L_VEND")
A("s_waitcnt lgkmcnt(0)")
A("s_sub_u32 s67, s68, s66")
if HY: A("s_add_u32 s67, s67, s13")
A(f"s_add_u32 s66, s66, {TBk}")
A("s_cmp_lt_i32 s67, 0")
A("s_cbranch_scc1 L_V1")
if D2:
    A("v_readfirstlane_b32 s23, v35")
    A("s_cmp_ge_u32 s23, 9")
    A("s_cbranch_scc1 L_V3")
    vround(D2)
    A("s_branch L_VT")
    A("L_V3:")
vround(D3)
if HY:
    A(f"s_add_u32 s13, s13, {TBk*HY//100}")
    A(f"s_min_u32 s13, s13, {(D3-D1)*TBk*HY//900}")
A("s_branch L_VT")
A("L_VEND:")
A("v_lshlrev_b32 v12, 10, v2")
A("s_lshl_b32 s16, s4, 7")
A(f"s_add_u32 s20, s{sWS}, s16")
A(f"s_addc_u32 s21, s{sWS+1}, 0")
A(f"s_add_u32 s16, s16, {FL_OFF + 64}")
flagline()
A("s_mov_b32 s17, 1")
ST(3)
A("s_waitcnt vmcnt(36)")
ST(4)
A("s_barrier")
ST(5)
A(f"ds_read_b32 v14, v13 offset:{R_E}")
A(f"s_waitcnt vmcnt({TK})")
A(f"s_atomic_add s17, s[20:21], {YC_OFF} glc")
A("s_waitcnt vmcnt(0)")
ST(6)
A("s_barrier")
A("s_waitcnt lgkmcnt(0)")
A("v_readfirstlane_b32 s7, v14")
A("s_cmp_lg_u32 s17, 31")
A("s_cbranch_scc1 L_NOTLAST")
A("s_mov_b32 exec_hi, 0")
A(f"buffer_store_dword v14, v12, s[{sWS}:{sWS+3}], s16 offen sc1")
A("L_NOTLAST:")
ST(7)
A(f"s_mov_b32 s22, {SPIN}")
if PP: A("s_not_b32 s23, s7")
A("L_YFL:")
A("s_load_dword s23, s[18:19], 64 glc")
if PP: A(f"s_sleep {PP}")
else: A("s_waitcnt lgkmcnt(0)")
A("s_cmp_eq_u32 s23, s7")
A("s_cbranch_scc1 L_YFLD")
A("s_sub_u32 s22, s22, 1")
A("s_cbranch_scc0 L_YFL")
A("L_YFLD:")
A("s_barrier")
if STAMPS:
    A("; STAMPDUMP 0 8")
A("L_END:")
A("s_endpgm")

def lanes():
    A(f"v_mov_b32 v5, {0xffffffff ^ TM:#x}")
    A("v_lshrrev_b32 v3, 4, v2")
    A("v_and_b32 v4, 15, v2")
    A("v_bfe_u32 v6, v2, 2, 2")
    A("v_and_b32 v7, 3, v2")
    masks()
    logid()
A("L_SYNC:")
A("s_setprio 3")
A("v_mov_b32 v17, 1")
lanes()
flagline()
A("v_lshrrev_b32 v14, 2, v2")
A("v_mul_u32_u24 v15, 576, v7")
A("v_add_lshl_u32 v15, v15, v14, 4")
A("s_mul_i32 s17, s4, 72*16")
A(f"s_add_u32 s17, s17, {XP_OFF}")
A("v_lshl_add_u32 v16, v6, 2, v7")
A("v_mul_u32_u24 v16, 48, v16")
A("v_lshl_add_u32 v16, v3, 1, v16")
A("s_lshl_b32 s68, s5, 7")
A(f"s_add_u32 s68, s68, {AG_OFF}")
A(f"s_add_u32 s68, s{sWS}, s68")
A(f"s_addc_u32 s69, s{sWS+1}, 0")
A("s_getreg_b32 s66, hwreg(HW_REG_XCC_ID, 0, 4)")
A("s_mov_b64 exec, 1")
A("s_waitcnt vmcnt(2)")
A(f"ds_add_u32 v13, v17 offset:{C_U}")
A("s_mov_b64 exec, -1")
A("s_waitcnt lgkmcnt(0)")
make_tags()
A("v_mov_b32 v18, s7")
A(f"ds_write_b32 v13, v18 offset:{R_E}")
A("s_lshl_b32 s67, s7, 4")
A("s_or_b32 s66, s66, s67")
A("s_lshl_b32 s67, s4, 2")
A("s_atomic_swap s66, s[68:69], s67")
A("v_mov_b32 v18, 2")
A("s_waitcnt vmcnt(0)")
A(f"ds_write_b32 v13, v18 offset:{R_U}")
ST(1)
def spoll(nm, off):
    A(f"s_mov_b32 s22, {SPIN}")
    A(f"L_SP{nm}:")
    A(f"s_load_dwordx8 s[8:15], s[18:19], {off} glc")
    A("s_waitcnt lgkmcnt(0)")
    for i in range(8): A(f"s_xor_b32 s{8+i}, s{8+i}, s7")
    A("s_or_b64 s[8:9], s[8:9], s[10:11]")
    A("s_or_b64 s[12:13], s[12:13], s[14:15]")
    A("s_or_b64 s[8:9], s[8:9], s[12:13]")
    A(f"s_cbranch_scc0 L_SP{nm}D")
    A("s_sub_u32 s22, s22, 1")
    A(f"s_cbranch_scc0 L_SP{nm}")
    A(f"L_SP{nm}D:")
spoll("X", 0)
ST(2)
G = 20
A(f"s_mov_b32 s22, {SPIN}")
A("L_XPOLL:")
for u in range(5):
    if u == 4: A("s_mov_b32 exec_hi, 0")
    A(f"buffer_load_dwordx4 v[{G+4*u}:{G+4*u+3}], v15, s[{sWS}:{sWS+3}], s17 offen offset:{256*u} sc1")
A(f"s_mov_b32 s23, {SPIN}")
A("L_AGP:")
A("s_load_dwordx8 s[8:15], s[68:69], 0 glc")
A("s_waitcnt lgkmcnt(0)")
for i in range(8): A(f"s_xor_b32 s{8+i}, s{8+i}, s66")
A("s_or_b64 s[8:9], s[8:9], s[10:11]")
A("s_or_b64 s[12:13], s[12:13], s[14:15]")
A("s_or_b64 s[8:9], s[8:9], s[12:13]")
A("s_or_b32 s8, s8, s9")
A("s_cmp_lt_u32 s8, 16")
A("s_cbranch_scc1 L_AGD")
A("s_sub_u32 s23, s23, 1")
A("s_cbranch_scc0 L_AGP")
A("L_AGD:")
A("s_cmp_eq_u32 s8, 0")
A("s_cselect_b32 s67, 2, 1")
A("s_mov_b32 exec_hi, -1")
A("v_mov_b32 v44, 0")
A("v_mov_b32 v19, s67")
A("s_mov_b32 exec_hi, 0")
A("s_waitcnt vmcnt(0)")
check(G+16, 44)
A("s_mov_b32 exec_hi, -1")
for u in range(4): check(G+4*u, 40+u)
A("v_or3_b32 v40, v40, v41, v42")
A("v_or3_b32 v40, v40, v43, v44")
A(f"v_and_b32 v40, {TM:#x}, v40")
A("v_cmp_ne_u32 vcc, 0, v40")
A("s_cmp_eq_u64 vcc, 0")
A("s_cbranch_scc1 L_XDONE")
A("s_sub_u32 s22, s22, 1")
A("s_cbranch_scc0 L_XPOLL")
A("L_XDONE:")
ST(3)
for qp in ("[1,0,3,2]", "[2,3,0,1]"):
    for i in range(20):
        A(f"v_add_f32_dpp v{G+i}, v{G+i}, v{G+i} quad_perm:{qp} row_mask:0xf bank_mask:0xf")
for u in range(5): sel4(G+4*u)
A(f"v_cvt_pk_bf16_f32 v{G}, v{G}, v{G+4}")
A(f"v_cvt_pk_bf16_f32 v{G+8}, v{G+8}, v{G+12}")
A(f"v_cvt_pk_bf16_f32 v{G+16}, v{G+16}, v{G+16}")
A(f"ds_write_b16 v16, v{G} offset:{XR}")
A(f"ds_write_b16_d16_hi v16, v{G} offset:{XR+8}")
A(f"ds_write_b16 v16, v{G+8} offset:{XR+16}")
A(f"ds_write_b16_d16_hi v16, v{G+8} offset:{XR+24}")
A("s_mov_b32 exec_hi, 0")
A(f"ds_write_b16 v16, v{G+16} offset:{XR+32}")
A(f"ds_write_b32 v13, v19 offset:{R_X}")
ST(4)
A("s_cmp_eq_u32 s67, 1")
A("s_cbranch_scc1 L_GLOBH")
ldspin("L_PHL", PROG, PH)
A("s_branch L_SEND")
A("L_GLOBH:")
spoll("H", 32)
A("L_SEND:")
A(f"ds_write_b32 v13, v17 offset:{R_H}")
ST(5)
if STAMPS:
    A("s_waitcnt vmcnt(0) lgkmcnt(0)")
    A("; STAMPDUMP 0 6")
A("s_endpgm")

A("L_COMP:")
setsrd(sWS, WS_BYTES); setsrd(sV, 4608*9216); setsrd(sOUT, 4*9216)
lanes()
vaddr()
A("s_sub_u32 s6, s6, 2")
A("v_and_b32 v89, 1, v3")
A("v_lshl_add_u32 v89, v89, 2, v6")
A("v_lshlrev_b32 v88, 7, v89")
A("v_lshl_add_u32 v88, v7, 3, v88")
A("v_lshrrev_b32 v89, 1, v89")
A("v_lshrrev_b32 v90, 1, v3")
A("v_mov_b32 v60, 1")
A("v_lshlrev_b32 v55, 4, v2")
SZ = 64
ST(1)
A("s_cmp_ge_u32 s2, 36")
A("s_cbranch_scc1 L_NOX")
A("s_cmp_lt_u32 s6, 4")
A("s_cbranch_scc1 L_XJOB")
A("s_mov_b64 exec, 1")
A("s_waitcnt vmcnt(0)")
A(f"ds_add_u32 v13, v60 offset:{C_U}")
A("s_mov_b64 exec, -1")
A("s_branch L_NOX")
A("L_XJOB:")
A("s_setprio 2")
XA = 16
XB = 100
A("v_mul_u32_u24 v15, 288, v7")
A("v_lshl_add_u32 v15, v3, 3, v15")
A(f"v_add_u32 v15, {XL}, v15")
A(f"v_mov_b32 v{XA+18}, 0"); A(f"v_mov_b32 v{XA+19}, 0")
A("v_xor_b32 v56, s6, v89")
A("v_lshl_add_u32 v56, v56, 5, v88")
A("v_lshl_add_u32 v56, v90, 10, v56")
A(f"v_add_u32 v56, {UL}, v56")
A(f"v_mov_b32 v{XB+18}, 0"); A(f"v_mov_b32 v{XB+19}, 0")
A("s_mul_i32 s17, s10, 576*16")
A("s_lshl_b32 s18, s11, 10")
A("s_add_u32 s17, s17, s18")
A("s_lshl_b32 s18, s6, 8")
A("s_add_u32 s17, s17, s18")
A(f"s_add_u32 s17, s17, {XP_OFF}")
A("v_and_b32 v57, 31, v2")
A("v_lshlrev_b32 v57, 10, v57")
A("v_lshrrev_b32 v58, 5, v2")
A("v_mul_u32_u24 v58, 124, v58")
A("v_sub_u32 v57, v57, v58")
A("v_add_u32 v57, 128, v57")
A("s_lshl_b32 s18, s11, 7")
A("s_lshl_b32 s19, s10, 3")
A("s_add_u32 s18, s18, s19")
A(f"s_add_u32 s18, s18, {FL_OFF - 128}")
A("s_cmp_eq_u32 s11, 8")
A("s_cselect_b32 s8, 0, -1")
A("s_cmp_eq_u32 s11, 0")
A("s_cselect_b32 s9, 0, -1")
A("s_waitcnt lgkmcnt(0)")
make_tags()
A("v_mov_b32 v58, s7")
A("s_mov_b64 exec, 1")
A("s_waitcnt vmcnt(0)")
A(f"ds_add_u32 v13, v60 offset:{C_U}")
A("s_mov_b64 exec, -1")
ldspin("L_RU", C_U, 10)
for t in range(5):
    if t < 4: A(f"ds_read2_b64 v[{XA+4*t}:{XA+4*t+3}], v15 offset0:{8*t} offset1:{8*t+4}")
    else: A(f"ds_read_b64 v[{XA+4*t}:{XA+4*t+1}], v15 offset:{64*t}")
    A(f"ds_read_b64_tr_b16 v[{XB+4*t}:{XB+4*t+1}], v56 offset:{4*t*1024}")
    if t < 4: A(f"ds_read_b64_tr_b16 v[{XB+4*t+2}:{XB+4*t+3}], v56 offset:{(4*t+2)*1024}")
for t in range(5):
    A(f"s_waitcnt lgkmcnt({max(0, 11-3*t)})")
    c = "0" if t == 0 else "v[40:43]"
    A(f"v_mfma_f32_16x16x32_bf16 v[40:43], v[{XA+4*t}:{XA+4*t+3}], v[{XB+4*t}:{XB+4*t+3}], {c}")
A("s_mov_b64 exec, 0xffff")
A("s_nop 6")
tag(40)
A(f"buffer_store_dwordx4 v[40:43], v55, s[{sWS}:{sWS+3}], s17 offen sc1")
A("s_mov_b64 exec, 1")
A(f"ds_add_rtn_u32 v14, v13, v60 offset:{C_XW}")
A("s_waitcnt lgkmcnt(0)")
A("v_readfirstlane_b32 s23, v14")
A("s_cmp_lg_u32 s23, 3")
A("s_cbranch_scc1 L_XNF")
A("s_mov_b64 exec, s[8:9]")
A(f"buffer_store_dword v58, v57, s[{sWS}:{sWS+3}], s18 offen sc1")
A("L_XNF:")
A("s_mov_b64 exec, -1")
A("s_setprio 0")
A("s_branch L_XEND")
A("L_NOX:")
A("s_waitcnt lgkmcnt(0)")
make_tags()
A("L_XEND:")
ST(2)
A("v_mul_u32_u24 v15, 576, v3")
A("v_lshl_add_u32 v15, v4, 2, v15")
A("s_lshl_b32 s12, s6, 6")
A(f"s_add_u32 s12, s12, {QL}")
A("v_add_u32 v15, s12, v15")
A("v_lshl_add_u32 v56, v3, 2, v7")
A("v_mul_u32_u24 v56, 48, v56")
A("s_and_b32 s12, s4, 3")
for k in (1, 2, 3):
    A(f"s_cmp_ge_u32 s12, {k}")
    A(f"s_cselect_b64 s[{12+2*k}:{13+2*k}], -1, 0")
A("v_lshlrev_b32 v57, 1, v4")
A("s_lshl_b32 s12, s6, 5")
A("v_add_u32 v57, s12, v57")
ldspin("L_RU2", R_U, 2)
for g in range(3):
    A(f"ds_read_u16 v{SZ+g}, v57 offset:{SCL + 288*g}")
    A(f"ds_read_u16 v{SZ+3+g}, v57 offset:{ZL + 288*g}")
A("s_waitcnt lgkmcnt(0)")
for g in range(6): A(f"v_lshlrev_b32 v{SZ+g}, 16, v{SZ+g}")
SP, ZP = 70, 79
def pairsz(p):
    base = p >> 2
    r = p & 3
    if r == 0: return SZ+base, SZ+3+base
    return SP+p, ZP+p
for p in range(9):
    base, r = p >> 2, p & 3
    if r:
        k = 4 - r
        A(f"v_cndmask_b32 v{SP+p}, v{SZ+base}, v{SZ+base+1}, s[{12+2*k}:{13+2*k}]")
        A(f"v_cndmask_b32 v{ZP+p}, v{SZ+3+base}, v{SZ+3+base+1}, s[{12+2*k}:{13+2*k}]")
QW = 16
B = 36
AX = 100
for r in (B+9, B+10, B+11, AX+9, AX+10, AX+11): A(f"v_mov_b32 v{r}, 0")
A("s_mul_i32 s18, s3, 2304")
A("s_lshl_b32 s19, s6, 8")
A("s_add_u32 s18, s18, s19")
A(f"s_add_u32 s18, s18, {HP_OFF}")
A("s_mul_i32 s17, s5, 8*2304")
A("s_add_u32 s17, s17, s19")
A(f"s_add_u32 s17, s17, {HP_OFF}")
A("v_lshlrev_b32 v61, 7, v2")
A("v_mov_b32 v62, s7")
A("s_lshl_b32 s16, s5, 10")
A("s_lshl_b32 s19, s4, 2")
A("s_add_u32 s16, s16, s19")
A(f"s_add_u32 s16, s16, {FL_OFF + 32}")
ldspin("L_RQ", R_Q, 1)
ST(3)
for p in range(9):
    A(f"ds_read2st64_b32 v[{QW+2*p}:{QW+2*p+1}], v15 offset0:{18*p} offset1:{18*p+9}")
for p in range(9):
    A(f"s_waitcnt lgkmcnt({8-p})")
    if p == 8:
        A("s_mov_b64 exec, 1")
        A(f"ds_add_u32 v13, v60 offset:{C_Q}")
        A("s_mov_b64 exec, -1")
    r0, r1 = QW+2*p, QW+2*p+1
    sr, zr = pairsz(p)
    A(f"v_cvt_f32_i32 v{r0}, v{r0}")
    A(f"v_cvt_f32_i32 v{r1}, v{r1}")
    A(f"v_sub_f32 v{r0}, v{r0}, v{zr}")
    A(f"v_sub_f32 v{r1}, v{r1}, v{zr}")
    A(f"v_cvt_pk_bf16_f32 v{r1}, v{r0}, v{r1}")
    A(f"v_lshlrev_b32 v{r0}, 16, v{r1}")
    A(f"v_and_b32 v{r1}, 0xffff0000, v{r1}")
    A(f"v_mul_f32 v{r0}, v{r0}, v{sr}")
    A(f"v_mul_f32 v{r1}, v{r1}, v{sr}")
    A(f"v_cvt_pk_bf16_f32 v{B+p}, v{r0}, v{r1}")
ldspin("L_RX", R_X, 1)
A(f"ds_read_b128 v[{AX}:{AX+3}], v56 offset:{XR}")
A(f"ds_read_b128 v[{AX+4}:{AX+7}], v56 offset:{XR+16}")
A(f"ds_read_b32 v{AX+8}, v56 offset:{XR+32}")
for t in range(3):
    A(f"s_waitcnt lgkmcnt({2-t})")
    c = "0" if t == 0 else "v[48:51]"
    A(f"v_mfma_f32_16x16x32_bf16 v[48:51], v[{AX+4*t}:{AX+4*t+3}], v[{B+4*t}:{B+4*t+3}], {c}")
A("s_mov_b64 exec, 0xffff")
A("s_cmp_eq_u32 s23, 2")
A("s_nop 5")
tag(48)
A("s_cbranch_scc0 L_HGL")
A(f"buffer_store_dwordx4 v[48:51], v55, s[{sWS}:{sWS+3}], s18 offen")
A("s_branch L_HNF")
A("L_HGL:")
A(f"buffer_store_dwordx4 v[48:51], v55, s[{sWS}:{sWS+3}], s18 offen sc1")
A("s_mov_b64 exec, 1")
A(f"ds_add_rtn_u32 v14, v13, v60 offset:{C_H}")
A("s_waitcnt lgkmcnt(0)")
A("v_readfirstlane_b32 s23, v14")
A("s_cmp_lg_u32 s23, 8")
A("s_cbranch_scc1 L_HNF")
A("s_mov_b64 exec, 0xff")
A(f"buffer_store_dword v62, v61, s[{sWS}:{sWS+3}], s16 offen sc1")
A("L_HNF:")
A("s_mov_b64 exec, -1")
REM = 112
A("s_lshl_b32 s21, s6, 7")
A("s_add_u32 s20, s20, s21")
A(f"s_add_u32 s20, s20, {136*9216}")
A(f"buffer_load_dwordx4 v[{REM}:{REM+3}], v11, s[{sV}:{sV+3}], s20 offen nt")
ST(4)
A("v_mul_u32_u24 v96, 2304, v10")
A("v_lshl_add_u32 v96, v8, 4, v96")
A("v_lshrrev_b32 v58, 2, v8")
A("v_lshlrev_b32 v58, 6, v58")
A("v_lshl_add_u32 v58, v7, 4, v58")
A("v_and_b32 v59, 3, v8")
A("v_lshl_add_u32 v58, v59, 1, v58")
A("s_lshr_b32 s18, s6, 1")
A("s_lshl_b32 s18, s18, 8")
A("s_and_b32 s19, s6, 1")
A("s_lshl_b32 s19, s19, 3")
A("s_add_u32 s18, s18, s19")
A("v_add_u32 v97, s18, v58")
A("v_mov_b32 v9, v55")
A("v_mov_b32 v15, v60")
AV = 16
def areg(t, i=0): return AV + 4*t
A("v_mul_u32_u24 v98, 9216, v90")
A("v_add_u32 v98, v98, v88")
A("s_lshl_b32 s18, s6, 10")
A(f"s_add_u32 s18, s18, {VL}")
A("v_add_u32 v98, s18, v98")
TRA, TRB = 100, 104
for i in range(4):
    A(f"v_xor_b32 v99, {i}, v89")
    A(f"v_lshl_add_u32 v{TRA+i}, v99, 5, v98")
    A(f"v_add_u32 v{TRB+i}, 73728, v{TRA+i}")
A("v_add_u32 v99, s18, v9")
A("v_lshlrev_b32 v98, 6, v3")
A("v_lshl_add_u32 v98, v7, 4, v98")
A("v_mov_b32 v34, 0"); A("v_mov_b32 v35, 0")
A(f"v_mov_b32 v117, {1 << (TB-1):#x}")
A("s_lshl_b32 s16, s4, 5")
A("s_add_u32 s14, s16, s5")
A("s_mul_i32 s14, s14, 9216")
A("s_lshl_b32 s19, s6, 10")
A("s_add_u32 s14, s14, s19")
A(f"s_add_u32 s14, s14, {YP_OFF}")
A("v_subrev_u32 v8, 128, v0")
A("v_mul_u32_u24 v10, 3641, v8")
A("v_lshrrev_b32 v10, 16, v10")
A("v_mul_u32_u24 v10, 8928, v10")
A("v_lshlrev_b32 v11, 4, v8")
A("v_add_u32 v10, v10, v11")
A("s_mul_i32 s16, s16, 9216")
A("s_mul_i32 s19, s5, 288")
A("s_add_u32 s16, s16, s19")
A(f"s_add_u32 s16, s16, {YP_OFF}")
A("v_and_b32 v1, 7, v8")
A("v_mul_u32_u24 v1, 288, v1")
A("v_lshrrev_b32 v8, 3, v8")
A("v_lshl_add_u32 v1, v8, 2, v1")
A(f"v_add_u32 v1, {VL}, v1")
A("v_and_b32 v12, 3, v8")
A("v_mul_u32_u24 v12, 9216, v12")
A("v_lshrrev_b32 v8, 2, v8")
A("v_lshl_add_u32 v12, v8, 1, v12")
A("s_mul_i32 s15, s4, 1152")
A("s_mul_i32 s19, s5, 36")
A("s_add_u32 s15, s15, s19")
BT = 48
ldspin("L_RH", R_H, 1)
H0, H1 = 48, 52
A(f"s_mov_b32 s22, {SPIN}")
A("L_HPOLL:")
A(f"buffer_load_dwordx4 v[{H0}:{H0+3}], v96, s[{sWS}:{sWS+3}], s17 offen sc1")
A(f"buffer_load_dwordx4 v[{H1}:{H1+3}], v96, s[{sWS}:{sWS+3}], s17 offen offset:128 sc1")
A("s_waitcnt vmcnt(0)")
check(H0, 56)
check(H1, 57)
A("v_or_b32 v56, v56, v57")
A(f"v_and_b32 v56, {TM:#x}, v56")
A("v_cmp_ne_u32 vcc, 0, v56")
A("s_and_b64 exec, vcc, vcc")
A("s_cbranch_scc0 L_HDONE")
A("s_sub_u32 s22, s22, 1")
A("s_cbranch_scc0 L_HPOLL")
A("L_HDONE:")
A("s_mov_b64 exec, -1")
ST(5)
for dp in ("quad_perm:[1,0,3,2]", "quad_perm:[2,3,0,1]", "row_half_mirror"):
    for i in range(8):
        A(f"v_add_f32_dpp v{H0+i}, v{H0+i}, v{H0+i} {dp} row_mask:0xf bank_mask:0xf")
sel4(H0); sel4(H1)
A(f"v_cvt_pk_bf16_f32 v{H0}, v{H0}, v{H1}")
A(f"ds_write_b16 v97, v{H0} offset:{HA}")
A(f"ds_write_b16_d16_hi v97, v{H0} offset:{HA+128}")
A("s_mov_b64 exec, 1")
A(f"ds_add_u32 v13, v15 offset:{C_A}")
A("s_mov_b64 exec, -1")
ldspin("L_CA", C_A, 9)
for t in range(4):
    a = areg(t)
    A(f"ds_read_b128 v[{a}:{a+3}], v98 offset:{HA + 256*t}")
A(f"ds_read_b64 v[32:33], v98 offset:{HA + 1024}")
Y = 108
YD = [36, 40, 44, 120]
def trreads(t, base):
    tr = TRA if t < 2 else TRB
    o = (1 + 4*(t % 2))*9216
    for i in range(4):
        A(f"ds_read_b64_tr_b16 v[{base+4*i}:{base+4*i+1}], v{tr+i} offset:{o}")
        A(f"ds_read_b64_tr_b16 v[{base+4*i+2}:{base+4*i+3}], v{tr+i} offset:{o + 2*9216}")
def mf(t, i, base, first=False):
    a = areg(t); d = YD[i]
    c = "0" if first else f"v[{d}:{d+3}]"
    A(f"v_mfma_f32_16x16x32_bf16 v[{d}:{d+3}], v[{a}:{a+3}], v[{base+4*i}:{base+4*i+3}], {c}")
def mfmas(t, base, first=False):
    for i in range(4): mf(t, i, base, first)
def kstep(t, base):
    trreads(t, base)
    for i in range(4):
        A(f"s_waitcnt lgkmcnt({6-2*i})")
        mf(t, i, base)
LG = (max(D1, D3) + 8)//9
ST(6)
ldspin("L_EB", PROG, 9 + LG)
trreads(0, BT)
A(f"ds_write_b128 v99, v[{REM}:{REM+3}] offset:9216")
trreads(1, BT+16)
for i in range(4):
    A(f"v_mov_b32 v{BT+32+4*i+2}, 0"); A(f"v_mov_b32 v{BT+32+4*i+3}, 0")
A("s_waitcnt lgkmcnt(9)")
mfmas(0, BT, True)
for i in range(4):
    A(f"ds_read_b64_tr_b16 v[{BT+32+4*i}:{BT+32+4*i+1}], v{TRA+i}")
A("s_waitcnt lgkmcnt(4)")
mfmas(1, BT+16)
A("s_waitcnt lgkmcnt(0)")
mfmas(4, BT+32)
A(f"s_mov_b32 s22, {SPIN}")
A("s_barrier")
ST(7)
kstep(2, BT)
ST(8)
A("s_barrier")
ST(9)
kstep(3, BT+16)
A("s_nop 1")
for g in range(4):
    for r in range(4):
        A(f"v_add_u32_dpp v{Y+r}, v{YD[g]+r}, v117 quad_perm:[0,1,2,3] row_mask:{1 << g:#x} bank_mask:0xf")
for i in range(4): A(f"v_and_or_b32 v{Y+i}, v{Y+i}, v5, s{60+i}")
A(f"buffer_store_dwordx4 v[{Y}:{Y+3}], v9, s[{sWS}:{sWS+3}], s14 offen sc1")
ST(10)
A("s_barrier")
YG = 112
A("s_branch L_YP0")
A("L_YPOLL:")
A("s_sleep 2")
A("L_YP0:")
A(f"buffer_load_dwordx4 v[{YG}:{YG+3}], v10, s[{sWS}:{sWS+3}], s16 offen sc1")
A("s_waitcnt vmcnt(0)")
check(YG, 116)
A(f"v_and_b32 v116, {TM:#x}, v116")
A("v_cmp_ne_u32 vcc, 0, v116")
A("s_and_b64 exec, vcc, vcc")
A("s_cbranch_scc0 L_YDONE")
A("s_sub_u32 s22, s22, 1")
A("s_cbranch_scc0 L_YPOLL")
A("L_YDONE:")
A("s_mov_b64 exec, -1")
ST(11)
A(f"ds_write_b128 v11, v[{YG}:{YG+3}] offset:{VL}")
A("s_waitcnt lgkmcnt(0)")
A("s_barrier")
A(f"ds_read2st64_b32 v[{YG}:{YG+1}], v1 offset0:0 offset1:9")
A(f"ds_read2st64_b32 v[{YG+2}:{YG+3}], v1 offset0:18 offset1:27")
A("s_waitcnt lgkmcnt(0)")
A(f"v_add_f32 v{YG}, v{YG}, v{YG+1}")
A(f"v_add_f32 v{YG+2}, v{YG+2}, v{YG+3}")
A(f"v_add_f32 v{YG}, v{YG}, v{YG+2}")
for dp in ("quad_perm:[1,0,3,2]", "quad_perm:[2,3,0,1]", "row_half_mirror"):
    A("s_nop 1")
    A(f"v_add_f32_dpp v{YG}, v{YG}, v{YG} {dp} row_mask:0xf bank_mask:0xf")
A(f"v_cvt_pk_bf16_f32 v{YG}, v{YG}, v{YG}")
A("s_mov_b32 exec_lo, 0x01010101")
A("s_mov_b32 exec_hi, 0x01010101")
A(f"buffer_store_short v{YG}, v12, s[{sOUT}:{sOUT+3}], s15 offen")
A("s_or_b32 s19, s2, s6")
A("s_cbranch_scc1 L_CEND")
A("s_mov_b64 exec, 1")
A("v_mov_b32 v14, s7")
A(f"buffer_store_dword v14, v13, s[{sWS}:{sWS+3}], 0 offen offset:{EP_OFF}")
A("L_CEND:")
if STAMPS:
    A("s_waitcnt vmcnt(0)")
    A("; STAMPDUMP 0 12")
A("s_endpgm")
A("L_CODE_END:")

VG = 124
A('.section .rodata,"a"')
A(".p2align 6")
A(f""".amdhsa_kernel {KN}
  .amdhsa_next_free_vgpr {VG}
  .amdhsa_next_free_sgpr 70
  .amdhsa_accum_offset {(VG+3)//4*4}
  .amdhsa_group_segment_fixed_size 0
  .amdhsa_kernarg_size 72
  .amdhsa_user_sgpr_count 2
  .amdhsa_user_sgpr_kernarg_segment_ptr 1
  .amdhsa_system_sgpr_workgroup_id_x 1
  .amdhsa_float_denorm_mode_32 3
.end_amdhsa_kernel""")
dst = sys.argv[1]
if STAMPS:
    open(dst + ".pre", "w").write("\n".join(out) + "\n")
    import subprocess
    subprocess.check_call([sys.executable, "stamp.py", dst + ".pre", dst])
else:
    open(dst, "w").write("\n".join(out) + "\n")
```

```python
import sys, os
NAME = "standalone__weight_only_int_quip__decode"
KN = NAME + "_kernel"
E = lambda k, d: int(os.environ.get(k, str(d)))
D1 = E("D1", 18); D3 = E("D3", 45); TK = E("TK", 8); PH = E("PH", 8)
D2 = E("D2", 0)
HY = E("HY", 0)
PP = E("PP", 0)
PT = os.environ.get("PT", "")
TA = E("TA", 205); TBk = E("TBK", 32)
TB = E("TB", 10)
STAMPS = bool(os.environ.get("STAMPS"))
SPIN = 1 << 16
RND = (D1 + 8)//9
out = []
def A(s): out.append(s)
def ST(k):
    if STAMPS: A(f"; STAMP {k}")
TM = (1 << TB) - 1

XR, HA, CNT, SCL, ZL, XL, VL = 0, 768, 2048, 2304, 3328, 4352, 7168
R_U, R_Q, R_X, R_H, C_A, C_Q, C_XW, C_H, R_E, PROG, C_U = [CNT + 4*i for i in range(11)]
LDS_BYTES = VL + 17*9216
QL = LDS_BYTES - 41472
UL = QL - 18432
assert LDS_BYTES == 163840 and UL >= VL + 10*9216
EP_OFF, YC_OFF, XP_OFF, AG_OFF, FL_OFF, HP_OFF, YP_OFF, WS_BYTES = 0, 1024, 4096, 49152, 65536, 131072, 1 << 20, 4 << 20

A(f"""; Kernarg layout for this problem (72 bytes, ptrs only, base s[0:1]):
; @launch grid=(256,1,1) block=(704,1,1) lds={LDS_BYTES}
.amdgcn_target "amdgcn-amd-amdhsa--gfx950"
.text
.globl {KN}
.p2align 8
.type {KN},@function
{KN}:""")

sQW, sSC, sZ, sV, sWS, sOUT, sU, sX = 24, 28, 32, 36, 40, 44, 48, 52
def kl(r, off): A(f"s_load_dwordx2 s[{r}:{r+1}], s[0:1], {off}")
def setsrd(r, nb):
    A(f"s_mov_b32 s{r+2}, {nb}")
    A(f"s_mov_b32 s{r+3}, 0x00020000")
def load_tags(): A(f"s_load_dword s7, s[{sWS}:{sWS+1}], {EP_OFF}")
def make_tags():
    step = (1 << TB) * 31 // 100
    for i in range(4):
        A(f"s_add_u32 s{60+i}, s7, {1 + i*step}")
        A(f"s_and_b32 s{60+i}, s{60+i}, {TM:#x}")
    A("s_add_u32 s7, s7, 1")
def tag(r):
    for i in range(4): A(f"v_add_u32 v{r+i}, {1 << (TB-1):#x}, v{r+i}")
    for i in range(4): A(f"v_and_or_b32 v{r+i}, v{r+i}, v5, s{60+i}")
def check(r, t):
    for i in range(4): A(f"v_xor_b32 v{r+i}, s{60+i}, v{r+i}")
    A(f"v_or3_b32 v{t}, v{r}, v{r+1}, v{r+2}")
    A(f"v_or_b32 v{t}, v{t}, v{r+3}")
def masks():
    A("s_mov_b32 s56, 0x22222222"); A("s_mov_b32 s57, 0x22222222")
    A("s_mov_b32 s58, 0x44444444"); A("s_mov_b32 s59, 0x44444444")
    A("s_mov_b32 s64, 0x88888888"); A("s_mov_b32 s65, 0x88888888")
def sel4(h):
    A(f"v_cndmask_b32 v{h}, v{h}, v{h+1}, s[56:57]")
    A(f"v_cndmask_b32 v{h}, v{h}, v{h+2}, s[58:59]")
    A(f"v_cndmask_b32 v{h}, v{h}, v{h+3}, s[64:65]")
def ldspin(label, addr, target, tmp=14):
    A(f"s_mov_b32 s22, {SPIN*4}")
    A(f"{label}:")
    A(f"ds_read_b32 v{tmp}, v13 offset:{addr}")
    A("s_waitcnt lgkmcnt(0)")
    A(f"v_readfirstlane_b32 s23, v{tmp}")
    A(f"s_cmp_ge_u32 s23, {target}")
    A(f"s_cbranch_scc1 {label}_D")
    A("s_sleep 1")
    A("s_sub_u32 s22, s22, 1")
    A(f"s_cbranch_scc0 {label}")
    A(f"{label}_D:")
def swz():
    A("v_lshrrev_b32 v8, 3, v2")
    A("v_and_b32 v9, 6, v8")
    A("v_and_b32 v10, 7, v2")
    A("v_xor_b32 v9, v9, v10")
def vaddr():
    A("v_mul_u32_u24 v11, 9216, v8")
    A("v_lshl_add_u32 v11, v9, 4, v11")
    A("s_mul_i32 s20, s5, 144*9216")
    A("s_mul_i32 s21, s4, 1152")
    A("s_add_u32 s20, s20, s21")
def xids():
    A("s_mul_i32 s10, s2, 57")
    A("s_lshr_b32 s10, s10, 9")
    A("s_mul_i32 s11, s10, 9")
    A("s_sub_u32 s11, s2, s11")
def logid():
    A("s_lshl_b32 s3, s5, 3")
    A("s_add_u32 s3, s3, s4")
def flagline():
    A("s_lshl_b32 s18, s3, 7")
    A(f"s_add_u32 s18, s18, {FL_OFF}")
    A(f"s_add_u32 s18, s{sWS}, s18")
    A(f"s_addc_u32 s19, s{sWS+1}, 0")

A("s_cmp_ge_u32 s2, 256")
A("s_cbranch_scc1 L_END")
kl(sQW, 8)
A("s_getpc_b64 s[8:9]")
A("L_PC:")
A("v_lshlrev_b32 v14, 4, v0")
A("v_min_u32 v14, L_CODE_END-L_PC-4, v14")
A("global_load_dword v99, v14, s[8:9]")
kl(sU, 32); kl(sWS, 64)
A("v_readfirstlane_b32 s6, v0")
ST(0)
A("s_bfe_u32 s4, s2, 0x30003")
A("s_and_b32 s5, s2, 7")
A("s_lshl_b32 s5, s5, 2")
A("s_lshr_b32 s3, s2, 6")
A("s_add_u32 s5, s5, s3")
A("v_and_b32 v2, 63, v0")
A("v_mov_b32 v13, 0")
A("s_lshr_b32 s6, s6, 6")
A("s_cbranch_scc1 L_NOTL")
A("s_memrealtime s[66:67]")
setsrd(sQW, 576*4608*4)
A("v_mul_u32_u24 v14, 1821, v2")
A("v_lshlrev_b32 v15, 4, v2")
A("s_movk_i32 s13, 17856")
A("s_mul_i32 s12, s4, 72*18432")
A("s_mul_i32 s14, s5, 576")
A("s_add_u32 s12, s12, s14")
A(f"s_mov_b32 m0, {QL}")
QO = 16
A(f"v_lshrrev_b32 v{QO}, 16, v14")
A(f"v_mad_u32_u24 v{QO}, v{QO}, s13, v15")
A("s_cmp_ge_u32 s2, 36")
A("s_cbranch_scc1 L_QGO")
A("s_barrier")
A("L_QGO:")
A("s_waitcnt lgkmcnt(0)")
kl(sV, 40)
for i in range(9):
    if i:
        A(f"v_add_u32 v14, {64*1821}, v14")
        if i % 4 == 0:
            A("s_add_u32 m0, m0, 4096")
            A("s_add_u32 s12, s12, 4096")
        A(f"v_lshrrev_b32 v{QO+i}, 16, v14")
        A(f"v_mad_u32_u24 v{QO+i}, v{QO+i}, s13, v15")
    A(f"buffer_load_dwordx4 v{QO+i}, s[{sQW}:{sQW+3}], s12 offen offset:{1024*(i%4)} nt lds")
A("s_mov_b32 s16, 1")
A("L_QLOOP:")
for i in range(9):
    if i % 4 == 0:
        A(f"s_add_u32 m0, m0, {4096 if i else 1024}")
        A(f"s_add_u32 s12, s12, {4096 if i else 16*18432 - 8192}")
    if i == 4:
        A("s_cmp_eq_u32 s16, 4")
        A("s_cselect_b32 exec_hi, 0, -1")
    A(f"s_waitcnt vmcnt({D1-1})")
    A(f"buffer_load_dwordx4 v{QO+i}, s[{sQW}:{sQW+3}], s12 offen offset:{1024*(i%4)} nt lds")
    if i == 4: A("s_cbranch_scc1 L_QDONE")
A("s_add_u32 s16, s16, 1")
A("s_cmp_lg_u32 s16, 2")
A("s_cbranch_scc1 L_QLOOP")
A("s_cmp_lt_u32 s2, 36")
A("s_cbranch_scc1 L_QLOOP")
A("s_barrier")
A("s_branch L_QLOOP")

A("L_NOTL:")
A("s_cmp_eq_u32 s6, 1")
A("s_cbranch_scc1 L_AUX")
A("v_lshlrev_b32 v14, 2, v2")
A(f"ds_write_b32 v14, v13 offset:{CNT}")
swz()
A("s_cmp_ge_u32 s2, 36")
A("s_cbranch_scc1 L_NOU")
xids()
setsrd(sU, 576*1152)
A("v_mul_u32_u24 v12, 1152, v8")
A("v_lshl_add_u32 v12, v9, 4, v12")
A("s_mul_i32 s14, s10, 144*1152")
A("s_lshl_b32 s13, s11, 7")
A("s_add_u32 s14, s14, s13")
A("s_mul_i32 s13, s6, 16*1152")
A("s_add_u32 s14, s14, s13")
A(f"s_sub_u32 s14, s14, {32*1152}")
A("s_lshl_b32 s13, s6, 11")
A(f"s_add_u32 m0, s13, {UL - 4096}")
A(f"s_add_u32 s15, s14, {8*1152 - 1024}")
A("s_waitcnt lgkmcnt(0)")
A(f"buffer_load_dwordx4 v12, s[{sU}:{sU+3}], s14 offen nt lds")
A(f"buffer_load_dwordx4 v12, s[{sU}:{sU+3}], s15 offen offset:1024 nt lds")
A("L_NOU:")
A("s_waitcnt lgkmcnt(0)")
kl(sV, 40); kl(sOUT, 48)
load_tags()
A("s_barrier")
A("s_branch L_COMP")
A("L_AUX:")
kl(sX, 0); kl(sSC, 16); kl(sZ, 24)
if PT: kl(sV, 40); kl(sOUT, 48)
A("v_mul_u32_u24 v27, 3641, v2")
A("v_lshrrev_b32 v27, 16, v27")
A("v_lshlrev_b32 v29, 4, v2")
A("v_lshlrev_b32 v14, 7, v2")
A("s_cmp_ge_u32 s2, 36")
A("s_cbranch_scc1 L_NOXL")
setsrd(sX, 4*1152)
A("s_mul_i32 s10, s2, 57")
A("s_lshr_b32 s10, s10, 9")
A("v_mul_u32_u24 v28, 864, v27")
A("v_add_u32 v28, v28, v29")
A("s_mul_i32 s17, s10, 288")
A(f"s_mov_b32 m0, {XL}")
A("s_add_u32 s18, s17, 3*864")
A("s_waitcnt lgkmcnt(0)")
A(f"buffer_load_dwordx4 v28, s[{sX}:{sX+3}], s17 offen lds")
A("s_mov_b64 exec, 0xff")
A(f"buffer_load_dwordx4 v29, s[{sX}:{sX+3}], s18 offen offset:1024 lds")
A("s_cmp_lg_u32 s2, 0")
A("s_cbranch_scc1 L_NOZ")
A(f"global_store_dword v14, v13, s[{sWS}:{sWS+1}] offset:{YC_OFF} sc1")
A("L_NOZ:")
A("s_mov_b64 exec, -1")
A("L_NOXL:")
A("s_barrier")
setsrd(sSC, 18*9216); setsrd(sZ, 18*9216); setsrd(sWS, WS_BYTES)
A("v_mul_u32_u24 v27, 8928, v27")
A("v_add_u32 v27, v27, v29")
A("s_mul_i32 s16, s4, 9")
A("s_lshr_b32 s16, s16, 2")
A("s_mul_i32 s16, s16, 9216")
A("s_mul_i32 s17, s5, 288")
A("s_add_u32 s16, s16, s17")
A(f"s_mov_b32 m0, {SCL}")
A("s_mov_b32 exec_hi, 0x3fffff")
A("s_waitcnt lgkmcnt(0)")
load_tags()
A(f"buffer_load_dwordx4 v27, s[{sSC}:{sSC+3}], s16 offen lds")
A(f"s_mov_b32 m0, {ZL}")
A("s_nop 0")
A(f"buffer_load_dwordx4 v27, s[{sZ}:{sZ+3}], s16 offen lds")
NPT = 0
if PT:
    A("s_mov_b64 exec, 3")
    if "v" in PT:
        A("s_mul_i32 s20, s5, 144*9216")
        A(f"v_mul_u32_u24 v30, {144*9216-4}, v2")
        A("v_add_u32 v30, s20, v30")
        A(f"global_load_dword v31, v30, s[{sV}:{sV+1}]"); NPT += 1
    if "w" in PT:
        A(f"v_mul_u32_u24 v30, {(4<<20)-1024}, v2")
        A(f"global_load_dword v32, v30, s[{sWS}:{sWS+1}] offset:512"); NPT += 1
    if "o" in PT:
        A(f"global_load_dword v33, v13, s[{sOUT}:{sOUT+1}]"); NPT += 1
    if "q" in PT:
        A("s_mul_i32 s20, s4, 72*18432")
        A(f"s_add_u32 s20, s20, {72*18432-4}")
        A("v_mov_b32 v30, s20")
        A(f"global_load_dword v34, v30, s[{sQW}:{sQW+1}]"); NPT += 1
A("s_mov_b64 exec, -1")
A("s_branch L_SYNC")

A("L_QDONE:")
A("s_mov_b32 exec_hi, -1")
ST(1)
setsrd(sV, 4608*9216); setsrd(sWS, WS_BYTES)
swz(); vaddr(); logid()
A("v_mov_b32 v26, 1")
A(f"s_add_u32 s12, s20, {128*9216}")
A(f"s_mov_b32 s15, {VL}")
A("s_mov_b32 s16, 0")
A("s_waitcnt lgkmcnt(0)")
A(f"s_add_u32 s66, s66, {TA}")
def vround(depth):
    for cg in range(9):
        A(f"s_add_u32 m0, s15, {cg*1024 - cg*128}")
        A(f"s_waitcnt vmcnt({depth-1})")
        A(f"buffer_load_dwordx4 v11, s[{sV}:{sV+3}], s12 offen offset:{cg*128} nt lds")
A("L_V1:")
vround(D1)
if HY: A("s_mov_b32 s13, 0")
A("L_VT:")
A(f"s_add_u32 s12, s12, {8*9216}")
A("s_cmp_eq_u32 s16, 0")
A("s_cselect_b32 s12, s20, s12")
A("s_add_u32 s15, s15, 9216")
A("s_memrealtime s[68:69]")
if D2: A(f"ds_read_b32 v35, v13 offset:{C_A}")
A("s_add_u32 s16, s16, 1")
A("v_mov_b32 v34, s16")
A(f"ds_write_b32 v13, v34 offset:{PROG}")
A(f"s_cmp_eq_u32 s16, {RND}")
A("s_cbranch_scc0 L_VNQ")
A(f"s_waitcnt vmcnt({9*RND})")
A(f"ds_write_b32 v13, v26 offset:{R_Q}")
ST(2)
A("L_VNQ:")
A("s_cmp_eq_u32 s16, 10")
A("s_cbranch_scc0 L_VNW")
ldspin("L_WQ", C_Q, 9)
A("L_VNW:")
A("s_cmp_eq_u32 s16, 17")
A("s_cbranch_scc1 L_VEND")
A("s_waitcnt lgkmcnt(0)")
A("s_sub_u32 s67, s68, s66")
if HY: A("s_add_u32 s67, s67, s13")
A(f"s_add_u32 s66, s66, {TBk}")
A("s_cmp_lt_i32 s67, 0")
A("s_cbranch_scc1 L_V1")
if D2:
    A("v_readfirstlane_b32 s23, v35")
    A("s_cmp_ge_u32 s23, 9")
    A("s_cbranch_scc1 L_V3")
    vround(D2)
    A("s_branch L_VT")
    A("L_V3:")
vround(D3)
if HY:
    A(f"s_add_u32 s13, s13, {TBk*HY//100}")
    A(f"s_min_u32 s13, s13, {(D3-D1)*TBk*HY//900}")
A("s_branch L_VT")
A("L_VEND:")
A("v_lshlrev_b32 v12, 10, v2")
A("s_lshl_b32 s16, s4, 7")
A(f"s_add_u32 s20, s{sWS}, s16")
A(f"s_addc_u32 s21, s{sWS+1}, 0")
A(f"s_add_u32 s16, s16, {FL_OFF + 64}")
flagline()
A("s_mov_b32 s17, 1")
ST(3)
A("s_waitcnt vmcnt(36)")
ST(4)
A("s_barrier")
ST(5)
A(f"ds_read_b32 v14, v13 offset:{R_E}")
A(f"s_waitcnt vmcnt({TK})")
A(f"s_atomic_add s17, s[20:21], {YC_OFF} glc")
A("s_waitcnt vmcnt(0)")
ST(6)
A("s_barrier")
A("s_waitcnt lgkmcnt(0)")
A("v_readfirstlane_b32 s7, v14")
A("s_cmp_lg_u32 s17, 31")
A("s_cbranch_scc1 L_NOTLAST")
A("s_mov_b32 exec_hi, 0")
A(f"buffer_store_dword v14, v12, s[{sWS}:{sWS+3}], s16 offen sc1")
A("L_NOTLAST:")
ST(7)
A(f"s_mov_b32 s22, {SPIN}")
if PP: A("s_not_b32 s23, s7")
A("L_YFL:")
A("s_load_dword s23, s[18:19], 64 glc")
if PP: A(f"s_sleep {PP}")
else: A("s_waitcnt lgkmcnt(0)")
A("s_cmp_eq_u32 s23, s7")
A("s_cbranch_scc1 L_YFLD")
A("s_sub_u32 s22, s22, 1")
A("s_cbranch_scc0 L_YFL")
A("L_YFLD:")
A("s_barrier")
if STAMPS:
    A("; STAMPDUMP 0 8")
A("L_END:")
A("s_endpgm")

def lanes():
    A(f"v_mov_b32 v5, {0xffffffff ^ TM:#x}")
    A("v_lshrrev_b32 v3, 4, v2")
    A("v_and_b32 v4, 15, v2")
    A("v_bfe_u32 v6, v2, 2, 2")
    A("v_and_b32 v7, 3, v2")
    masks()
    logid()
A("L_SYNC:")
A("s_setprio 3")
A("v_mov_b32 v17, 1")
lanes()
flagline()
A("v_lshrrev_b32 v14, 2, v2")
A("v_mul_u32_u24 v15, 576, v7")
A("v_add_lshl_u32 v15, v15, v14, 4")
A("s_mul_i32 s17, s4, 72*16")
A(f"s_add_u32 s17, s17, {XP_OFF}")
A("v_lshl_add_u32 v16, v6, 2, v7")
A("v_mul_u32_u24 v16, 48, v16")
A("v_lshl_add_u32 v16, v3, 1, v16")
A("s_lshl_b32 s68, s5, 7")
A(f"s_add_u32 s68, s68, {AG_OFF}")
A(f"s_add_u32 s68, s{sWS}, s68")
A(f"s_addc_u32 s69, s{sWS+1}, 0")
A("s_getreg_b32 s66, hwreg(HW_REG_XCC_ID, 0, 4)")
A("s_mov_b64 exec, 1")
A(f"s_waitcnt vmcnt({2+NPT})")
A(f"ds_add_u32 v13, v17 offset:{C_U}")
A("s_mov_b64 exec, -1")
A("s_waitcnt lgkmcnt(0)")
make_tags()
A("v_mov_b32 v18, s7")
A(f"ds_write_b32 v13, v18 offset:{R_E}")
A("s_lshl_b32 s67, s7, 4")
A("s_or_b32 s66, s66, s67")
A("s_lshl_b32 s67, s4, 2")
A("s_atomic_swap s66, s[68:69], s67")
A("v_mov_b32 v18, 2")
A(f"s_waitcnt vmcnt({NPT})")
A(f"ds_write_b32 v13, v18 offset:{R_U}")
ST(1)
def spoll(nm, off):
    A(f"s_mov_b32 s22, {SPIN}")
    A(f"L_SP{nm}:")
    A(f"s_load_dwordx8 s[8:15], s[18:19], {off} glc")
    A("s_waitcnt lgkmcnt(0)")
    for i in range(8): A(f"s_xor_b32 s{8+i}, s{8+i}, s7")
    A("s_or_b64 s[8:9], s[8:9], s[10:11]")
    A("s_or_b64 s[12:13], s[12:13], s[14:15]")
    A("s_or_b64 s[8:9], s[8:9], s[12:13]")
    A(f"s_cbranch_scc0 L_SP{nm}D")
    A("s_sub_u32 s22, s22, 1")
    A(f"s_cbranch_scc0 L_SP{nm}")
    A(f"L_SP{nm}D:")
spoll("X", 0)
ST(2)
G = 20
A(f"s_mov_b32 s22, {SPIN}")
A("L_XPOLL:")
for u in range(5):
    if u == 4: A("s_mov_b32 exec_hi, 0")
    A(f"buffer_load_dwordx4 v[{G+4*u}:{G+4*u+3}], v15, s[{sWS}:{sWS+3}], s17 offen offset:{256*u} sc1")
A(f"s_mov_b32 s23, {SPIN}")
A("L_AGP:")
A("s_load_dwordx8 s[8:15], s[68:69], 0 glc")
A("s_waitcnt lgkmcnt(0)")
for i in range(8): A(f"s_xor_b32 s{8+i}, s{8+i}, s66")
A("s_or_b64 s[8:9], s[8:9], s[10:11]")
A("s_or_b64 s[12:13], s[12:13], s[14:15]")
A("s_or_b64 s[8:9], s[8:9], s[12:13]")
A("s_or_b32 s8, s8, s9")
A("s_cmp_lt_u32 s8, 16")
A("s_cbranch_scc1 L_AGD")
A("s_sub_u32 s23, s23, 1")
A("s_cbranch_scc0 L_AGP")
A("L_AGD:")
A("s_cmp_eq_u32 s8, 0")
A("s_cselect_b32 s67, 2, 1")
A("s_mov_b32 exec_hi, -1")
A("v_mov_b32 v44, 0")
A("v_mov_b32 v19, s67")
A("s_mov_b32 exec_hi, 0")
A("s_waitcnt vmcnt(0)")
check(G+16, 44)
A("s_mov_b32 exec_hi, -1")
for u in range(4): check(G+4*u, 40+u)
A("v_or3_b32 v40, v40, v41, v42")
A("v_or3_b32 v40, v40, v43, v44")
A(f"v_and_b32 v40, {TM:#x}, v40")
A("v_cmp_ne_u32 vcc, 0, v40")
A("s_cmp_eq_u64 vcc, 0")
A("s_cbranch_scc1 L_XDONE")
A("s_sub_u32 s22, s22, 1")
A("s_cbranch_scc0 L_XPOLL")
A("L_XDONE:")
ST(3)
for qp in ("[1,0,3,2]", "[2,3,0,1]"):
    for i in range(20):
        A(f"v_add_f32_dpp v{G+i}, v{G+i}, v{G+i} quad_perm:{qp} row_mask:0xf bank_mask:0xf")
for u in range(5): sel4(G+4*u)
A(f"v_cvt_pk_bf16_f32 v{G}, v{G}, v{G+4}")
A(f"v_cvt_pk_bf16_f32 v{G+8}, v{G+8}, v{G+12}")
A(f"v_cvt_pk_bf16_f32 v{G+16}, v{G+16}, v{G+16}")
A(f"ds_write_b16 v16, v{G} offset:{XR}")
A(f"ds_write_b16_d16_hi v16, v{G} offset:{XR+8}")
A(f"ds_write_b16 v16, v{G+8} offset:{XR+16}")
A(f"ds_write_b16_d16_hi v16, v{G+8} offset:{XR+24}")
A("s_mov_b32 exec_hi, 0")
A(f"ds_write_b16 v16, v{G+16} offset:{XR+32}")
A(f"ds_write_b32 v13, v19 offset:{R_X}")
ST(4)
A("s_cmp_eq_u32 s67, 1")
A("s_cbranch_scc1 L_GLOBH")
ldspin("L_PHL", PROG, PH)
A("s_branch L_SEND")
A("L_GLOBH:")
spoll("H", 32)
A("L_SEND:")
A(f"ds_write_b32 v13, v17 offset:{R_H}")
ST(5)
if STAMPS:
    A("s_waitcnt vmcnt(0) lgkmcnt(0)")
    A("; STAMPDUMP 0 6")
A("s_endpgm")

A("L_COMP:")
setsrd(sWS, WS_BYTES); setsrd(sV, 4608*9216); setsrd(sOUT, 4*9216)
lanes()
vaddr()
A("s_sub_u32 s6, s6, 2")
A("v_and_b32 v89, 1, v3")
A("v_lshl_add_u32 v89, v89, 2, v6")
A("v_lshlrev_b32 v88, 7, v89")
A("v_lshl_add_u32 v88, v7, 3, v88")
A("v_lshrrev_b32 v89, 1, v89")
A("v_lshrrev_b32 v90, 1, v3")
A("v_mov_b32 v60, 1")
A("v_lshlrev_b32 v55, 4, v2")
SZ = 64
ST(1)
A("s_cmp_ge_u32 s2, 36")
A("s_cbranch_scc1 L_NOX")
A("s_cmp_lt_u32 s6, 4")
A("s_cbranch_scc1 L_XJOB")
A("s_mov_b64 exec, 1")
A("s_waitcnt vmcnt(0)")
A(f"ds_add_u32 v13, v60 offset:{C_U}")
A("s_mov_b64 exec, -1")
A("s_branch L_NOX")
A("L_XJOB:")
A("s_setprio 2")
XA = 16
XB = 100
A("v_mul_u32_u24 v15, 288, v7")
A("v_lshl_add_u32 v15, v3, 3, v15")
A(f"v_add_u32 v15, {XL}, v15")
A(f"v_mov_b32 v{XA+18}, 0"); A(f"v_mov_b32 v{XA+19}, 0")
A("v_xor_b32 v56, s6, v89")
A("v_lshl_add_u32 v56, v56, 5, v88")
A("v_lshl_add_u32 v56, v90, 10, v56")
A(f"v_add_u32 v56, {UL}, v56")
A(f"v_mov_b32 v{XB+18}, 0"); A(f"v_mov_b32 v{XB+19}, 0")
A("s_mul_i32 s17, s10, 576*16")
A("s_lshl_b32 s18, s11, 10")
A("s_add_u32 s17, s17, s18")
A("s_lshl_b32 s18, s6, 8")
A("s_add_u32 s17, s17, s18")
A(f"s_add_u32 s17, s17, {XP_OFF}")
A("v_and_b32 v57, 31, v2")
A("v_lshlrev_b32 v57, 10, v57")
A("v_lshrrev_b32 v58, 5, v2")
A("v_mul_u32_u24 v58, 124, v58")
A("v_sub_u32 v57, v57, v58")
A("v_add_u32 v57, 128, v57")
A("s_lshl_b32 s18, s11, 7")
A("s_lshl_b32 s19, s10, 3")
A("s_add_u32 s18, s18, s19")
A(f"s_add_u32 s18, s18, {FL_OFF - 128}")
A("s_cmp_eq_u32 s11, 8")
A("s_cselect_b32 s8, 0, -1")
A("s_cmp_eq_u32 s11, 0")
A("s_cselect_b32 s9, 0, -1")
A("s_waitcnt lgkmcnt(0)")
make_tags()
A("v_mov_b32 v58, s7")
A("s_mov_b64 exec, 1")
A("s_waitcnt vmcnt(0)")
A(f"ds_add_u32 v13, v60 offset:{C_U}")
A("s_mov_b64 exec, -1")
ldspin("L_RU", C_U, 10)
for t in range(5):
    if t < 4: A(f"ds_read2_b64 v[{XA+4*t}:{XA+4*t+3}], v15 offset0:{8*t} offset1:{8*t+4}")
    else: A(f"ds_read_b64 v[{XA+4*t}:{XA+4*t+1}], v15 offset:{64*t}")
    A(f"ds_read_b64_tr_b16 v[{XB+4*t}:{XB+4*t+1}], v56 offset:{4*t*1024}")
    if t < 4: A(f"ds_read_b64_tr_b16 v[{XB+4*t+2}:{XB+4*t+3}], v56 offset:{(4*t+2)*1024}")
for t in range(5):
    A(f"s_waitcnt lgkmcnt({max(0, 11-3*t)})")
    c = "0" if t == 0 else "v[40:43]"
    A(f"v_mfma_f32_16x16x32_bf16 v[40:43], v[{XA+4*t}:{XA+4*t+3}], v[{XB+4*t}:{XB+4*t+3}], {c}")
A("s_mov_b64 exec, 0xffff")
A("s_nop 6")
tag(40)
A(f"buffer_store_dwordx4 v[40:43], v55, s[{sWS}:{sWS+3}], s17 offen sc1")
A("s_mov_b64 exec, 1")
A(f"ds_add_rtn_u32 v14, v13, v60 offset:{C_XW}")
A("s_waitcnt lgkmcnt(0)")
A("v_readfirstlane_b32 s23, v14")
A("s_cmp_lg_u32 s23, 3")
A("s_cbranch_scc1 L_XNF")
A("s_mov_b64 exec, s[8:9]")
A(f"buffer_store_dword v58, v57, s[{sWS}:{sWS+3}], s18 offen sc1")
A("L_XNF:")
A("s_mov_b64 exec, -1")
A("s_setprio 0")
A("s_branch L_XEND")
A("L_NOX:")
A("s_waitcnt lgkmcnt(0)")
make_tags()
A("L_XEND:")
ST(2)
A("v_mul_u32_u24 v15, 576, v3")
A("v_lshl_add_u32 v15, v4, 2, v15")
A("s_lshl_b32 s12, s6, 6")
A(f"s_add_u32 s12, s12, {QL}")
A("v_add_u32 v15, s12, v15")
A("v_lshl_add_u32 v56, v3, 2, v7")
A("v_mul_u32_u24 v56, 48, v56")
A("s_and_b32 s12, s4, 3")
for k in (1, 2, 3):
    A(f"s_cmp_ge_u32 s12, {k}")
    A(f"s_cselect_b64 s[{12+2*k}:{13+2*k}], -1, 0")
A("v_lshlrev_b32 v57, 1, v4")
A("s_lshl_b32 s12, s6, 5")
A("v_add_u32 v57, s12, v57")
ldspin("L_RU2", R_U, 2)
for g in range(3):
    A(f"ds_read_u16 v{SZ+g}, v57 offset:{SCL + 288*g}")
    A(f"ds_read_u16 v{SZ+3+g}, v57 offset:{ZL + 288*g}")
A("s_waitcnt lgkmcnt(0)")
for g in range(6): A(f"v_lshlrev_b32 v{SZ+g}, 16, v{SZ+g}")
SP, ZP = 70, 79
def pairsz(p):
    base = p >> 2
    r = p & 3
    if r == 0: return SZ+base, SZ+3+base
    return SP+p, ZP+p
for p in range(9):
    base, r = p >> 2, p & 3
    if r:
        k = 4 - r
        A(f"v_cndmask_b32 v{SP+p}, v{SZ+base}, v{SZ+base+1}, s[{12+2*k}:{13+2*k}]")
        A(f"v_cndmask_b32 v{ZP+p}, v{SZ+3+base}, v{SZ+3+base+1}, s[{12+2*k}:{13+2*k}]")
QW = 16
B = 36
AX = 100
for r in (B+9, B+10, B+11, AX+9, AX+10, AX+11): A(f"v_mov_b32 v{r}, 0")
A("s_mul_i32 s18, s3, 2304")
A("s_lshl_b32 s19, s6, 8")
A("s_add_u32 s18, s18, s19")
A(f"s_add_u32 s18, s18, {HP_OFF}")
A("s_mul_i32 s17, s5, 8*2304")
A("s_add_u32 s17, s17, s19")
A(f"s_add_u32 s17, s17, {HP_OFF}")
A("v_lshlrev_b32 v61, 7, v2")
A("v_mov_b32 v62, s7")
A("s_lshl_b32 s16, s5, 10")
A("s_lshl_b32 s19, s4, 2")
A("s_add_u32 s16, s16, s19")
A(f"s_add_u32 s16, s16, {FL_OFF + 32}")
ldspin("L_RQ", R_Q, 1)
ST(3)
for p in range(9):
    A(f"ds_read2st64_b32 v[{QW+2*p}:{QW+2*p+1}], v15 offset0:{18*p} offset1:{18*p+9}")
for p in range(9):
    A(f"s_waitcnt lgkmcnt({8-p})")
    if p == 8:
        A("s_mov_b64 exec, 1")
        A(f"ds_add_u32 v13, v60 offset:{C_Q}")
        A("s_mov_b64 exec, -1")
    r0, r1 = QW+2*p, QW+2*p+1
    sr, zr = pairsz(p)
    A(f"v_cvt_f32_i32 v{r0}, v{r0}")
    A(f"v_cvt_f32_i32 v{r1}, v{r1}")
    A(f"v_sub_f32 v{r0}, v{r0}, v{zr}")
    A(f"v_sub_f32 v{r1}, v{r1}, v{zr}")
    A(f"v_cvt_pk_bf16_f32 v{r1}, v{r0}, v{r1}")
    A(f"v_lshlrev_b32 v{r0}, 16, v{r1}")
    A(f"v_and_b32 v{r1}, 0xffff0000, v{r1}")
    A(f"v_mul_f32 v{r0}, v{r0}, v{sr}")
    A(f"v_mul_f32 v{r1}, v{r1}, v{sr}")
    A(f"v_cvt_pk_bf16_f32 v{B+p}, v{r0}, v{r1}")
ldspin("L_RX", R_X, 1)
A(f"ds_read_b128 v[{AX}:{AX+3}], v56 offset:{XR}")
A(f"ds_read_b128 v[{AX+4}:{AX+7}], v56 offset:{XR+16}")
A(f"ds_read_b32 v{AX+8}, v56 offset:{XR+32}")
for t in range(3):
    A(f"s_waitcnt lgkmcnt({2-t})")
    c = "0" if t == 0 else "v[48:51]"
    A(f"v_mfma_f32_16x16x32_bf16 v[48:51], v[{AX+4*t}:{AX+4*t+3}], v[{B+4*t}:{B+4*t+3}], {c}")
A("s_mov_b64 exec, 0xffff")
A("s_cmp_eq_u32 s23, 2")
A("s_nop 5")
tag(48)
A("s_cbranch_scc0 L_HGL")
A(f"buffer_store_dwordx4 v[48:51], v55, s[{sWS}:{sWS+3}], s18 offen")
A("s_branch L_HNF")
A("L_HGL:")
A(f"buffer_store_dwordx4 v[48:51], v55, s[{sWS}:{sWS+3}], s18 offen sc1")
A("s_mov_b64 exec, 1")
A(f"ds_add_rtn_u32 v14, v13, v60 offset:{C_H}")
A("s_waitcnt lgkmcnt(0)")
A("v_readfirstlane_b32 s23, v14")
A("s_cmp_lg_u32 s23, 8")
A("s_cbranch_scc1 L_HNF")
A("s_mov_b64 exec, 0xff")
A(f"buffer_store_dword v62, v61, s[{sWS}:{sWS+3}], s16 offen sc1")
A("L_HNF:")
A("s_mov_b64 exec, -1")
REM = 112
A("s_lshl_b32 s21, s6, 7")
A("s_add_u32 s20, s20, s21")
A(f"s_add_u32 s20, s20, {136*9216}")
A(f"buffer_load_dwordx4 v[{REM}:{REM+3}], v11, s[{sV}:{sV+3}], s20 offen nt")
ST(4)
A("v_mul_u32_u24 v96, 2304, v10")
A("v_lshl_add_u32 v96, v8, 4, v96")
A("v_lshrrev_b32 v58, 2, v8")
A("v_lshlrev_b32 v58, 6, v58")
A("v_lshl_add_u32 v58, v7, 4, v58")
A("v_and_b32 v59, 3, v8")
A("v_lshl_add_u32 v58, v59, 1, v58")
A("s_lshr_b32 s18, s6, 1")
A("s_lshl_b32 s18, s18, 8")
A("s_and_b32 s19, s6, 1")
A("s_lshl_b32 s19, s19, 3")
A("s_add_u32 s18, s18, s19")
A("v_add_u32 v97, s18, v58")
A("v_mov_b32 v9, v55")
A("v_mov_b32 v15, v60")
AV = 16
def areg(t, i=0): return AV + 4*t
A("v_mul_u32_u24 v98, 9216, v90")
A("v_add_u32 v98, v98, v88")
A("s_lshl_b32 s18, s6, 10")
A(f"s_add_u32 s18, s18, {VL}")
A("v_add_u32 v98, s18, v98")
TRA, TRB = 100, 104
for i in range(4):
    A(f"v_xor_b32 v99, {i}, v89")
    A(f"v_lshl_add_u32 v{TRA+i}, v99, 5, v98")
    A(f"v_add_u32 v{TRB+i}, 73728, v{TRA+i}")
A("v_add_u32 v99, s18, v9")
A("v_lshlrev_b32 v98, 6, v3")
A("v_lshl_add_u32 v98, v7, 4, v98")
A("v_mov_b32 v34, 0"); A("v_mov_b32 v35, 0")
A(f"v_mov_b32 v117, {1 << (TB-1):#x}")
A("s_lshl_b32 s16, s4, 5")
A("s_add_u32 s14, s16, s5")
A("s_mul_i32 s14, s14, 9216")
A("s_lshl_b32 s19, s6, 10")
A("s_add_u32 s14, s14, s19")
A(f"s_add_u32 s14, s14, {YP_OFF}")
A("v_subrev_u32 v8, 128, v0")
A("v_mul_u32_u24 v10, 3641, v8")
A("v_lshrrev_b32 v10, 16, v10")
A("v_mul_u32_u24 v10, 8928, v10")
A("v_lshlrev_b32 v11, 4, v8")
A("v_add_u32 v10, v10, v11")
A("s_mul_i32 s16, s16, 9216")
A("s_mul_i32 s19, s5, 288")
A("s_add_u32 s16, s16, s19")
A(f"s_add_u32 s16, s16, {YP_OFF}")
A("v_and_b32 v1, 7, v8")
A("v_mul_u32_u24 v1, 288, v1")
A("v_lshrrev_b32 v8, 3, v8")
A("v_lshl_add_u32 v1, v8, 2, v1")
A(f"v_add_u32 v1, {VL}, v1")
A("v_and_b32 v12, 3, v8")
A("v_mul_u32_u24 v12, 9216, v12")
A("v_lshrrev_b32 v8, 2, v8")
A("v_lshl_add_u32 v12, v8, 1, v12")
A("s_mul_i32 s15, s4, 1152")
A("s_mul_i32 s19, s5, 36")
A("s_add_u32 s15, s15, s19")
BT = 48
ldspin("L_RH", R_H, 1)
H0, H1 = 48, 52
A(f"s_mov_b32 s22, {SPIN}")
A("L_HPOLL:")
A(f"buffer_load_dwordx4 v[{H0}:{H0+3}], v96, s[{sWS}:{sWS+3}], s17 offen sc1")
A(f"buffer_load_dwordx4 v[{H1}:{H1+3}], v96, s[{sWS}:{sWS+3}], s17 offen offset:128 sc1")
A("s_waitcnt vmcnt(0)")
check(H0, 56)
check(H1, 57)
A("v_or_b32 v56, v56, v57")
A(f"v_and_b32 v56, {TM:#x}, v56")
A("v_cmp_ne_u32 vcc, 0, v56")
A("s_and_b64 exec, vcc, vcc")
A("s_cbranch_scc0 L_HDONE")
A("s_sub_u32 s22, s22, 1")
A("s_cbranch_scc0 L_HPOLL")
A("L_HDONE:")
A("s_mov_b64 exec, -1")
ST(5)
for dp in ("quad_perm:[1,0,3,2]", "quad_perm:[2,3,0,1]", "row_half_mirror"):
    for i in range(8):
        A(f"v_add_f32_dpp v{H0+i}, v{H0+i}, v{H0+i} {dp} row_mask:0xf bank_mask:0xf")
sel4(H0); sel4(H1)
A(f"v_cvt_pk_bf16_f32 v{H0}, v{H0}, v{H1}")
A(f"ds_write_b16 v97, v{H0} offset:{HA}")
A(f"ds_write_b16_d16_hi v97, v{H0} offset:{HA+128}")
A("s_mov_b64 exec, 1")
A(f"ds_add_u32 v13, v15 offset:{C_A}")
A("s_mov_b64 exec, -1")
ldspin("L_CA", C_A, 9)
for t in range(4):
    a = areg(t)
    A(f"ds_read_b128 v[{a}:{a+3}], v98 offset:{HA + 256*t}")
A(f"ds_read_b64 v[32:33], v98 offset:{HA + 1024}")
Y = 108
YD = [36, 40, 44, 120]
def trreads(t, base):
    tr = TRA if t < 2 else TRB
    o = (1 + 4*(t % 2))*9216
    for i in range(4):
        A(f"ds_read_b64_tr_b16 v[{base+4*i}:{base+4*i+1}], v{tr+i} offset:{o}")
        A(f"ds_read_b64_tr_b16 v[{base+4*i+2}:{base+4*i+3}], v{tr+i} offset:{o + 2*9216}")
def mf(t, i, base, first=False):
    a = areg(t); d = YD[i]
    c = "0" if first else f"v[{d}:{d+3}]"
    A(f"v_mfma_f32_16x16x32_bf16 v[{d}:{d+3}], v[{a}:{a+3}], v[{base+4*i}:{base+4*i+3}], {c}")
def mfmas(t, base, first=False):
    for i in range(4): mf(t, i, base, first)
def kstep(t, base):
    trreads(t, base)
    for i in range(4):
        A(f"s_waitcnt lgkmcnt({6-2*i})")
        mf(t, i, base)
LG = (max(D1, D3) + 8)//9
ST(6)
ldspin("L_EB", PROG, 9 + LG)
trreads(0, BT)
A(f"ds_write_b128 v99, v[{REM}:{REM+3}] offset:9216")
trreads(1, BT+16)
for i in range(4):
    A(f"v_mov_b32 v{BT+32+4*i+2}, 0"); A(f"v_mov_b32 v{BT+32+4*i+3}, 0")
A("s_waitcnt lgkmcnt(9)")
mfmas(0, BT, True)
for i in range(4):
    A(f"ds_read_b64_tr_b16 v[{BT+32+4*i}:{BT+32+4*i+1}], v{TRA+i}")
A("s_waitcnt lgkmcnt(4)")
mfmas(1, BT+16)
A("s_waitcnt lgkmcnt(0)")
mfmas(4, BT+32)
A(f"s_mov_b32 s22, {SPIN}")
A("s_barrier")
ST(7)
kstep(2, BT)
ST(8)
A("s_barrier")
ST(9)
kstep(3, BT+16)
A("s_nop 1")
for g in range(4):
    for r in range(4):
        A(f"v_add_u32_dpp v{Y+r}, v{YD[g]+r}, v117 quad_perm:[0,1,2,3] row_mask:{1 << g:#x} bank_mask:0xf")
for i in range(4): A(f"v_and_or_b32 v{Y+i}, v{Y+i}, v5, s{60+i}")
A(f"buffer_store_dwordx4 v[{Y}:{Y+3}], v9, s[{sWS}:{sWS+3}], s14 offen sc1")
ST(10)
A("s_barrier")
YG = 112
A("s_branch L_YP0")
A("L_YPOLL:")
A("s_sleep 2")
A("L_YP0:")
A(f"buffer_load_dwordx4 v[{YG}:{YG+3}], v10, s[{sWS}:{sWS+3}], s16 offen sc1")
A("s_waitcnt vmcnt(0)")
check(YG, 116)
A(f"v_and_b32 v116, {TM:#x}, v116")
A("v_cmp_ne_u32 vcc, 0, v116")
A("s_and_b64 exec, vcc, vcc")
A("s_cbranch_scc0 L_YDONE")
A("s_sub_u32 s22, s22, 1")
A("s_cbranch_scc0 L_YPOLL")
A("L_YDONE:")
A("s_mov_b64 exec, -1")
ST(11)
A(f"ds_write_b128 v11, v[{YG}:{YG+3}] offset:{VL}")
A("s_waitcnt lgkmcnt(0)")
A("s_barrier")
A(f"ds_read2st64_b32 v[{YG}:{YG+1}], v1 offset0:0 offset1:9")
A(f"ds_read2st64_b32 v[{YG+2}:{YG+3}], v1 offset0:18 offset1:27")
A("s_waitcnt lgkmcnt(0)")
A(f"v_add_f32 v{YG}, v{YG}, v{YG+1}")
A(f"v_add_f32 v{YG+2}, v{YG+2}, v{YG+3}")
A(f"v_add_f32 v{YG}, v{YG}, v{YG+2}")
for dp in ("quad_perm:[1,0,3,2]", "quad_perm:[2,3,0,1]", "row_half_mirror"):
    A("s_nop 1")
    A(f"v_add_f32_dpp v{YG}, v{YG}, v{YG} {dp} row_mask:0xf bank_mask:0xf")
A(f"v_cvt_pk_bf16_f32 v{YG}, v{YG}, v{YG}")
A("s_mov_b32 exec_lo, 0x01010101")
A("s_mov_b32 exec_hi, 0x01010101")
A(f"buffer_store_short v{YG}, v12, s[{sOUT}:{sOUT+3}], s15 offen")
A("s_or_b32 s19, s2, s6")
A("s_cbranch_scc1 L_CEND")
A("s_mov_b64 exec, 1")
A("v_mov_b32 v14, s7")
A(f"buffer_store_dword v14, v13, s[{sWS}:{sWS+3}], 0 offen offset:{EP_OFF}")
A("L_CEND:")
if STAMPS:
    A("s_waitcnt vmcnt(0)")
    A("; STAMPDUMP 0 12")
A("s_endpgm")
A("L_CODE_END:")

VG = 124
A('.section .rodata,"a"')
A(".p2align 6")
A(f""".amdhsa_kernel {KN}
  .amdhsa_next_free_vgpr {VG}
  .amdhsa_next_free_sgpr 70
  .amdhsa_accum_offset {(VG+3)//4*4}
  .amdhsa_group_segment_fixed_size 0
  .amdhsa_kernarg_size 72
  .amdhsa_user_sgpr_count 2
  .amdhsa_user_sgpr_kernarg_segment_ptr 1
  .amdhsa_system_sgpr_workgroup_id_x 1
  .amdhsa_float_denorm_mode_32 3
.end_amdhsa_kernel""")
dst = sys.argv[1]
if STAMPS:
    open(dst + ".pre", "w").write("\n".join(out) + "\n")
    import subprocess
    subprocess.check_call([sys.executable, "stamp.py", dst + ".pre", dst])
else:
    open(dst, "w").write("\n".join(out) + "\n")
```

```python
import sys, os
NAME = "standalone__weight_only_int_quip__decode"
KN = NAME + "_kernel"
E = lambda k, d: int(os.environ.get(k, str(d)))
D1 = E("D1", 18); D3 = E("D3", 45); TK = E("TK", 8); PH = E("PH", 8)
D2 = E("D2", 0)
HY = E("HY", 0)
PP = E("PP", 0)
PT = os.environ.get("PT", "")
DG = os.environ.get("DG", ""); DK = E("DK", 10)
DG_OFF = 57344
TA = E("TA", 205); TBk = E("TBK", 32)
TB = E("TB", 10)
STAMPS = bool(os.environ.get("STAMPS"))
SPIN = 1 << 16
RND = (D1 + 8)//9
out = []
def A(s): out.append(s)
def ST(k):
    if STAMPS: A(f"; STAMP {k}")
TM = (1 << TB) - 1

XR, HA, CNT, SCL, ZL, XL, VL = 0, 768, 2048, 2304, 3328, 4352, 7168
R_U, R_Q, R_X, R_H, C_A, C_Q, C_XW, C_H, R_E, PROG, C_U = [CNT + 4*i for i in range(11)]
LDS_BYTES = VL + 17*9216
QL = LDS_BYTES - 41472
UL = QL - 18432
assert LDS_BYTES == 163840 and UL >= VL + 10*9216
EP_OFF, YC_OFF, XP_OFF, AG_OFF, FL_OFF, HP_OFF, YP_OFF, WS_BYTES = 0, 1024, 4096, 49152, 65536, 131072, 1 << 20, 4 << 20

A(f"""; Kernarg layout for this problem (72 bytes, ptrs only, base s[0:1]):
; @launch grid=(256,1,1) block=(704,1,1) lds={LDS_BYTES}
.amdgcn_target "amdgcn-amd-amdhsa--gfx950"
.text
.globl {KN}
.p2align 8
.type {KN},@function
{KN}:""")

sQW, sSC, sZ, sV, sWS, sOUT, sU, sX = 24, 28, 32, 36, 40, 44, 48, 52
def kl(r, off): A(f"s_load_dwordx2 s[{r}:{r+1}], s[0:1], {off}")
def setsrd(r, nb):
    A(f"s_mov_b32 s{r+2}, {nb}")
    A(f"s_mov_b32 s{r+3}, 0x00020000")
def load_tags(): A(f"s_load_dword s7, s[{sWS}:{sWS+1}], {EP_OFF}")
def make_tags():
    step = (1 << TB) * 31 // 100
    for i in range(4):
        A(f"s_add_u32 s{60+i}, s7, {1 + i*step}")
        A(f"s_and_b32 s{60+i}, s{60+i}, {TM:#x}")
    A("s_add_u32 s7, s7, 1")
def tag(r):
    for i in range(4): A(f"v_add_u32 v{r+i}, {1 << (TB-1):#x}, v{r+i}")
    for i in range(4): A(f"v_and_or_b32 v{r+i}, v{r+i}, v5, s{60+i}")
def check(r, t):
    for i in range(4): A(f"v_xor_b32 v{r+i}, s{60+i}, v{r+i}")
    A(f"v_or3_b32 v{t}, v{r}, v{r+1}, v{r+2}")
    A(f"v_or_b32 v{t}, v{t}, v{r+3}")
def masks():
    A("s_mov_b32 s56, 0x22222222"); A("s_mov_b32 s57, 0x22222222")
    A("s_mov_b32 s58, 0x44444444"); A("s_mov_b32 s59, 0x44444444")
    A("s_mov_b32 s64, 0x88888888"); A("s_mov_b32 s65, 0x88888888")
def sel4(h):
    A(f"v_cndmask_b32 v{h}, v{h}, v{h+1}, s[56:57]")
    A(f"v_cndmask_b32 v{h}, v{h}, v{h+2}, s[58:59]")
    A(f"v_cndmask_b32 v{h}, v{h}, v{h+3}, s[64:65]")
def ldspin(label, addr, target, tmp=14):
    A(f"s_mov_b32 s22, {SPIN*4}")
    A(f"{label}:")
    A(f"ds_read_b32 v{tmp}, v13 offset:{addr}")
    A("s_waitcnt lgkmcnt(0)")
    A(f"v_readfirstlane_b32 s23, v{tmp}")
    A(f"s_cmp_ge_u32 s23, {target}")
    A(f"s_cbranch_scc1 {label}_D")
    A("s_sleep 1")
    A("s_sub_u32 s22, s22, 1")
    A(f"s_cbranch_scc0 {label}")
    A(f"{label}_D:")
def swz():
    A("v_lshrrev_b32 v8, 3, v2")
    A("v_and_b32 v9, 6, v8")
    A("v_and_b32 v10, 7, v2")
    A("v_xor_b32 v9, v9, v10")
def vaddr():
    A("v_mul_u32_u24 v11, 9216, v8")
    A("v_lshl_add_u32 v11, v9, 4, v11")
    A("s_mul_i32 s20, s5, 144*9216")
    A("s_mul_i32 s21, s4, 1152")
    A("s_add_u32 s20, s20, s21")
def xids():
    A("s_mul_i32 s10, s2, 57")
    A("s_lshr_b32 s10, s10, 9")
    A("s_mul_i32 s11, s10, 9")
    A("s_sub_u32 s11, s2, s11")
def logid():
    A("s_lshl_b32 s3, s5, 3")
    A("s_add_u32 s3, s3, s4")
def flagline():
    A("s_lshl_b32 s18, s3, 7")
    A(f"s_add_u32 s18, s18, {FL_OFF}")
    A(f"s_add_u32 s18, s{sWS}, s18")
    A(f"s_addc_u32 s19, s{sWS+1}, 0")

A("s_cmp_ge_u32 s2, 256")
A("s_cbranch_scc1 L_END")
kl(sQW, 8)
A("s_getpc_b64 s[8:9]")
A("L_PC:")
A("v_lshlrev_b32 v14, 4, v0")
A("v_min_u32 v14, L_CODE_END-L_PC-4, v14")
A("global_load_dword v99, v14, s[8:9]")
kl(sU, 32); kl(sWS, 64)
A("v_readfirstlane_b32 s6, v0")
ST(0)
A("s_bfe_u32 s4, s2, 0x30003")
A("s_and_b32 s5, s2, 7")
A("s_lshl_b32 s5, s5, 2")
A("s_lshr_b32 s3, s2, 6")
A("s_add_u32 s5, s5, s3")
A("v_and_b32 v2, 63, v0")
A("v_mov_b32 v13, 0")
A("s_lshr_b32 s6, s6, 6")
A("s_cbranch_scc1 L_NOTL")
A("s_memrealtime s[66:67]")
setsrd(sQW, 576*4608*4)
A("v_mul_u32_u24 v14, 1821, v2")
A("v_lshlrev_b32 v15, 4, v2")
A("s_movk_i32 s13, 17856")
A("s_mul_i32 s12, s4, 72*18432")
A("s_mul_i32 s14, s5, 576")
A("s_add_u32 s12, s12, s14")
A(f"s_mov_b32 m0, {QL}")
QO = 16
A(f"v_lshrrev_b32 v{QO}, 16, v14")
A(f"v_mad_u32_u24 v{QO}, v{QO}, s13, v15")
A("s_cmp_ge_u32 s2, 36")
A("s_cbranch_scc1 L_QGO")
A("s_barrier")
A("L_QGO:")
A("s_waitcnt lgkmcnt(0)")
kl(sV, 40)
for i in range(9):
    if i:
        A(f"v_add_u32 v14, {64*1821}, v14")
        if i % 4 == 0:
            A("s_add_u32 m0, m0, 4096")
            A("s_add_u32 s12, s12, 4096")
        A(f"v_lshrrev_b32 v{QO+i}, 16, v14")
        A(f"v_mad_u32_u24 v{QO+i}, v{QO+i}, s13, v15")
    A(f"buffer_load_dwordx4 v{QO+i}, s[{sQW}:{sQW+3}], s12 offen offset:{1024*(i%4)} nt lds")
A("s_mov_b32 s16, 1")
A("L_QLOOP:")
for i in range(9):
    if i % 4 == 0:
        A(f"s_add_u32 m0, m0, {4096 if i else 1024}")
        A(f"s_add_u32 s12, s12, {4096 if i else 16*18432 - 8192}")
    if i == 4:
        A("s_cmp_eq_u32 s16, 4")
        A("s_cselect_b32 exec_hi, 0, -1")
    A(f"s_waitcnt vmcnt({D1-1})")
    A(f"buffer_load_dwordx4 v{QO+i}, s[{sQW}:{sQW+3}], s12 offen offset:{1024*(i%4)} nt lds")
    if i == 4: A("s_cbranch_scc1 L_QDONE")
A("s_add_u32 s16, s16, 1")
A("s_cmp_lg_u32 s16, 2")
A("s_cbranch_scc1 L_QLOOP")
A("s_cmp_lt_u32 s2, 36")
A("s_cbranch_scc1 L_QLOOP")
A("s_barrier")
A("s_branch L_QLOOP")

A("L_NOTL:")
A("s_cmp_eq_u32 s6, 1")
A("s_cbranch_scc1 L_AUX")
A("v_lshlrev_b32 v14, 2, v2")
A(f"ds_write_b32 v14, v13 offset:{CNT}")
swz()
A("s_cmp_ge_u32 s2, 36")
A("s_cbranch_scc1 L_NOU")
xids()
setsrd(sU, 576*1152)
A("v_mul_u32_u24 v12, 1152, v8")
A("v_lshl_add_u32 v12, v9, 4, v12")
A("s_mul_i32 s14, s10, 144*1152")
A("s_lshl_b32 s13, s11, 7")
A("s_add_u32 s14, s14, s13")
A("s_mul_i32 s13, s6, 16*1152")
A("s_add_u32 s14, s14, s13")
A(f"s_sub_u32 s14, s14, {32*1152}")
A("s_lshl_b32 s13, s6, 11")
A(f"s_add_u32 m0, s13, {UL - 4096}")
A(f"s_add_u32 s15, s14, {8*1152 - 1024}")
A("s_waitcnt lgkmcnt(0)")
A(f"buffer_load_dwordx4 v12, s[{sU}:{sU+3}], s14 offen nt lds")
A(f"buffer_load_dwordx4 v12, s[{sU}:{sU+3}], s15 offen offset:1024 nt lds")
A("L_NOU:")
A("s_waitcnt lgkmcnt(0)")
kl(sV, 40); kl(sOUT, 48)
load_tags()
A("s_barrier")
A("s_branch L_COMP")
A("L_AUX:")
kl(sX, 0); kl(sSC, 16); kl(sZ, 24)
if PT: kl(sV, 40); kl(sOUT, 48)
A("v_mul_u32_u24 v27, 3641, v2")
A("v_lshrrev_b32 v27, 16, v27")
A("v_lshlrev_b32 v29, 4, v2")
A("v_lshlrev_b32 v14, 7, v2")
A("s_cmp_ge_u32 s2, 36")
A("s_cbranch_scc1 L_NOXL")
setsrd(sX, 4*1152)
A("s_mul_i32 s10, s2, 57")
A("s_lshr_b32 s10, s10, 9")
A("v_mul_u32_u24 v28, 864, v27")
A("v_add_u32 v28, v28, v29")
A("s_mul_i32 s17, s10, 288")
A(f"s_mov_b32 m0, {XL}")
A("s_add_u32 s18, s17, 3*864")
A("s_waitcnt lgkmcnt(0)")
A(f"buffer_load_dwordx4 v28, s[{sX}:{sX+3}], s17 offen lds")
A("s_mov_b64 exec, 0xff")
A(f"buffer_load_dwordx4 v29, s[{sX}:{sX+3}], s18 offen offset:1024 lds")
A("s_cmp_lg_u32 s2, 0")
A("s_cbranch_scc1 L_NOZ")
A(f"global_store_dword v14, v13, s[{sWS}:{sWS+1}] offset:{YC_OFF} sc1")
A("L_NOZ:")
A("s_mov_b64 exec, -1")
A("L_NOXL:")
A("s_barrier")
setsrd(sSC, 18*9216); setsrd(sZ, 18*9216); setsrd(sWS, WS_BYTES)
A("v_mul_u32_u24 v27, 8928, v27")
A("v_add_u32 v27, v27, v29")
A("s_mul_i32 s16, s4, 9")
A("s_lshr_b32 s16, s16, 2")
A("s_mul_i32 s16, s16, 9216")
A("s_mul_i32 s17, s5, 288")
A("s_add_u32 s16, s16, s17")
A(f"s_mov_b32 m0, {SCL}")
A("s_mov_b32 exec_hi, 0x3fffff")
A("s_waitcnt lgkmcnt(0)")
load_tags()
A(f"buffer_load_dwordx4 v27, s[{sSC}:{sSC+3}], s16 offen lds")
A(f"s_mov_b32 m0, {ZL}")
A("s_nop 0")
A(f"buffer_load_dwordx4 v27, s[{sZ}:{sZ+3}], s16 offen lds")
NPT = 0
if PT:
    A("s_mov_b64 exec, 3")
    if "v" in PT:
        A("s_mul_i32 s20, s5, 144*9216")
        A(f"v_mul_u32_u24 v30, {144*9216-4}, v2")
        A("v_add_u32 v30, s20, v30")
        A(f"global_load_dword v31, v30, s[{sV}:{sV+1}]"); NPT += 1
    if "w" in PT:
        A(f"v_mul_u32_u24 v30, {(4<<20)-1024}, v2")
        A(f"global_load_dword v32, v30, s[{sWS}:{sWS+1}] offset:512"); NPT += 1
    if "o" in PT:
        A(f"global_load_dword v33, v13, s[{sOUT}:{sOUT+1}]"); NPT += 1
    if "q" in PT:
        A("s_mul_i32 s20, s4, 72*18432")
        A(f"s_add_u32 s20, s20, {72*18432-4}")
        A("v_mov_b32 v30, s20")
        A(f"global_load_dword v34, v30, s[{sQW}:{sQW+1}]"); NPT += 1
A("s_mov_b64 exec, -1")
A("s_branch L_SYNC")

A("L_QDONE:")
A("s_mov_b32 exec_hi, -1")
ST(1)
setsrd(sV, 4608*9216); setsrd(sWS, WS_BYTES)
swz(); vaddr(); logid()
A("v_mov_b32 v26, 1")
A(f"s_add_u32 s12, s20, {128*9216}")
A(f"s_mov_b32 s15, {VL}")
A("s_mov_b32 s16, 0")
A("s_waitcnt lgkmcnt(0)")
if DG:
    A("s_lshl_b32 s13, s2, 2")
    A("v_mov_b32 v40, s13")
    A("v_mov_b32 v41, s66")
    A("s_mov_b32 s62, s66")
    A("s_mov_b64 exec, 1")
    A(f"buffer_store_dword v41, v40, s[{sWS}:{sWS+3}], 0 offen offset:2048 sc1")
    A("s_mov_b64 exec, -1")
A(f"s_add_u32 s66, s66, {TA}")
def vround(depth):
    for cg in range(9):
        A(f"s_add_u32 m0, s15, {cg*1024 - cg*128}")
        A(f"s_waitcnt vmcnt({depth-1})")
        A(f"buffer_load_dwordx4 v11, s[{sV}:{sV+3}], s12 offen offset:{cg*128} nt lds")
A("L_V1:")
vround(D1)
if HY: A("s_mov_b32 s13, 0")
A("L_VT:")
A(f"s_add_u32 s12, s12, {8*9216}")
A("s_cmp_eq_u32 s16, 0")
A("s_cselect_b32 s12, s20, s12")
A("s_add_u32 s15, s15, 9216")
A("s_memrealtime s[68:69]")
if D2: A(f"ds_read_b32 v35, v13 offset:{C_A}")
A("s_add_u32 s16, s16, 1")
A("v_mov_b32 v34, s16")
A(f"ds_write_b32 v13, v34 offset:{PROG}")
A(f"s_cmp_eq_u32 s16, {RND}")
A("s_cbranch_scc0 L_VNQ")
A(f"s_waitcnt vmcnt({9*RND})")
A(f"ds_write_b32 v13, v26 offset:{R_Q}")
if DG:
    A("s_memrealtime s[64:65]")
    A("s_waitcnt lgkmcnt(0)")
    A("v_mov_b32 v41, s64")
    A(f"ds_write_b32 v13, v41 offset:{CNT + 64 + 4*0}")
ST(2)
A("L_VNQ:")
A("s_cmp_eq_u32 s16, 10")
A("s_cbranch_scc0 L_VNW")
ldspin("L_WQ", C_Q, 9)
A("L_VNW:")
A("s_cmp_eq_u32 s16, 17")
A("s_cbranch_scc1 L_VEND")
A("s_waitcnt lgkmcnt(0)")
A("s_sub_u32 s67, s68, s66")
if HY: A("s_add_u32 s67, s67, s13")
A(f"s_add_u32 s66, s66, {TBk}")
A("s_cmp_lt_i32 s67, 0")
A("s_cbranch_scc1 L_V1")
if D2:
    A("v_readfirstlane_b32 s23, v35")
    A("s_cmp_ge_u32 s23, 9")
    A("s_cbranch_scc1 L_V3")
    vround(D2)
    A("s_branch L_VT")
    A("L_V3:")
vround(D3)
if HY:
    A(f"s_add_u32 s13, s13, {TBk*HY//100}")
    A(f"s_min_u32 s13, s13, {(D3-D1)*TBk*HY//900}")
A("s_branch L_VT")
A("L_VEND:")
A("v_lshlrev_b32 v12, 10, v2")
A("s_lshl_b32 s16, s4, 7")
A(f"s_add_u32 s20, s{sWS}, s16")
A(f"s_addc_u32 s21, s{sWS+1}, 0")
A(f"s_add_u32 s16, s16, {FL_OFF + 64}")
flagline()
A("s_mov_b32 s17, 1")
if DG:
    A("s_memrealtime s[64:65]")
    A("s_waitcnt lgkmcnt(0)")
    A("v_mov_b32 v41, s64")
    A(f"ds_write_b32 v13, v41 offset:{CNT + 64 + 4*1}")
ST(3)
A("s_waitcnt vmcnt(36)")
ST(4)
A("s_barrier")
if DG:
    A("s_memrealtime s[64:65]")
    A("s_waitcnt lgkmcnt(0)")
    A("v_mov_b32 v41, s64")
    A(f"ds_write_b32 v13, v41 offset:{CNT + 64 + 4*2}")
ST(5)
A(f"ds_read_b32 v14, v13 offset:{R_E}")
A(f"s_waitcnt vmcnt({TK})")
A(f"s_atomic_add s17, s[20:21], {YC_OFF} glc")
A("s_waitcnt vmcnt(0)")
ST(6)
A("s_barrier")
A("s_waitcnt lgkmcnt(0)")
A("v_readfirstlane_b32 s7, v14")
A("s_cmp_lg_u32 s17, 31")
A("s_cbranch_scc1 L_NOTLAST")
A("s_mov_b32 exec_hi, 0")
A(f"buffer_store_dword v14, v12, s[{sWS}:{sWS+3}], s16 offen sc1")
A("L_NOTLAST:")
ST(7)
A(f"s_mov_b32 s22, {SPIN}")
if PP: A("s_not_b32 s23, s7")
A("L_YFL:")
A("s_load_dword s23, s[18:19], 64 glc")
if PP: A(f"s_sleep {PP}")
else: A("s_waitcnt lgkmcnt(0)")
A("s_cmp_eq_u32 s23, s7")
A("s_cbranch_scc1 L_YFLD")
A("s_sub_u32 s22, s22, 1")
A("s_cbranch_scc0 L_YFL")
A("L_YFLD:")
A("s_barrier")
if STAMPS:
    A("; STAMPDUMP 0 8")
A("L_END:")
A("s_endpgm")

def lanes():
    A(f"v_mov_b32 v5, {0xffffffff ^ TM:#x}")
    A("v_lshrrev_b32 v3, 4, v2")
    A("v_and_b32 v4, 15, v2")
    A("v_bfe_u32 v6, v2, 2, 2")
    A("v_and_b32 v7, 3, v2")
    masks()
    logid()
A("L_SYNC:")
A("s_setprio 3")
A("v_mov_b32 v17, 1")
lanes()
flagline()
A("v_lshrrev_b32 v14, 2, v2")
A("v_mul_u32_u24 v15, 576, v7")
A("v_add_lshl_u32 v15, v15, v14, 4")
A("s_mul_i32 s17, s4, 72*16")
A(f"s_add_u32 s17, s17, {XP_OFF}")
A("v_lshl_add_u32 v16, v6, 2, v7")
A("v_mul_u32_u24 v16, 48, v16")
A("v_lshl_add_u32 v16, v3, 1, v16")
A("s_lshl_b32 s68, s5, 7")
A(f"s_add_u32 s68, s68, {AG_OFF}")
A(f"s_add_u32 s68, s{sWS}, s68")
A(f"s_addc_u32 s69, s{sWS+1}, 0")
A("s_getreg_b32 s66, hwreg(HW_REG_XCC_ID, 0, 4)")
A("s_mov_b64 exec, 1")
A(f"s_waitcnt vmcnt({2+NPT})")
A(f"ds_add_u32 v13, v17 offset:{C_U}")
A("s_mov_b64 exec, -1")
A("s_waitcnt lgkmcnt(0)")
make_tags()
A("v_mov_b32 v18, s7")
A(f"ds_write_b32 v13, v18 offset:{R_E}")
A("s_lshl_b32 s67, s7, 4")
A("s_or_b32 s66, s66, s67")
A("s_lshl_b32 s67, s4, 2")
A("s_atomic_swap s66, s[68:69], s67")
A("v_mov_b32 v18, 2")
A(f"s_waitcnt vmcnt({NPT})")
A(f"ds_write_b32 v13, v18 offset:{R_U}")
ST(1)
def spoll(nm, off):
    A(f"s_mov_b32 s22, {SPIN}")
    A(f"L_SP{nm}:")
    A(f"s_load_dwordx8 s[8:15], s[18:19], {off} glc")
    A("s_waitcnt lgkmcnt(0)")
    for i in range(8): A(f"s_xor_b32 s{8+i}, s{8+i}, s7")
    A("s_or_b64 s[8:9], s[8:9], s[10:11]")
    A("s_or_b64 s[12:13], s[12:13], s[14:15]")
    A("s_or_b64 s[8:9], s[8:9], s[12:13]")
    A(f"s_cbranch_scc0 L_SP{nm}D")
    A("s_sub_u32 s22, s22, 1")
    A(f"s_cbranch_scc0 L_SP{nm}")
    A(f"L_SP{nm}D:")
spoll("X", 0)
ST(2)
G = 20
A(f"s_mov_b32 s22, {SPIN}")
A("L_XPOLL:")
for u in range(5):
    if u == 4: A("s_mov_b32 exec_hi, 0")
    A(f"buffer_load_dwordx4 v[{G+4*u}:{G+4*u+3}], v15, s[{sWS}:{sWS+3}], s17 offen offset:{256*u} sc1")
A(f"s_mov_b32 s23, {SPIN}")
A("L_AGP:")
A("s_load_dwordx8 s[8:15], s[68:69], 0 glc")
A("s_waitcnt lgkmcnt(0)")
for i in range(8): A(f"s_xor_b32 s{8+i}, s{8+i}, s66")
A("s_or_b64 s[8:9], s[8:9], s[10:11]")
A("s_or_b64 s[12:13], s[12:13], s[14:15]")
A("s_or_b64 s[8:9], s[8:9], s[12:13]")
A("s_or_b32 s8, s8, s9")
A("s_cmp_lt_u32 s8, 16")
A("s_cbranch_scc1 L_AGD")
A("s_sub_u32 s23, s23, 1")
A("s_cbranch_scc0 L_AGP")
A("L_AGD:")
A("s_cmp_eq_u32 s8, 0")
A("s_cselect_b32 s67, 2, 1")
A("s_mov_b32 exec_hi, -1")
A("v_mov_b32 v44, 0")
A("v_mov_b32 v19, s67")
A("s_mov_b32 exec_hi, 0")
A("s_waitcnt vmcnt(0)")
check(G+16, 44)
A("s_mov_b32 exec_hi, -1")
for u in range(4): check(G+4*u, 40+u)
A("v_or3_b32 v40, v40, v41, v42")
A("v_or3_b32 v40, v40, v43, v44")
A(f"v_and_b32 v40, {TM:#x}, v40")
A("v_cmp_ne_u32 vcc, 0, v40")
A("s_cmp_eq_u64 vcc, 0")
A("s_cbranch_scc1 L_XDONE")
A("s_sub_u32 s22, s22, 1")
A("s_cbranch_scc0 L_XPOLL")
A("L_XDONE:")
ST(3)
for qp in ("[1,0,3,2]", "[2,3,0,1]"):
    for i in range(20):
        A(f"v_add_f32_dpp v{G+i}, v{G+i}, v{G+i} quad_perm:{qp} row_mask:0xf bank_mask:0xf")
for u in range(5): sel4(G+4*u)
A(f"v_cvt_pk_bf16_f32 v{G}, v{G}, v{G+4}")
A(f"v_cvt_pk_bf16_f32 v{G+8}, v{G+8}, v{G+12}")
A(f"v_cvt_pk_bf16_f32 v{G+16}, v{G+16}, v{G+16}")
A(f"ds_write_b16 v16, v{G} offset:{XR}")
A(f"ds_write_b16_d16_hi v16, v{G} offset:{XR+8}")
A(f"ds_write_b16 v16, v{G+8} offset:{XR+16}")
A(f"ds_write_b16_d16_hi v16, v{G+8} offset:{XR+24}")
A("s_mov_b32 exec_hi, 0")
A(f"ds_write_b16 v16, v{G+16} offset:{XR+32}")
A(f"ds_write_b32 v13, v19 offset:{R_X}")
ST(4)
A("s_cmp_eq_u32 s67, 1")
A("s_cbranch_scc1 L_GLOBH")
ldspin("L_PHL", PROG, PH)
A("s_branch L_SEND")
A("L_GLOBH:")
spoll("H", 32)
A("L_SEND:")
A(f"ds_write_b32 v13, v17 offset:{R_H}")
ST(5)
if STAMPS:
    A("s_waitcnt vmcnt(0) lgkmcnt(0)")
    A("; STAMPDUMP 0 6")
A("s_endpgm")

A("L_COMP:")
setsrd(sWS, WS_BYTES); setsrd(sV, 4608*9216); setsrd(sOUT, 4*9216)
lanes()
vaddr()
A("s_sub_u32 s6, s6, 2")
A("v_and_b32 v89, 1, v3")
A("v_lshl_add_u32 v89, v89, 2, v6")
A("v_lshlrev_b32 v88, 7, v89")
A("v_lshl_add_u32 v88, v7, 3, v88")
A("v_lshrrev_b32 v89, 1, v89")
A("v_lshrrev_b32 v90, 1, v3")
A("v_mov_b32 v60, 1")
A("v_lshlrev_b32 v55, 4, v2")
SZ = 64
ST(1)
A("s_cmp_ge_u32 s2, 36")
A("s_cbranch_scc1 L_NOX")
A("s_cmp_lt_u32 s6, 4")
A("s_cbranch_scc1 L_XJOB")
A("s_mov_b64 exec, 1")
A("s_waitcnt vmcnt(0)")
A(f"ds_add_u32 v13, v60 offset:{C_U}")
A("s_mov_b64 exec, -1")
A("s_branch L_NOX")
A("L_XJOB:")
A("s_setprio 2")
XA = 16
XB = 100
A("v_mul_u32_u24 v15, 288, v7")
A("v_lshl_add_u32 v15, v3, 3, v15")
A(f"v_add_u32 v15, {XL}, v15")
A(f"v_mov_b32 v{XA+18}, 0"); A(f"v_mov_b32 v{XA+19}, 0")
A("v_xor_b32 v56, s6, v89")
A("v_lshl_add_u32 v56, v56, 5, v88")
A("v_lshl_add_u32 v56, v90, 10, v56")
A(f"v_add_u32 v56, {UL}, v56")
A(f"v_mov_b32 v{XB+18}, 0"); A(f"v_mov_b32 v{XB+19}, 0")
A("s_mul_i32 s17, s10, 576*16")
A("s_lshl_b32 s18, s11, 10")
A("s_add_u32 s17, s17, s18")
A("s_lshl_b32 s18, s6, 8")
A("s_add_u32 s17, s17, s18")
A(f"s_add_u32 s17, s17, {XP_OFF}")
A("v_and_b32 v57, 31, v2")
A("v_lshlrev_b32 v57, 10, v57")
A("v_lshrrev_b32 v58, 5, v2")
A("v_mul_u32_u24 v58, 124, v58")
A("v_sub_u32 v57, v57, v58")
A("v_add_u32 v57, 128, v57")
A("s_lshl_b32 s18, s11, 7")
A("s_lshl_b32 s19, s10, 3")
A("s_add_u32 s18, s18, s19")
A(f"s_add_u32 s18, s18, {FL_OFF - 128}")
A("s_cmp_eq_u32 s11, 8")
A("s_cselect_b32 s8, 0, -1")
A("s_cmp_eq_u32 s11, 0")
A("s_cselect_b32 s9, 0, -1")
A("s_waitcnt lgkmcnt(0)")
make_tags()
A("v_mov_b32 v58, s7")
A("s_mov_b64 exec, 1")
A("s_waitcnt vmcnt(0)")
A(f"ds_add_u32 v13, v60 offset:{C_U}")
A("s_mov_b64 exec, -1")
ldspin("L_RU", C_U, 10)
for t in range(5):
    if t < 4: A(f"ds_read2_b64 v[{XA+4*t}:{XA+4*t+3}], v15 offset0:{8*t} offset1:{8*t+4}")
    else: A(f"ds_read_b64 v[{XA+4*t}:{XA+4*t+1}], v15 offset:{64*t}")
    A(f"ds_read_b64_tr_b16 v[{XB+4*t}:{XB+4*t+1}], v56 offset:{4*t*1024}")
    if t < 4: A(f"ds_read_b64_tr_b16 v[{XB+4*t+2}:{XB+4*t+3}], v56 offset:{(4*t+2)*1024}")
for t in range(5):
    A(f"s_waitcnt lgkmcnt({max(0, 11-3*t)})")
    c = "0" if t == 0 else "v[40:43]"
    A(f"v_mfma_f32_16x16x32_bf16 v[40:43], v[{XA+4*t}:{XA+4*t+3}], v[{XB+4*t}:{XB+4*t+3}], {c}")
A("s_mov_b64 exec, 0xffff")
A("s_nop 6")
tag(40)
A(f"buffer_store_dwordx4 v[40:43], v55, s[{sWS}:{sWS+3}], s17 offen sc1")
A("s_mov_b64 exec, 1")
A(f"ds_add_rtn_u32 v14, v13, v60 offset:{C_XW}")
A("s_waitcnt lgkmcnt(0)")
A("v_readfirstlane_b32 s23, v14")
A("s_cmp_lg_u32 s23, 3")
A("s_cbranch_scc1 L_XNF")
A("s_mov_b64 exec, s[8:9]")
A(f"buffer_store_dword v58, v57, s[{sWS}:{sWS+3}], s18 offen sc1")
A("L_XNF:")
A("s_mov_b64 exec, -1")
A("s_setprio 0")
A("s_branch L_XEND")
A("L_NOX:")
A("s_waitcnt lgkmcnt(0)")
make_tags()
A("L_XEND:")
ST(2)
A("v_mul_u32_u24 v15, 576, v3")
A("v_lshl_add_u32 v15, v4, 2, v15")
A("s_lshl_b32 s12, s6, 6")
A(f"s_add_u32 s12, s12, {QL}")
A("v_add_u32 v15, s12, v15")
A("v_lshl_add_u32 v56, v3, 2, v7")
A("v_mul_u32_u24 v56, 48, v56")
A("s_and_b32 s12, s4, 3")
for k in (1, 2, 3):
    A(f"s_cmp_ge_u32 s12, {k}")
    A(f"s_cselect_b64 s[{12+2*k}:{13+2*k}], -1, 0")
A("v_lshlrev_b32 v57, 1, v4")
A("s_lshl_b32 s12, s6, 5")
A("v_add_u32 v57, s12, v57")
ldspin("L_RU2", R_U, 2)
for g in range(3):
    A(f"ds_read_u16 v{SZ+g}, v57 offset:{SCL + 288*g}")
    A(f"ds_read_u16 v{SZ+3+g}, v57 offset:{ZL + 288*g}")
A("s_waitcnt lgkmcnt(0)")
for g in range(6): A(f"v_lshlrev_b32 v{SZ+g}, 16, v{SZ+g}")
SP, ZP = 70, 79
def pairsz(p):
    base = p >> 2
    r = p & 3
    if r == 0: return SZ+base, SZ+3+base
    return SP+p, ZP+p
for p in range(9):
    base, r = p >> 2, p & 3
    if r:
        k = 4 - r
        A(f"v_cndmask_b32 v{SP+p}, v{SZ+base}, v{SZ+base+1}, s[{12+2*k}:{13+2*k}]")
        A(f"v_cndmask_b32 v{ZP+p}, v{SZ+3+base}, v{SZ+3+base+1}, s[{12+2*k}:{13+2*k}]")
QW = 16
B = 36
AX = 100
for r in (B+9, B+10, B+11, AX+9, AX+10, AX+11): A(f"v_mov_b32 v{r}, 0")
A("s_mul_i32 s18, s3, 2304")
A("s_lshl_b32 s19, s6, 8")
A("s_add_u32 s18, s18, s19")
A(f"s_add_u32 s18, s18, {HP_OFF}")
A("s_mul_i32 s17, s5, 8*2304")
A("s_add_u32 s17, s17, s19")
A(f"s_add_u32 s17, s17, {HP_OFF}")
A("v_lshlrev_b32 v61, 7, v2")
A("v_mov_b32 v62, s7")
A("s_lshl_b32 s16, s5, 10")
A("s_lshl_b32 s19, s4, 2")
A("s_add_u32 s16, s16, s19")
A(f"s_add_u32 s16, s16, {FL_OFF + 32}")
ldspin("L_RQ", R_Q, 1)
ST(3)
for p in range(9):
    A(f"ds_read2st64_b32 v[{QW+2*p}:{QW+2*p+1}], v15 offset0:{18*p} offset1:{18*p+9}")
for p in range(9):
    A(f"s_waitcnt lgkmcnt({8-p})")
    if p == 8:
        A("s_mov_b64 exec, 1")
        A(f"ds_add_u32 v13, v60 offset:{C_Q}")
        A("s_mov_b64 exec, -1")
    r0, r1 = QW+2*p, QW+2*p+1
    sr, zr = pairsz(p)
    A(f"v_cvt_f32_i32 v{r0}, v{r0}")
    A(f"v_cvt_f32_i32 v{r1}, v{r1}")
    A(f"v_sub_f32 v{r0}, v{r0}, v{zr}")
    A(f"v_sub_f32 v{r1}, v{r1}, v{zr}")
    A(f"v_cvt_pk_bf16_f32 v{r1}, v{r0}, v{r1}")
    A(f"v_lshlrev_b32 v{r0}, 16, v{r1}")
    A(f"v_and_b32 v{r1}, 0xffff0000, v{r1}")
    A(f"v_mul_f32 v{r0}, v{r0}, v{sr}")
    A(f"v_mul_f32 v{r1}, v{r1}, v{sr}")
    A(f"v_cvt_pk_bf16_f32 v{B+p}, v{r0}, v{r1}")
ldspin("L_RX", R_X, 1)
A(f"ds_read_b128 v[{AX}:{AX+3}], v56 offset:{XR}")
A(f"ds_read_b128 v[{AX+4}:{AX+7}], v56 offset:{XR+16}")
A(f"ds_read_b32 v{AX+8}, v56 offset:{XR+32}")
for t in range(3):
    A(f"s_waitcnt lgkmcnt({2-t})")
    c = "0" if t == 0 else "v[48:51]"
    A(f"v_mfma_f32_16x16x32_bf16 v[48:51], v[{AX+4*t}:{AX+4*t+3}], v[{B+4*t}:{B+4*t+3}], {c}")
A("s_mov_b64 exec, 0xffff")
A("s_cmp_eq_u32 s23, 2")
A("s_nop 5")
tag(48)
A("s_cbranch_scc0 L_HGL")
A(f"buffer_store_dwordx4 v[48:51], v55, s[{sWS}:{sWS+3}], s18 offen")
A("s_branch L_HNF")
A("L_HGL:")
A(f"buffer_store_dwordx4 v[48:51], v55, s[{sWS}:{sWS+3}], s18 offen sc1")
A("s_mov_b64 exec, 1")
A(f"ds_add_rtn_u32 v14, v13, v60 offset:{C_H}")
A("s_waitcnt lgkmcnt(0)")
A("v_readfirstlane_b32 s23, v14")
A("s_cmp_lg_u32 s23, 8")
A("s_cbranch_scc1 L_HNF")
A("s_mov_b64 exec, 0xff")
A(f"buffer_store_dword v62, v61, s[{sWS}:{sWS+3}], s16 offen sc1")
A("L_HNF:")
A("s_mov_b64 exec, -1")
REM = 112
A("s_lshl_b32 s21, s6, 7")
A("s_add_u32 s20, s20, s21")
A(f"s_add_u32 s20, s20, {136*9216}")
A(f"buffer_load_dwordx4 v[{REM}:{REM+3}], v11, s[{sV}:{sV+3}], s20 offen nt")
ST(4)
A("v_mul_u32_u24 v96, 2304, v10")
A("v_lshl_add_u32 v96, v8, 4, v96")
A("v_lshrrev_b32 v58, 2, v8")
A("v_lshlrev_b32 v58, 6, v58")
A("v_lshl_add_u32 v58, v7, 4, v58")
A("v_and_b32 v59, 3, v8")
A("v_lshl_add_u32 v58, v59, 1, v58")
A("s_lshr_b32 s18, s6, 1")
A("s_lshl_b32 s18, s18, 8")
A("s_and_b32 s19, s6, 1")
A("s_lshl_b32 s19, s19, 3")
A("s_add_u32 s18, s18, s19")
A("v_add_u32 v97, s18, v58")
A("v_mov_b32 v9, v55")
A("v_mov_b32 v15, v60")
AV = 16
def areg(t, i=0): return AV + 4*t
A("v_mul_u32_u24 v98, 9216, v90")
A("v_add_u32 v98, v98, v88")
A("s_lshl_b32 s18, s6, 10")
A(f"s_add_u32 s18, s18, {VL}")
A("v_add_u32 v98, s18, v98")
TRA, TRB = 100, 104
for i in range(4):
    A(f"v_xor_b32 v99, {i}, v89")
    A(f"v_lshl_add_u32 v{TRA+i}, v99, 5, v98")
    A(f"v_add_u32 v{TRB+i}, 73728, v{TRA+i}")
A("v_add_u32 v99, s18, v9")
A("v_lshlrev_b32 v98, 6, v3")
A("v_lshl_add_u32 v98, v7, 4, v98")
A("v_mov_b32 v34, 0"); A("v_mov_b32 v35, 0")
A(f"v_mov_b32 v117, {1 << (TB-1):#x}")
A("s_lshl_b32 s16, s4, 5")
A("s_add_u32 s14, s16, s5")
A("s_mul_i32 s14, s14, 9216")
A("s_lshl_b32 s19, s6, 10")
A("s_add_u32 s14, s14, s19")
A(f"s_add_u32 s14, s14, {YP_OFF}")
A("v_subrev_u32 v8, 128, v0")
A("v_mul_u32_u24 v10, 3641, v8")
A("v_lshrrev_b32 v10, 16, v10")
A("v_mul_u32_u24 v10, 8928, v10")
A("v_lshlrev_b32 v11, 4, v8")
A("v_add_u32 v10, v10, v11")
A("s_mul_i32 s16, s16, 9216")
A("s_mul_i32 s19, s5, 288")
A("s_add_u32 s16, s16, s19")
A(f"s_add_u32 s16, s16, {YP_OFF}")
A("v_and_b32 v1, 7, v8")
A("v_mul_u32_u24 v1, 288, v1")
A("v_lshrrev_b32 v8, 3, v8")
A("v_lshl_add_u32 v1, v8, 2, v1")
A(f"v_add_u32 v1, {VL}, v1")
A("v_and_b32 v12, 3, v8")
A("v_mul_u32_u24 v12, 9216, v12")
A("v_lshrrev_b32 v8, 2, v8")
A("v_lshl_add_u32 v12, v8, 1, v12")
A("s_mul_i32 s15, s4, 1152")
A("s_mul_i32 s19, s5, 36")
A("s_add_u32 s15, s15, s19")
BT = 48
ldspin("L_RH", R_H, 1)
H0, H1 = 48, 52
A(f"s_mov_b32 s22, {SPIN}")
A("L_HPOLL:")
A(f"buffer_load_dwordx4 v[{H0}:{H0+3}], v96, s[{sWS}:{sWS+3}], s17 offen sc1")
A(f"buffer_load_dwordx4 v[{H1}:{H1+3}], v96, s[{sWS}:{sWS+3}], s17 offen offset:128 sc1")
A("s_waitcnt vmcnt(0)")
check(H0, 56)
check(H1, 57)
A("v_or_b32 v56, v56, v57")
A(f"v_and_b32 v56, {TM:#x}, v56")
A("v_cmp_ne_u32 vcc, 0, v56")
A("s_and_b64 exec, vcc, vcc")
A("s_cbranch_scc0 L_HDONE")
A("s_sub_u32 s22, s22, 1")
A("s_cbranch_scc0 L_HPOLL")
A("L_HDONE:")
A("s_mov_b64 exec, -1")
ST(5)
for dp in ("quad_perm:[1,0,3,2]", "quad_perm:[2,3,0,1]", "row_half_mirror"):
    for i in range(8):
        A(f"v_add_f32_dpp v{H0+i}, v{H0+i}, v{H0+i} {dp} row_mask:0xf bank_mask:0xf")
sel4(H0); sel4(H1)
A(f"v_cvt_pk_bf16_f32 v{H0}, v{H0}, v{H1}")
A(f"ds_write_b16 v97, v{H0} offset:{HA}")
A(f"ds_write_b16_d16_hi v97, v{H0} offset:{HA+128}")
A("s_mov_b64 exec, 1")
A(f"ds_add_u32 v13, v15 offset:{C_A}")
A("s_mov_b64 exec, -1")
ldspin("L_CA", C_A, 9)
for t in range(4):
    a = areg(t)
    A(f"ds_read_b128 v[{a}:{a+3}], v98 offset:{HA + 256*t}")
A(f"ds_read_b64 v[32:33], v98 offset:{HA + 1024}")
Y = 108
YD = [36, 40, 44, 120]
def trreads(t, base):
    tr = TRA if t < 2 else TRB
    o = (1 + 4*(t % 2))*9216
    for i in range(4):
        A(f"ds_read_b64_tr_b16 v[{base+4*i}:{base+4*i+1}], v{tr+i} offset:{o}")
        A(f"ds_read_b64_tr_b16 v[{base+4*i+2}:{base+4*i+3}], v{tr+i} offset:{o + 2*9216}")
def mf(t, i, base, first=False):
    a = areg(t); d = YD[i]
    c = "0" if first else f"v[{d}:{d+3}]"
    A(f"v_mfma_f32_16x16x32_bf16 v[{d}:{d+3}], v[{a}:{a+3}], v[{base+4*i}:{base+4*i+3}], {c}")
def mfmas(t, base, first=False):
    for i in range(4): mf(t, i, base, first)
def kstep(t, base):
    trreads(t, base)
    for i in range(4):
        A(f"s_waitcnt lgkmcnt({6-2*i})")
        mf(t, i, base)
LG = (max(D1, D3) + 8)//9
ST(6)
ldspin("L_EB", PROG, 9 + LG)
trreads(0, BT)
A(f"ds_write_b128 v99, v[{REM}:{REM+3}] offset:9216")
trreads(1, BT+16)
for i in range(4):
    A(f"v_mov_b32 v{BT+32+4*i+2}, 0"); A(f"v_mov_b32 v{BT+32+4*i+3}, 0")
A("s_waitcnt lgkmcnt(9)")
mfmas(0, BT, True)
for i in range(4):
    A(f"ds_read_b64_tr_b16 v[{BT+32+4*i}:{BT+32+4*i+1}], v{TRA+i}")
A("s_waitcnt lgkmcnt(4)")
mfmas(1, BT+16)
A("s_waitcnt lgkmcnt(0)")
mfmas(4, BT+32)
A(f"s_mov_b32 s22, {SPIN}")
A("s_barrier")
ST(7)
kstep(2, BT)
ST(8)
A("s_barrier")
ST(9)
kstep(3, BT+16)
A("s_nop 1")
for g in range(4):
    for r in range(4):
        A(f"v_add_u32_dpp v{Y+r}, v{YD[g]+r}, v117 quad_perm:[0,1,2,3] row_mask:{1 << g:#x} bank_mask:0xf")
for i in range(4): A(f"v_and_or_b32 v{Y+i}, v{Y+i}, v5, s{60+i}")
A(f"buffer_store_dwordx4 v[{Y}:{Y+3}], v9, s[{sWS}:{sWS+3}], s14 offen sc1")
ST(10)
A("s_barrier")
YG = 112
A("s_branch L_YP0")
A("L_YPOLL:")
A("s_sleep 2")
A("L_YP0:")
A(f"buffer_load_dwordx4 v[{YG}:{YG+3}], v10, s[{sWS}:{sWS+3}], s16 offen sc1")
A("s_waitcnt vmcnt(0)")
check(YG, 116)
A(f"v_and_b32 v116, {TM:#x}, v116")
A("v_cmp_ne_u32 vcc, 0, v116")
A("s_and_b64 exec, vcc, vcc")
A("s_cbranch_scc0 L_YDONE")
A("s_sub_u32 s22, s22, 1")
A("s_cbranch_scc0 L_YPOLL")
A("L_YDONE:")
A("s_mov_b64 exec, -1")
ST(11)
A(f"ds_write_b128 v11, v[{YG}:{YG+3}] offset:{VL}")
A("s_waitcnt lgkmcnt(0)")
A("s_barrier")
A(f"ds_read2st64_b32 v[{YG}:{YG+1}], v1 offset0:0 offset1:9")
A(f"ds_read2st64_b32 v[{YG+2}:{YG+3}], v1 offset0:18 offset1:27")
A("s_waitcnt lgkmcnt(0)")
A(f"v_add_f32 v{YG}, v{YG}, v{YG+1}")
A(f"v_add_f32 v{YG+2}, v{YG+2}, v{YG+3}")
A(f"v_add_f32 v{YG}, v{YG}, v{YG+2}")
for dp in ("quad_perm:[1,0,3,2]", "quad_perm:[2,3,0,1]", "row_half_mirror"):
    A("s_nop 1")
    A(f"v_add_f32_dpp v{YG}, v{YG}, v{YG} {dp} row_mask:0xf bank_mask:0xf")
A(f"v_cvt_pk_bf16_f32 v{YG}, v{YG}, v{YG}")
A("s_mov_b32 exec_lo, 0x01010101")
A("s_mov_b32 exec_hi, 0x01010101")
A(f"buffer_store_short v{YG}, v12, s[{sOUT}:{sOUT+3}], s15 offen")
A("s_or_b32 s19, s2, s6")
A("s_cbranch_scc1 L_CEND")
A("s_mov_b64 exec, 1")
A("v_mov_b32 v14, s7")
A(f"buffer_store_dword v14, v13, s[{sWS}:{sWS+3}], 0 offen offset:{EP_OFF}")
A("L_CEND:")
if DG:
    A("s_cmp_lg_u32 s2, 100")
    A("s_cbranch_scc1 L_DGE")
    A("s_cmp_lg_u32 s6, 0")
    A("s_cbranch_scc1 L_DGE")
    A("s_mov_b64 exec, -1")
    A("s_memrealtime s[64:65]")
    A(f"buffer_load_dwordx4 v[20:23], v9, s[{sWS}:{sWS+3}], 0 offen offset:2048 sc1")
    A(f"ds_read_b128 v[24:27], v13 offset:{CNT + 64}")
    A("s_waitcnt vmcnt(0) lgkmcnt(0)")
    for r in range(20, 28): A(f"v_sub_u32 v{r}, s64, v{r}")
    A("v_max_u32 v28, v20, v21"); A("v_max3_u32 v28, v28, v22, v23")
    A("v_min_u32 v29, v20, v21"); A("v_min3_u32 v29, v29, v22, v23")
    A("s_mov_b32 s8, 0"); A("s_mov_b32 s9, -1")
    A("s_nop 1")
    for l in range(64):
        A(f"v_readlane_b32 s10, v28, {l}"); A(f"v_readlane_b32 s11, v29, {l}")
        A("s_max_u32 s8, s8, s10"); A("s_min_u32 s9, s9, s11")
    A("v_readfirstlane_b32 s12, v24"); A("v_readfirstlane_b32 s13, v25"); A("v_readfirstlane_b32 s14, v26")
    if DG == "span": A("s_mov_b32 s10, s8")
    elif DG == "skew": A("s_sub_u32 s10, s8, s9")
    elif DG == "rq": A("s_sub_u32 s10, s8, s12")
    elif DG == "iss": A("s_sub_u32 s10, s8, s13")
    elif DG == "b1": A("s_sub_u32 s10, s8, s14")
    else: A("s_mov_b32 s10, 0")
    A("s_min_u32 s10, s10, 3000")
    A(f"s_mul_i32 s10, s10, {DK}")
    A("s_add_u32 s10, s10, 300")
    A("s_add_u32 s10, s10, s64")
    A("L_DGW:")
    A("s_memrealtime s[12:13]")
    A("s_waitcnt lgkmcnt(0)")
    A("s_sub_u32 s11, s12, s10")
    A("s_cmp_lt_i32 s11, 0")
    A("s_cbranch_scc1 L_DGW")
    A("L_DGE:")
if STAMPS:
    A("s_waitcnt vmcnt(0)")
    A("; STAMPDUMP 0 12")
A("s_endpgm")
A("L_CODE_END:")

VG = 124
A('.section .rodata,"a"')
A(".p2align 6")
A(f""".amdhsa_kernel {KN}
  .amdhsa_next_free_vgpr {VG}
  .amdhsa_next_free_sgpr 70
  .amdhsa_accum_offset {(VG+3)//4*4}
  .amdhsa_group_segment_fixed_size 0
  .amdhsa_kernarg_size 72
  .amdhsa_user_sgpr_count 2
  .amdhsa_user_sgpr_kernarg_segment_ptr 1
  .amdhsa_system_sgpr_workgroup_id_x 1
  .amdhsa_float_denorm_mode_32 3
.end_amdhsa_kernel""")
dst = sys.argv[1]
if STAMPS:
    open(dst + ".pre", "w").write("\n".join(out) + "\n")
    import subprocess
    subprocess.check_call([sys.executable, "stamp.py", dst + ".pre", dst])
else:
    open(dst, "w").write("\n".join(out) + "\n")
```

```python
import sys, os
NAME = "standalone__weight_only_int_quip__decode"
KN = NAME + "_kernel"
E = lambda k, d: int(os.environ.get(k, str(d)))
D1 = E("D1", 18); D3 = E("D3", 45); TK = E("TK", 8); PH = E("PH", 8)
D2 = E("D2", 0)
HY = E("HY", 0)
PP = E("PP", 0)
PT = os.environ.get("PT", "")
DG = os.environ.get("DG", ""); DK = E("DK", 10)
DG_OFF = 57344
TA = E("TA", 205); TBk = E("TBK", 32)
TB = E("TB", 10)
STAMPS = bool(os.environ.get("STAMPS"))
SPIN = 1 << 16
RND = (D1 + 8)//9
out = []
def A(s): out.append(s)
ROLE = ["E"]
def ST(k):
    if STAMPS: A(f"; STAMP {k}")
    if os.environ.get("DG", "") == f"{ROLE[0]}{k}":
        A("s_memrealtime s[98:99]")
        A("s_waitcnt lgkmcnt(0)")
        A("v_mov_b32 v119, s98")
        A(f"ds_max_u32 v13, v119 offset:{2048 + 64 + 12}")
TM = (1 << TB) - 1

XR, HA, CNT, SCL, ZL, XL, VL = 0, 768, 2048, 2304, 3328, 4352, 7168
R_U, R_Q, R_X, R_H, C_A, C_Q, C_XW, C_H, R_E, PROG, C_U = [CNT + 4*i for i in range(11)]
LDS_BYTES = VL + 17*9216
QL = LDS_BYTES - 41472
UL = QL - 18432
assert LDS_BYTES == 163840 and UL >= VL + 10*9216
EP_OFF, YC_OFF, XP_OFF, AG_OFF, FL_OFF, HP_OFF, YP_OFF, WS_BYTES = 0, 1024, 4096, 49152, 65536, 131072, 1 << 20, 4 << 20

A(f"""; Kernarg layout for this problem (72 bytes, ptrs only, base s[0:1]):
; @launch grid=(256,1,1) block=(704,1,1) lds={LDS_BYTES}
.amdgcn_target "amdgcn-amd-amdhsa--gfx950"
.text
.globl {KN}
.p2align 8
.type {KN},@function
{KN}:""")

sQW, sSC, sZ, sV, sWS, sOUT, sU, sX = 24, 28, 32, 36, 40, 44, 48, 52
def kl(r, off): A(f"s_load_dwordx2 s[{r}:{r+1}], s[0:1], {off}")
def setsrd(r, nb):
    A(f"s_mov_b32 s{r+2}, {nb}")
    A(f"s_mov_b32 s{r+3}, 0x00020000")
def load_tags(): A(f"s_load_dword s7, s[{sWS}:{sWS+1}], {EP_OFF}")
def make_tags():
    step = (1 << TB) * 31 // 100
    for i in range(4):
        A(f"s_add_u32 s{60+i}, s7, {1 + i*step}")
        A(f"s_and_b32 s{60+i}, s{60+i}, {TM:#x}")
    A("s_add_u32 s7, s7, 1")
def tag(r):
    for i in range(4): A(f"v_add_u32 v{r+i}, {1 << (TB-1):#x}, v{r+i}")
    for i in range(4): A(f"v_and_or_b32 v{r+i}, v{r+i}, v5, s{60+i}")
def check(r, t):
    for i in range(4): A(f"v_xor_b32 v{r+i}, s{60+i}, v{r+i}")
    A(f"v_or3_b32 v{t}, v{r}, v{r+1}, v{r+2}")
    A(f"v_or_b32 v{t}, v{t}, v{r+3}")
def masks():
    A("s_mov_b32 s56, 0x22222222"); A("s_mov_b32 s57, 0x22222222")
    A("s_mov_b32 s58, 0x44444444"); A("s_mov_b32 s59, 0x44444444")
    A("s_mov_b32 s64, 0x88888888"); A("s_mov_b32 s65, 0x88888888")
def sel4(h):
    A(f"v_cndmask_b32 v{h}, v{h}, v{h+1}, s[56:57]")
    A(f"v_cndmask_b32 v{h}, v{h}, v{h+2}, s[58:59]")
    A(f"v_cndmask_b32 v{h}, v{h}, v{h+3}, s[64:65]")
def ldspin(label, addr, target, tmp=14):
    A(f"s_mov_b32 s22, {SPIN*4}")
    A(f"{label}:")
    A(f"ds_read_b32 v{tmp}, v13 offset:{addr}")
    A("s_waitcnt lgkmcnt(0)")
    A(f"v_readfirstlane_b32 s23, v{tmp}")
    A(f"s_cmp_ge_u32 s23, {target}")
    A(f"s_cbranch_scc1 {label}_D")
    A("s_sleep 1")
    A("s_sub_u32 s22, s22, 1")
    A(f"s_cbranch_scc0 {label}")
    A(f"{label}_D:")
def swz():
    A("v_lshrrev_b32 v8, 3, v2")
    A("v_and_b32 v9, 6, v8")
    A("v_and_b32 v10, 7, v2")
    A("v_xor_b32 v9, v9, v10")
def vaddr():
    A("v_mul_u32_u24 v11, 9216, v8")
    A("v_lshl_add_u32 v11, v9, 4, v11")
    A("s_mul_i32 s20, s5, 144*9216")
    A("s_mul_i32 s21, s4, 1152")
    A("s_add_u32 s20, s20, s21")
def xids():
    A("s_mul_i32 s10, s2, 57")
    A("s_lshr_b32 s10, s10, 9")
    A("s_mul_i32 s11, s10, 9")
    A("s_sub_u32 s11, s2, s11")
def logid():
    A("s_lshl_b32 s3, s5, 3")
    A("s_add_u32 s3, s3, s4")
def flagline():
    A("s_lshl_b32 s18, s3, 7")
    A(f"s_add_u32 s18, s18, {FL_OFF}")
    A(f"s_add_u32 s18, s{sWS}, s18")
    A(f"s_addc_u32 s19, s{sWS+1}, 0")

A("s_cmp_ge_u32 s2, 256")
A("s_cbranch_scc1 L_END")
kl(sQW, 8)
A("s_getpc_b64 s[8:9]")
A("L_PC:")
A("v_lshlrev_b32 v14, 4, v0")
A("v_min_u32 v14, L_CODE_END-L_PC-4, v14")
A("global_load_dword v99, v14, s[8:9]")
kl(sU, 32); kl(sWS, 64)
A("v_readfirstlane_b32 s6, v0")
ST(0)
A("s_bfe_u32 s4, s2, 0x30003")
A("s_and_b32 s5, s2, 7")
A("s_lshl_b32 s5, s5, 2")
A("s_lshr_b32 s3, s2, 6")
A("s_add_u32 s5, s5, s3")
A("v_and_b32 v2, 63, v0")
A("v_mov_b32 v13, 0")
A("s_lshr_b32 s6, s6, 6")
A("s_cbranch_scc1 L_NOTL")
A("s_memrealtime s[66:67]")
setsrd(sQW, 576*4608*4)
A("v_mul_u32_u24 v14, 1821, v2")
A("v_lshlrev_b32 v15, 4, v2")
A("s_movk_i32 s13, 17856")
A("s_mul_i32 s12, s4, 72*18432")
A("s_mul_i32 s14, s5, 576")
A("s_add_u32 s12, s12, s14")
A(f"s_mov_b32 m0, {QL}")
QO = 16
A(f"v_lshrrev_b32 v{QO}, 16, v14")
A(f"v_mad_u32_u24 v{QO}, v{QO}, s13, v15")
A("s_cmp_ge_u32 s2, 36")
A("s_cbranch_scc1 L_QGO")
A("s_barrier")
A("L_QGO:")
A("s_waitcnt lgkmcnt(0)")
kl(sV, 40)
for i in range(9):
    if i:
        A(f"v_add_u32 v14, {64*1821}, v14")
        if i % 4 == 0:
            A("s_add_u32 m0, m0, 4096")
            A("s_add_u32 s12, s12, 4096")
        A(f"v_lshrrev_b32 v{QO+i}, 16, v14")
        A(f"v_mad_u32_u24 v{QO+i}, v{QO+i}, s13, v15")
    A(f"buffer_load_dwordx4 v{QO+i}, s[{sQW}:{sQW+3}], s12 offen offset:{1024*(i%4)} nt lds")
A("s_mov_b32 s16, 1")
A("L_QLOOP:")
for i in range(9):
    if i % 4 == 0:
        A(f"s_add_u32 m0, m0, {4096 if i else 1024}")
        A(f"s_add_u32 s12, s12, {4096 if i else 16*18432 - 8192}")
    if i == 4:
        A("s_cmp_eq_u32 s16, 4")
        A("s_cselect_b32 exec_hi, 0, -1")
    A(f"s_waitcnt vmcnt({D1-1})")
    A(f"buffer_load_dwordx4 v{QO+i}, s[{sQW}:{sQW+3}], s12 offen offset:{1024*(i%4)} nt lds")
    if i == 4: A("s_cbranch_scc1 L_QDONE")
A("s_add_u32 s16, s16, 1")
A("s_cmp_lg_u32 s16, 2")
A("s_cbranch_scc1 L_QLOOP")
A("s_cmp_lt_u32 s2, 36")
A("s_cbranch_scc1 L_QLOOP")
A("s_barrier")
A("s_branch L_QLOOP")

A("L_NOTL:")
A("s_cmp_eq_u32 s6, 1")
A("s_cbranch_scc1 L_AUX")
A("v_lshlrev_b32 v14, 2, v2")
A(f"ds_write_b32 v14, v13 offset:{CNT}")
swz()
A("s_cmp_ge_u32 s2, 36")
A("s_cbranch_scc1 L_NOU")
xids()
setsrd(sU, 576*1152)
A("v_mul_u32_u24 v12, 1152, v8")
A("v_lshl_add_u32 v12, v9, 4, v12")
A("s_mul_i32 s14, s10, 144*1152")
A("s_lshl_b32 s13, s11, 7")
A("s_add_u32 s14, s14, s13")
A("s_mul_i32 s13, s6, 16*1152")
A("s_add_u32 s14, s14, s13")
A(f"s_sub_u32 s14, s14, {32*1152}")
A("s_lshl_b32 s13, s6, 11")
A(f"s_add_u32 m0, s13, {UL - 4096}")
A(f"s_add_u32 s15, s14, {8*1152 - 1024}")
A("s_waitcnt lgkmcnt(0)")
A(f"buffer_load_dwordx4 v12, s[{sU}:{sU+3}], s14 offen nt lds")
A(f"buffer_load_dwordx4 v12, s[{sU}:{sU+3}], s15 offen offset:1024 nt lds")
A("L_NOU:")
A("s_waitcnt lgkmcnt(0)")
kl(sV, 40); kl(sOUT, 48)
load_tags()
A("s_barrier")
A("s_branch L_COMP")
A("L_AUX:")
kl(sX, 0); kl(sSC, 16); kl(sZ, 24)
if PT: kl(sV, 40); kl(sOUT, 48)
A("v_mul_u32_u24 v27, 3641, v2")
A("v_lshrrev_b32 v27, 16, v27")
A("v_lshlrev_b32 v29, 4, v2")
A("v_lshlrev_b32 v14, 7, v2")
A("s_cmp_ge_u32 s2, 36")
A("s_cbranch_scc1 L_NOXL")
setsrd(sX, 4*1152)
A("s_mul_i32 s10, s2, 57")
A("s_lshr_b32 s10, s10, 9")
A("v_mul_u32_u24 v28, 864, v27")
A("v_add_u32 v28, v28, v29")
A("s_mul_i32 s17, s10, 288")
A(f"s_mov_b32 m0, {XL}")
A("s_add_u32 s18, s17, 3*864")
A("s_waitcnt lgkmcnt(0)")
A(f"buffer_load_dwordx4 v28, s[{sX}:{sX+3}], s17 offen lds")
A("s_mov_b64 exec, 0xff")
A(f"buffer_load_dwordx4 v29, s[{sX}:{sX+3}], s18 offen offset:1024 lds")
A("s_cmp_lg_u32 s2, 0")
A("s_cbranch_scc1 L_NOZ")
A(f"global_store_dword v14, v13, s[{sWS}:{sWS+1}] offset:{YC_OFF} sc1")
A("L_NOZ:")
A("s_mov_b64 exec, -1")
A("L_NOXL:")
A("s_barrier")
setsrd(sSC, 18*9216); setsrd(sZ, 18*9216); setsrd(sWS, WS_BYTES)
A("v_mul_u32_u24 v27, 8928, v27")
A("v_add_u32 v27, v27, v29")
A("s_mul_i32 s16, s4, 9")
A("s_lshr_b32 s16, s16, 2")
A("s_mul_i32 s16, s16, 9216")
A("s_mul_i32 s17, s5, 288")
A("s_add_u32 s16, s16, s17")
A(f"s_mov_b32 m0, {SCL}")
A("s_mov_b32 exec_hi, 0x3fffff")
A("s_waitcnt lgkmcnt(0)")
load_tags()
A(f"buffer_load_dwordx4 v27, s[{sSC}:{sSC+3}], s16 offen lds")
A(f"s_mov_b32 m0, {ZL}")
A("s_nop 0")
A(f"buffer_load_dwordx4 v27, s[{sZ}:{sZ+3}], s16 offen lds")
NPT = 0
if PT:
    A("s_mov_b64 exec, 3")
    if "v" in PT:
        A("s_mul_i32 s20, s5, 144*9216")
        A(f"v_mul_u32_u24 v30, {144*9216-4}, v2")
        A("v_add_u32 v30, s20, v30")
        A(f"global_load_dword v31, v30, s[{sV}:{sV+1}]"); NPT += 1
    if "w" in PT:
        A(f"v_mul_u32_u24 v30, {(4<<20)-1024}, v2")
        A(f"global_load_dword v32, v30, s[{sWS}:{sWS+1}] offset:512"); NPT += 1
    if "o" in PT:
        A(f"global_load_dword v33, v13, s[{sOUT}:{sOUT+1}]"); NPT += 1
    if "q" in PT:
        A("s_mul_i32 s20, s4, 72*18432")
        A(f"s_add_u32 s20, s20, {72*18432-4}")
        A("v_mov_b32 v30, s20")
        A(f"global_load_dword v34, v30, s[{sQW}:{sQW+1}]"); NPT += 1
A("s_mov_b64 exec, -1")
A("s_branch L_SYNC")

ROLE[0] = "L"
A("L_QDONE:")
A("s_mov_b32 exec_hi, -1")
ST(1)
setsrd(sV, 4608*9216); setsrd(sWS, WS_BYTES)
swz(); vaddr(); logid()
A("v_mov_b32 v26, 1")
A(f"s_add_u32 s12, s20, {128*9216}")
A(f"s_mov_b32 s15, {VL}")
A("s_mov_b32 s16, 0")
A("s_waitcnt lgkmcnt(0)")
if DG:
    A("s_lshl_b32 s13, s2, 2")
    A("v_mov_b32 v40, s13")
    A("v_mov_b32 v41, s66")
    A("s_mov_b32 s62, s66")
    A("s_mov_b64 exec, 1")
    A(f"buffer_store_dword v41, v40, s[{sWS}:{sWS+3}], 0 offen offset:2048 sc1")
    A("s_mov_b64 exec, -1")
A(f"s_add_u32 s66, s66, {TA}")
def vround(depth):
    for cg in range(9):
        A(f"s_add_u32 m0, s15, {cg*1024 - cg*128}")
        A(f"s_waitcnt vmcnt({depth-1})")
        A(f"buffer_load_dwordx4 v11, s[{sV}:{sV+3}], s12 offen offset:{cg*128} nt lds")
A("L_V1:")
vround(D1)
if HY: A("s_mov_b32 s13, 0")
A("L_VT:")
A(f"s_add_u32 s12, s12, {8*9216}")
A("s_cmp_eq_u32 s16, 0")
A("s_cselect_b32 s12, s20, s12")
A("s_add_u32 s15, s15, 9216")
A("s_memrealtime s[68:69]")
if D2: A(f"ds_read_b32 v35, v13 offset:{C_A}")
A("s_add_u32 s16, s16, 1")
A("v_mov_b32 v34, s16")
A(f"ds_write_b32 v13, v34 offset:{PROG}")
A(f"s_cmp_eq_u32 s16, {RND}")
A("s_cbranch_scc0 L_VNQ")
A(f"s_waitcnt vmcnt({9*RND})")
A(f"ds_write_b32 v13, v26 offset:{R_Q}")
if DG:
    A("s_memrealtime s[64:65]")
    A("s_waitcnt lgkmcnt(0)")
    A("v_mov_b32 v41, s64")
    A(f"ds_write_b32 v13, v41 offset:{CNT + 64 + 4*0}")
ST(2)
A("L_VNQ:")
A("s_cmp_eq_u32 s16, 10")
A("s_cbranch_scc0 L_VNW")
ldspin("L_WQ", C_Q, 9)
A("L_VNW:")
A("s_cmp_eq_u32 s16, 17")
A("s_cbranch_scc1 L_VEND")
A("s_waitcnt lgkmcnt(0)")
A("s_sub_u32 s67, s68, s66")
if HY: A("s_add_u32 s67, s67, s13")
A(f"s_add_u32 s66, s66, {TBk}")
A("s_cmp_lt_i32 s67, 0")
A("s_cbranch_scc1 L_V1")
if D2:
    A("v_readfirstlane_b32 s23, v35")
    A("s_cmp_ge_u32 s23, 9")
    A("s_cbranch_scc1 L_V3")
    vround(D2)
    A("s_branch L_VT")
    A("L_V3:")
vround(D3)
if HY:
    A(f"s_add_u32 s13, s13, {TBk*HY//100}")
    A(f"s_min_u32 s13, s13, {(D3-D1)*TBk*HY//900}")
A("s_branch L_VT")
A("L_VEND:")
A("v_lshlrev_b32 v12, 10, v2")
A("s_lshl_b32 s16, s4, 7")
A(f"s_add_u32 s20, s{sWS}, s16")
A(f"s_addc_u32 s21, s{sWS+1}, 0")
A(f"s_add_u32 s16, s16, {FL_OFF + 64}")
flagline()
A("s_mov_b32 s17, 1")
if DG:
    A("s_memrealtime s[64:65]")
    A("s_waitcnt lgkmcnt(0)")
    A("v_mov_b32 v41, s64")
    A(f"ds_write_b32 v13, v41 offset:{CNT + 64 + 4*1}")
ST(3)
A("s_waitcnt vmcnt(36)")
ST(4)
A("s_barrier")
if DG:
    A("s_memrealtime s[64:65]")
    A("s_waitcnt lgkmcnt(0)")
    A("v_mov_b32 v41, s64")
    A(f"ds_write_b32 v13, v41 offset:{CNT + 64 + 4*2}")
ST(5)
A(f"ds_read_b32 v14, v13 offset:{R_E}")
A(f"s_waitcnt vmcnt({TK})")
A(f"s_atomic_add s17, s[20:21], {YC_OFF} glc")
A("s_waitcnt vmcnt(0)")
ST(6)
A("s_barrier")
A("s_waitcnt lgkmcnt(0)")
A("v_readfirstlane_b32 s7, v14")
A("s_cmp_lg_u32 s17, 31")
A("s_cbranch_scc1 L_NOTLAST")
A("s_mov_b32 exec_hi, 0")
A(f"buffer_store_dword v14, v12, s[{sWS}:{sWS+3}], s16 offen sc1")
A("L_NOTLAST:")
ST(7)
A(f"s_mov_b32 s22, {SPIN}")
if PP: A("s_not_b32 s23, s7")
A("L_YFL:")
A("s_load_dword s23, s[18:19], 64 glc")
if PP: A(f"s_sleep {PP}")
else: A("s_waitcnt lgkmcnt(0)")
A("s_cmp_eq_u32 s23, s7")
A("s_cbranch_scc1 L_YFLD")
A("s_sub_u32 s22, s22, 1")
A("s_cbranch_scc0 L_YFL")
A("L_YFLD:")
A("s_barrier")
if STAMPS:
    A("; STAMPDUMP 0 8")
A("L_END:")
A("s_endpgm")

def lanes():
    A(f"v_mov_b32 v5, {0xffffffff ^ TM:#x}")
    A("v_lshrrev_b32 v3, 4, v2")
    A("v_and_b32 v4, 15, v2")
    A("v_bfe_u32 v6, v2, 2, 2")
    A("v_and_b32 v7, 3, v2")
    masks()
    logid()
ROLE[0] = "S"
A("L_SYNC:")
A("s_setprio 3")
A("v_mov_b32 v17, 1")
lanes()
flagline()
A("v_lshrrev_b32 v14, 2, v2")
A("v_mul_u32_u24 v15, 576, v7")
A("v_add_lshl_u32 v15, v15, v14, 4")
A("s_mul_i32 s17, s4, 72*16")
A(f"s_add_u32 s17, s17, {XP_OFF}")
A("v_lshl_add_u32 v16, v6, 2, v7")
A("v_mul_u32_u24 v16, 48, v16")
A("v_lshl_add_u32 v16, v3, 1, v16")
A("s_lshl_b32 s68, s5, 7")
A(f"s_add_u32 s68, s68, {AG_OFF}")
A(f"s_add_u32 s68, s{sWS}, s68")
A(f"s_addc_u32 s69, s{sWS+1}, 0")
A("s_getreg_b32 s66, hwreg(HW_REG_XCC_ID, 0, 4)")
A("s_mov_b64 exec, 1")
A(f"s_waitcnt vmcnt({2+NPT})")
A(f"ds_add_u32 v13, v17 offset:{C_U}")
A("s_mov_b64 exec, -1")
A("s_waitcnt lgkmcnt(0)")
make_tags()
A("v_mov_b32 v18, s7")
A(f"ds_write_b32 v13, v18 offset:{R_E}")
A("s_lshl_b32 s67, s7, 4")
A("s_or_b32 s66, s66, s67")
A("s_lshl_b32 s67, s4, 2")
A("s_atomic_swap s66, s[68:69], s67")
A("v_mov_b32 v18, 2")
A(f"s_waitcnt vmcnt({NPT})")
A(f"ds_write_b32 v13, v18 offset:{R_U}")
ST(1)
def spoll(nm, off):
    A(f"s_mov_b32 s22, {SPIN}")
    A(f"L_SP{nm}:")
    A(f"s_load_dwordx8 s[8:15], s[18:19], {off} glc")
    A("s_waitcnt lgkmcnt(0)")
    for i in range(8): A(f"s_xor_b32 s{8+i}, s{8+i}, s7")
    A("s_or_b64 s[8:9], s[8:9], s[10:11]")
    A("s_or_b64 s[12:13], s[12:13], s[14:15]")
    A("s_or_b64 s[8:9], s[8:9], s[12:13]")
    A(f"s_cbranch_scc0 L_SP{nm}D")
    A("s_sub_u32 s22, s22, 1")
    A(f"s_cbranch_scc0 L_SP{nm}")
    A(f"L_SP{nm}D:")
spoll("X", 0)
ST(2)
G = 20
A(f"s_mov_b32 s22, {SPIN}")
A("L_XPOLL:")
for u in range(5):
    if u == 4: A("s_mov_b32 exec_hi, 0")
    A(f"buffer_load_dwordx4 v[{G+4*u}:{G+4*u+3}], v15, s[{sWS}:{sWS+3}], s17 offen offset:{256*u} sc1")
A(f"s_mov_b32 s23, {SPIN}")
A("L_AGP:")
A("s_load_dwordx8 s[8:15], s[68:69], 0 glc")
A("s_waitcnt lgkmcnt(0)")
for i in range(8): A(f"s_xor_b32 s{8+i}, s{8+i}, s66")
A("s_or_b64 s[8:9], s[8:9], s[10:11]")
A("s_or_b64 s[12:13], s[12:13], s[14:15]")
A("s_or_b64 s[8:9], s[8:9], s[12:13]")
A("s_or_b32 s8, s8, s9")
A("s_cmp_lt_u32 s8, 16")
A("s_cbranch_scc1 L_AGD")
A("s_sub_u32 s23, s23, 1")
A("s_cbranch_scc0 L_AGP")
A("L_AGD:")
A("s_cmp_eq_u32 s8, 0")
A("s_cselect_b32 s67, 2, 1")
A("s_mov_b32 exec_hi, -1")
A("v_mov_b32 v44, 0")
A("v_mov_b32 v19, s67")
A("s_mov_b32 exec_hi, 0")
A("s_waitcnt vmcnt(0)")
check(G+16, 44)
A("s_mov_b32 exec_hi, -1")
for u in range(4): check(G+4*u, 40+u)
A("v_or3_b32 v40, v40, v41, v42")
A("v_or3_b32 v40, v40, v43, v44")
A(f"v_and_b32 v40, {TM:#x}, v40")
A("v_cmp_ne_u32 vcc, 0, v40")
A("s_cmp_eq_u64 vcc, 0")
A("s_cbranch_scc1 L_XDONE")
A("s_sub_u32 s22, s22, 1")
A("s_cbranch_scc0 L_XPOLL")
A("L_XDONE:")
ST(3)
for qp in ("[1,0,3,2]", "[2,3,0,1]"):
    for i in range(20):
        A(f"v_add_f32_dpp v{G+i}, v{G+i}, v{G+i} quad_perm:{qp} row_mask:0xf bank_mask:0xf")
for u in range(5): sel4(G+4*u)
A(f"v_cvt_pk_bf16_f32 v{G}, v{G}, v{G+4}")
A(f"v_cvt_pk_bf16_f32 v{G+8}, v{G+8}, v{G+12}")
A(f"v_cvt_pk_bf16_f32 v{G+16}, v{G+16}, v{G+16}")
A(f"ds_write_b16 v16, v{G} offset:{XR}")
A(f"ds_write_b16_d16_hi v16, v{G} offset:{XR+8}")
A(f"ds_write_b16 v16, v{G+8} offset:{XR+16}")
A(f"ds_write_b16_d16_hi v16, v{G+8} offset:{XR+24}")
A("s_mov_b32 exec_hi, 0")
A(f"ds_write_b16 v16, v{G+16} offset:{XR+32}")
A(f"ds_write_b32 v13, v19 offset:{R_X}")
ST(4)
A("s_cmp_eq_u32 s67, 1")
A("s_cbranch_scc1 L_GLOBH")
ldspin("L_PHL", PROG, PH)
A("s_branch L_SEND")
A("L_GLOBH:")
spoll("H", 32)
A("L_SEND:")
A(f"ds_write_b32 v13, v17 offset:{R_H}")
ST(5)
if STAMPS:
    A("s_waitcnt vmcnt(0) lgkmcnt(0)")
    A("; STAMPDUMP 0 6")
A("s_endpgm")

ROLE[0] = "C"
A("L_COMP:")
setsrd(sWS, WS_BYTES); setsrd(sV, 4608*9216); setsrd(sOUT, 4*9216)
lanes()
vaddr()
A("s_sub_u32 s6, s6, 2")
A("v_and_b32 v89, 1, v3")
A("v_lshl_add_u32 v89, v89, 2, v6")
A("v_lshlrev_b32 v88, 7, v89")
A("v_lshl_add_u32 v88, v7, 3, v88")
A("v_lshrrev_b32 v89, 1, v89")
A("v_lshrrev_b32 v90, 1, v3")
A("v_mov_b32 v60, 1")
A("v_lshlrev_b32 v55, 4, v2")
SZ = 64
ST(1)
A("s_cmp_ge_u32 s2, 36")
A("s_cbranch_scc1 L_NOX")
A("s_cmp_lt_u32 s6, 4")
A("s_cbranch_scc1 L_XJOB")
A("s_mov_b64 exec, 1")
A("s_waitcnt vmcnt(0)")
A(f"ds_add_u32 v13, v60 offset:{C_U}")
A("s_mov_b64 exec, -1")
A("s_branch L_NOX")
A("L_XJOB:")
A("s_setprio 2")
XA = 16
XB = 100
A("v_mul_u32_u24 v15, 288, v7")
A("v_lshl_add_u32 v15, v3, 3, v15")
A(f"v_add_u32 v15, {XL}, v15")
A(f"v_mov_b32 v{XA+18}, 0"); A(f"v_mov_b32 v{XA+19}, 0")
A("v_xor_b32 v56, s6, v89")
A("v_lshl_add_u32 v56, v56, 5, v88")
A("v_lshl_add_u32 v56, v90, 10, v56")
A(f"v_add_u32 v56, {UL}, v56")
A(f"v_mov_b32 v{XB+18}, 0"); A(f"v_mov_b32 v{XB+19}, 0")
A("s_mul_i32 s17, s10, 576*16")
A("s_lshl_b32 s18, s11, 10")
A("s_add_u32 s17, s17, s18")
A("s_lshl_b32 s18, s6, 8")
A("s_add_u32 s17, s17, s18")
A(f"s_add_u32 s17, s17, {XP_OFF}")
A("v_and_b32 v57, 31, v2")
A("v_lshlrev_b32 v57, 10, v57")
A("v_lshrrev_b32 v58, 5, v2")
A("v_mul_u32_u24 v58, 124, v58")
A("v_sub_u32 v57, v57, v58")
A("v_add_u32 v57, 128, v57")
A("s_lshl_b32 s18, s11, 7")
A("s_lshl_b32 s19, s10, 3")
A("s_add_u32 s18, s18, s19")
A(f"s_add_u32 s18, s18, {FL_OFF - 128}")
A("s_cmp_eq_u32 s11, 8")
A("s_cselect_b32 s8, 0, -1")
A("s_cmp_eq_u32 s11, 0")
A("s_cselect_b32 s9, 0, -1")
A("s_waitcnt lgkmcnt(0)")
make_tags()
A("v_mov_b32 v58, s7")
A("s_mov_b64 exec, 1")
A("s_waitcnt vmcnt(0)")
A(f"ds_add_u32 v13, v60 offset:{C_U}")
A("s_mov_b64 exec, -1")
ldspin("L_RU", C_U, 10)
for t in range(5):
    if t < 4: A(f"ds_read2_b64 v[{XA+4*t}:{XA+4*t+3}], v15 offset0:{8*t} offset1:{8*t+4}")
    else: A(f"ds_read_b64 v[{XA+4*t}:{XA+4*t+1}], v15 offset:{64*t}")
    A(f"ds_read_b64_tr_b16 v[{XB+4*t}:{XB+4*t+1}], v56 offset:{4*t*1024}")
    if t < 4: A(f"ds_read_b64_tr_b16 v[{XB+4*t+2}:{XB+4*t+3}], v56 offset:{(4*t+2)*1024}")
for t in range(5):
    A(f"s_waitcnt lgkmcnt({max(0, 11-3*t)})")
    c = "0" if t == 0 else "v[40:43]"
    A(f"v_mfma_f32_16x16x32_bf16 v[40:43], v[{XA+4*t}:{XA+4*t+3}], v[{XB+4*t}:{XB+4*t+3}], {c}")
A("s_mov_b64 exec, 0xffff")
A("s_nop 6")
tag(40)
A(f"buffer_store_dwordx4 v[40:43], v55, s[{sWS}:{sWS+3}], s17 offen sc1")
A("s_mov_b64 exec, 1")
A(f"ds_add_rtn_u32 v14, v13, v60 offset:{C_XW}")
A("s_waitcnt lgkmcnt(0)")
A("v_readfirstlane_b32 s23, v14")
A("s_cmp_lg_u32 s23, 3")
A("s_cbranch_scc1 L_XNF")
A("s_mov_b64 exec, s[8:9]")
A(f"buffer_store_dword v58, v57, s[{sWS}:{sWS+3}], s18 offen sc1")
A("L_XNF:")
A("s_mov_b64 exec, -1")
A("s_setprio 0")
A("s_branch L_XEND")
A("L_NOX:")
A("s_waitcnt lgkmcnt(0)")
make_tags()
A("L_XEND:")
ST(2)
A("v_mul_u32_u24 v15, 576, v3")
A("v_lshl_add_u32 v15, v4, 2, v15")
A("s_lshl_b32 s12, s6, 6")
A(f"s_add_u32 s12, s12, {QL}")
A("v_add_u32 v15, s12, v15")
A("v_lshl_add_u32 v56, v3, 2, v7")
A("v_mul_u32_u24 v56, 48, v56")
A("s_and_b32 s12, s4, 3")
for k in (1, 2, 3):
    A(f"s_cmp_ge_u32 s12, {k}")
    A(f"s_cselect_b64 s[{12+2*k}:{13+2*k}], -1, 0")
A("v_lshlrev_b32 v57, 1, v4")
A("s_lshl_b32 s12, s6, 5")
A("v_add_u32 v57, s12, v57")
ldspin("L_RU2", R_U, 2)
for g in range(3):
    A(f"ds_read_u16 v{SZ+g}, v57 offset:{SCL + 288*g}")
    A(f"ds_read_u16 v{SZ+3+g}, v57 offset:{ZL + 288*g}")
A("s_waitcnt lgkmcnt(0)")
for g in range(6): A(f"v_lshlrev_b32 v{SZ+g}, 16, v{SZ+g}")
SP, ZP = 70, 79
def pairsz(p):
    base = p >> 2
    r = p & 3
    if r == 0: return SZ+base, SZ+3+base
    return SP+p, ZP+p
for p in range(9):
    base, r = p >> 2, p & 3
    if r:
        k = 4 - r
        A(f"v_cndmask_b32 v{SP+p}, v{SZ+base}, v{SZ+base+1}, s[{12+2*k}:{13+2*k}]")
        A(f"v_cndmask_b32 v{ZP+p}, v{SZ+3+base}, v{SZ+3+base+1}, s[{12+2*k}:{13+2*k}]")
QW = 16
B = 36
AX = 100
for r in (B+9, B+10, B+11, AX+9, AX+10, AX+11): A(f"v_mov_b32 v{r}, 0")
A("s_mul_i32 s18, s3, 2304")
A("s_lshl_b32 s19, s6, 8")
A("s_add_u32 s18, s18, s19")
A(f"s_add_u32 s18, s18, {HP_OFF}")
A("s_mul_i32 s17, s5, 8*2304")
A("s_add_u32 s17, s17, s19")
A(f"s_add_u32 s17, s17, {HP_OFF}")
A("v_lshlrev_b32 v61, 7, v2")
A("v_mov_b32 v62, s7")
A("s_lshl_b32 s16, s5, 10")
A("s_lshl_b32 s19, s4, 2")
A("s_add_u32 s16, s16, s19")
A(f"s_add_u32 s16, s16, {FL_OFF + 32}")
ldspin("L_RQ", R_Q, 1)
ST(3)
for p in range(9):
    A(f"ds_read2st64_b32 v[{QW+2*p}:{QW+2*p+1}], v15 offset0:{18*p} offset1:{18*p+9}")
for p in range(9):
    A(f"s_waitcnt lgkmcnt({8-p})")
    if p == 8:
        A("s_mov_b64 exec, 1")
        A(f"ds_add_u32 v13, v60 offset:{C_Q}")
        A("s_mov_b64 exec, -1")
    r0, r1 = QW+2*p, QW+2*p+1
    sr, zr = pairsz(p)
    A(f"v_cvt_f32_i32 v{r0}, v{r0}")
    A(f"v_cvt_f32_i32 v{r1}, v{r1}")
    A(f"v_sub_f32 v{r0}, v{r0}, v{zr}")
    A(f"v_sub_f32 v{r1}, v{r1}, v{zr}")
    A(f"v_cvt_pk_bf16_f32 v{r1}, v{r0}, v{r1}")
    A(f"v_lshlrev_b32 v{r0}, 16, v{r1}")
    A(f"v_and_b32 v{r1}, 0xffff0000, v{r1}")
    A(f"v_mul_f32 v{r0}, v{r0}, v{sr}")
    A(f"v_mul_f32 v{r1}, v{r1}, v{sr}")
    A(f"v_cvt_pk_bf16_f32 v{B+p}, v{r0}, v{r1}")
ldspin("L_RX", R_X, 1)
A(f"ds_read_b128 v[{AX}:{AX+3}], v56 offset:{XR}")
A(f"ds_read_b128 v[{AX+4}:{AX+7}], v56 offset:{XR+16}")
A(f"ds_read_b32 v{AX+8}, v56 offset:{XR+32}")
for t in range(3):
    A(f"s_waitcnt lgkmcnt({2-t})")
    c = "0" if t == 0 else "v[48:51]"
    A(f"v_mfma_f32_16x16x32_bf16 v[48:51], v[{AX+4*t}:{AX+4*t+3}], v[{B+4*t}:{B+4*t+3}], {c}")
A("s_mov_b64 exec, 0xffff")
A("s_cmp_eq_u32 s23, 2")
A("s_nop 5")
tag(48)
A("s_cbranch_scc0 L_HGL")
A(f"buffer_store_dwordx4 v[48:51], v55, s[{sWS}:{sWS+3}], s18 offen")
A("s_branch L_HNF")
A("L_HGL:")
A(f"buffer_store_dwordx4 v[48:51], v55, s[{sWS}:{sWS+3}], s18 offen sc1")
A("s_mov_b64 exec, 1")
A(f"ds_add_rtn_u32 v14, v13, v60 offset:{C_H}")
A("s_waitcnt lgkmcnt(0)")
A("v_readfirstlane_b32 s23, v14")
A("s_cmp_lg_u32 s23, 8")
A("s_cbranch_scc1 L_HNF")
A("s_mov_b64 exec, 0xff")
A(f"buffer_store_dword v62, v61, s[{sWS}:{sWS+3}], s16 offen sc1")
A("L_HNF:")
A("s_mov_b64 exec, -1")
REM = 112
A("s_lshl_b32 s21, s6, 7")
A("s_add_u32 s20, s20, s21")
A(f"s_add_u32 s20, s20, {136*9216}")
A(f"buffer_load_dwordx4 v[{REM}:{REM+3}], v11, s[{sV}:{sV+3}], s20 offen nt")
ST(4)
A("v_mul_u32_u24 v96, 2304, v10")
A("v_lshl_add_u32 v96, v8, 4, v96")
A("v_lshrrev_b32 v58, 2, v8")
A("v_lshlrev_b32 v58, 6, v58")
A("v_lshl_add_u32 v58, v7, 4, v58")
A("v_and_b32 v59, 3, v8")
A("v_lshl_add_u32 v58, v59, 1, v58")
A("s_lshr_b32 s18, s6, 1")
A("s_lshl_b32 s18, s18, 8")
A("s_and_b32 s19, s6, 1")
A("s_lshl_b32 s19, s19, 3")
A("s_add_u32 s18, s18, s19")
A("v_add_u32 v97, s18, v58")
A("v_mov_b32 v9, v55")
A("v_mov_b32 v15, v60")
AV = 16
def areg(t, i=0): return AV + 4*t
A("v_mul_u32_u24 v98, 9216, v90")
A("v_add_u32 v98, v98, v88")
A("s_lshl_b32 s18, s6, 10")
A(f"s_add_u32 s18, s18, {VL}")
A("v_add_u32 v98, s18, v98")
TRA, TRB = 100, 104
for i in range(4):
    A(f"v_xor_b32 v99, {i}, v89")
    A(f"v_lshl_add_u32 v{TRA+i}, v99, 5, v98")
    A(f"v_add_u32 v{TRB+i}, 73728, v{TRA+i}")
A("v_add_u32 v99, s18, v9")
A("v_lshlrev_b32 v98, 6, v3")
A("v_lshl_add_u32 v98, v7, 4, v98")
A("v_mov_b32 v34, 0"); A("v_mov_b32 v35, 0")
A(f"v_mov_b32 v117, {1 << (TB-1):#x}")
A("s_lshl_b32 s16, s4, 5")
A("s_add_u32 s14, s16, s5")
A("s_mul_i32 s14, s14, 9216")
A("s_lshl_b32 s19, s6, 10")
A("s_add_u32 s14, s14, s19")
A(f"s_add_u32 s14, s14, {YP_OFF}")
A("v_subrev_u32 v8, 128, v0")
A("v_mul_u32_u24 v10, 3641, v8")
A("v_lshrrev_b32 v10, 16, v10")
A("v_mul_u32_u24 v10, 8928, v10")
A("v_lshlrev_b32 v11, 4, v8")
A("v_add_u32 v10, v10, v11")
A("s_mul_i32 s16, s16, 9216")
A("s_mul_i32 s19, s5, 288")
A("s_add_u32 s16, s16, s19")
A(f"s_add_u32 s16, s16, {YP_OFF}")
A("v_and_b32 v1, 7, v8")
A("v_mul_u32_u24 v1, 288, v1")
A("v_lshrrev_b32 v8, 3, v8")
A("v_lshl_add_u32 v1, v8, 2, v1")
A(f"v_add_u32 v1, {VL}, v1")
A("v_and_b32 v12, 3, v8")
A("v_mul_u32_u24 v12, 9216, v12")
A("v_lshrrev_b32 v8, 2, v8")
A("v_lshl_add_u32 v12, v8, 1, v12")
A("s_mul_i32 s15, s4, 1152")
A("s_mul_i32 s19, s5, 36")
A("s_add_u32 s15, s15, s19")
BT = 48
ldspin("L_RH", R_H, 1)
H0, H1 = 48, 52
A(f"s_mov_b32 s22, {SPIN}")
A("L_HPOLL:")
A(f"buffer_load_dwordx4 v[{H0}:{H0+3}], v96, s[{sWS}:{sWS+3}], s17 offen sc1")
A(f"buffer_load_dwordx4 v[{H1}:{H1+3}], v96, s[{sWS}:{sWS+3}], s17 offen offset:128 sc1")
A("s_waitcnt vmcnt(0)")
check(H0, 56)
check(H1, 57)
A("v_or_b32 v56, v56, v57")
A(f"v_and_b32 v56, {TM:#x}, v56")
A("v_cmp_ne_u32 vcc, 0, v56")
A("s_and_b64 exec, vcc, vcc")
A("s_cbranch_scc0 L_HDONE")
A("s_sub_u32 s22, s22, 1")
A("s_cbranch_scc0 L_HPOLL")
A("L_HDONE:")
A("s_mov_b64 exec, -1")
ST(5)
for dp in ("quad_perm:[1,0,3,2]", "quad_perm:[2,3,0,1]", "row_half_mirror"):
    for i in range(8):
        A(f"v_add_f32_dpp v{H0+i}, v{H0+i}, v{H0+i} {dp} row_mask:0xf bank_mask:0xf")
sel4(H0); sel4(H1)
A(f"v_cvt_pk_bf16_f32 v{H0}, v{H0}, v{H1}")
A(f"ds_write_b16 v97, v{H0} offset:{HA}")
A(f"ds_write_b16_d16_hi v97, v{H0} offset:{HA+128}")
A("s_mov_b64 exec, 1")
A(f"ds_add_u32 v13, v15 offset:{C_A}")
A("s_mov_b64 exec, -1")
ldspin("L_CA", C_A, 9)
for t in range(4):
    a = areg(t)
    A(f"ds_read_b128 v[{a}:{a+3}], v98 offset:{HA + 256*t}")
A(f"ds_read_b64 v[32:33], v98 offset:{HA + 1024}")
Y = 108
YD = [36, 40, 44, 120]
def trreads(t, base):
    tr = TRA if t < 2 else TRB
    o = (1 + 4*(t % 2))*9216
    for i in range(4):
        A(f"ds_read_b64_tr_b16 v[{base+4*i}:{base+4*i+1}], v{tr+i} offset:{o}")
        A(f"ds_read_b64_tr_b16 v[{base+4*i+2}:{base+4*i+3}], v{tr+i} offset:{o + 2*9216}")
def mf(t, i, base, first=False):
    a = areg(t); d = YD[i]
    c = "0" if first else f"v[{d}:{d+3}]"
    A(f"v_mfma_f32_16x16x32_bf16 v[{d}:{d+3}], v[{a}:{a+3}], v[{base+4*i}:{base+4*i+3}], {c}")
def mfmas(t, base, first=False):
    for i in range(4): mf(t, i, base, first)
def kstep(t, base):
    trreads(t, base)
    for i in range(4):
        A(f"s_waitcnt lgkmcnt({6-2*i})")
        mf(t, i, base)
LG = (max(D1, D3) + 8)//9
ST(6)
ldspin("L_EB", PROG, 9 + LG)
trreads(0, BT)
A(f"ds_write_b128 v99, v[{REM}:{REM+3}] offset:9216")
trreads(1, BT+16)
for i in range(4):
    A(f"v_mov_b32 v{BT+32+4*i+2}, 0"); A(f"v_mov_b32 v{BT+32+4*i+3}, 0")
A("s_waitcnt lgkmcnt(9)")
mfmas(0, BT, True)
for i in range(4):
    A(f"ds_read_b64_tr_b16 v[{BT+32+4*i}:{BT+32+4*i+1}], v{TRA+i}")
A("s_waitcnt lgkmcnt(4)")
mfmas(1, BT+16)
A("s_waitcnt lgkmcnt(0)")
mfmas(4, BT+32)
A(f"s_mov_b32 s22, {SPIN}")
A("s_barrier")
ST(7)
kstep(2, BT)
ST(8)
A("s_barrier")
ST(9)
kstep(3, BT+16)
A("s_nop 1")
for g in range(4):
    for r in range(4):
        A(f"v_add_u32_dpp v{Y+r}, v{YD[g]+r}, v117 quad_perm:[0,1,2,3] row_mask:{1 << g:#x} bank_mask:0xf")
for i in range(4): A(f"v_and_or_b32 v{Y+i}, v{Y+i}, v5, s{60+i}")
A(f"buffer_store_dwordx4 v[{Y}:{Y+3}], v9, s[{sWS}:{sWS+3}], s14 offen sc1")
ST(10)
A("s_barrier")
YG = 112
A("s_branch L_YP0")
A("L_YPOLL:")
A("s_sleep 2")
A("L_YP0:")
A(f"buffer_load_dwordx4 v[{YG}:{YG+3}], v10, s[{sWS}:{sWS+3}], s16 offen sc1")
A("s_waitcnt vmcnt(0)")
check(YG, 116)
A(f"v_and_b32 v116, {TM:#x}, v116")
A("v_cmp_ne_u32 vcc, 0, v116")
A("s_and_b64 exec, vcc, vcc")
A("s_cbranch_scc0 L_YDONE")
A("s_sub_u32 s22, s22, 1")
A("s_cbranch_scc0 L_YPOLL")
A("L_YDONE:")
A("s_mov_b64 exec, -1")
ST(11)
A(f"ds_write_b128 v11, v[{YG}:{YG+3}] offset:{VL}")
A("s_waitcnt lgkmcnt(0)")
A("s_barrier")
A(f"ds_read2st64_b32 v[{YG}:{YG+1}], v1 offset0:0 offset1:9")
A(f"ds_read2st64_b32 v[{YG+2}:{YG+3}], v1 offset0:18 offset1:27")
A("s_waitcnt lgkmcnt(0)")
A(f"v_add_f32 v{YG}, v{YG}, v{YG+1}")
A(f"v_add_f32 v{YG+2}, v{YG+2}, v{YG+3}")
A(f"v_add_f32 v{YG}, v{YG}, v{YG+2}")
for dp in ("quad_perm:[1,0,3,2]", "quad_perm:[2,3,0,1]", "row_half_mirror"):
    A("s_nop 1")
    A(f"v_add_f32_dpp v{YG}, v{YG}, v{YG} {dp} row_mask:0xf bank_mask:0xf")
A(f"v_cvt_pk_bf16_f32 v{YG}, v{YG}, v{YG}")
A("s_mov_b32 exec_lo, 0x01010101")
A("s_mov_b32 exec_hi, 0x01010101")
A(f"buffer_store_short v{YG}, v12, s[{sOUT}:{sOUT+3}], s15 offen")
A("s_or_b32 s19, s2, s6")
A("s_cbranch_scc1 L_CEND")
A("s_mov_b64 exec, 1")
A("v_mov_b32 v14, s7")
A(f"buffer_store_dword v14, v13, s[{sWS}:{sWS+3}], 0 offen offset:{EP_OFF}")
A("L_CEND:")
if DG:
    A(f"s_cmp_lg_u32 s2, {E('DW', 100)}")
    A("s_cbranch_scc1 L_DGE")
    A("s_cmp_lg_u32 s6, 0")
    A("s_cbranch_scc1 L_DGE")
    A("s_mov_b64 exec, -1")
    A("s_memrealtime s[64:65]")
    A(f"buffer_load_dwordx4 v[20:23], v9, s[{sWS}:{sWS+3}], 0 offen offset:2048 sc1")
    A(f"ds_read_b128 v[24:27], v13 offset:{CNT + 64}")
    A("s_waitcnt vmcnt(0) lgkmcnt(0)")
    for r in range(20, 28): A(f"v_sub_u32 v{r}, s64, v{r}")
    A("v_max_u32 v28, v20, v21"); A("v_max3_u32 v28, v28, v22, v23")
    A("v_min_u32 v29, v20, v21"); A("v_min3_u32 v29, v29, v22, v23")
    A("s_mov_b32 s8, 0"); A("s_mov_b32 s9, -1")
    A("s_nop 1")
    for l in range(64):
        A(f"v_readlane_b32 s10, v28, {l}"); A(f"v_readlane_b32 s11, v29, {l}")
        A("s_max_u32 s8, s8, s10"); A("s_min_u32 s9, s9, s11")
    A("v_readfirstlane_b32 s12, v24"); A("v_readfirstlane_b32 s13, v25"); A("v_readfirstlane_b32 s14, v26")
    if DG == "span": A("s_mov_b32 s10, s8")
    elif DG == "skew": A("s_sub_u32 s10, s8, s9")
    elif DG == "rq": A("s_sub_u32 s10, s8, s12")
    elif DG == "iss": A("s_sub_u32 s10, s8, s13")
    elif DG == "b1": A("s_sub_u32 s10, s8, s14")
    elif DG[0] in "SCL":
        A("v_readfirstlane_b32 s14, v27")
        A("s_sub_u32 s10, s8, s14")
    else: A("s_mov_b32 s10, 0")
    A("s_min_u32 s10, s10, 3000")
    A(f"s_mul_i32 s10, s10, {DK}")
    A("s_add_u32 s10, s10, 300")
    A("s_add_u32 s10, s10, s64")
    A("L_DGW:")
    A("s_memrealtime s[12:13]")
    A("s_waitcnt lgkmcnt(0)")
    A("s_sub_u32 s11, s12, s10")
    A("s_cmp_lt_i32 s11, 0")
    A("s_cbranch_scc1 L_DGW")
    A("L_DGE:")
if STAMPS:
    A("s_waitcnt vmcnt(0)")
    A("; STAMPDUMP 0 12")
A("s_endpgm")
A("L_CODE_END:")

VG = 124
A('.section .rodata,"a"')
A(".p2align 6")
A(f""".amdhsa_kernel {KN}
  .amdhsa_next_free_vgpr {VG}
  .amdhsa_next_free_sgpr 102
  .amdhsa_accum_offset {(VG+3)//4*4}
  .amdhsa_group_segment_fixed_size 0
  .amdhsa_kernarg_size 72
  .amdhsa_user_sgpr_count 2
  .amdhsa_user_sgpr_kernarg_segment_ptr 1
  .amdhsa_system_sgpr_workgroup_id_x 1
  .amdhsa_float_denorm_mode_32 3
.end_amdhsa_kernel""")
dst = sys.argv[1]
if STAMPS:
    open(dst + ".pre", "w").write("\n".join(out) + "\n")
    import subprocess
    subprocess.check_call([sys.executable, "stamp.py", dst + ".pre", dst])
else:
    open(dst, "w").write("\n".join(out) + "\n")
```

```python
import sys, os
NAME = "standalone__weight_only_int_quip__decode"
KN = NAME + "_kernel"
E = lambda k, d: int(os.environ.get(k, str(d)))
D1 = E("D1", 18); D3 = E("D3", 45); TK = E("TK", 8); PH = E("PH", 8)
D2 = E("D2", 0)
HY = E("HY", 0)
PP = E("PP", 0)
PT = os.environ.get("PT", "wo")
RM = E("RM", 3)
OW = E("OW", 1)
TA = E("TA", 205); TBk = E("TBK", 32)
TB = E("TB", 10)
STAMPS = bool(os.environ.get("STAMPS"))
SPIN = 1 << 16
RND = (D1 + 8)//9
out = []
def A(s): out.append(s)
def ST(k):
    if STAMPS: A(f"; STAMP {k}")
TM = (1 << TB) - 1

XR, HA, CNT, SCL, ZL, XL, VL = 0, 768, 2048, 2304, 3328, 4352, 7168
R_U, R_Q, R_X, R_H, C_A, C_Q, C_XW, C_H, R_E, PROG, C_U = [CNT + 4*i for i in range(11)]
LDS_BYTES = VL + 17*9216
QL = LDS_BYTES - 41472
UL = QL - 18432
assert LDS_BYTES == 163840 and UL >= VL + 10*9216
EP_OFF, YC_OFF, XP_OFF, AG_OFF, FL_OFF, HP_OFF, YP_OFF, WS_BYTES = 0, 1024, 4096, 49152, 65536, 131072, 1 << 20, 4 << 20

A(f"""; Kernarg layout for this problem (72 bytes, ptrs only, base s[0:1]):
; @launch grid=(256,1,1) block=(704,1,1) lds={LDS_BYTES}
.amdgcn_target "amdgcn-amd-amdhsa--gfx950"
.text
.globl {KN}
.p2align 8
.type {KN},@function
{KN}:""")

sQW, sSC, sZ, sV, sWS, sOUT, sU, sX = 24, 28, 32, 36, 40, 44, 48, 52
def kl(r, off): A(f"s_load_dwordx2 s[{r}:{r+1}], s[0:1], {off}")
def setsrd(r, nb):
    A(f"s_mov_b32 s{r+2}, {nb}")
    A(f"s_mov_b32 s{r+3}, 0x00020000")
def load_tags(): A(f"s_load_dword s7, s[{sWS}:{sWS+1}], {EP_OFF}")
def make_tags():
    step = (1 << TB) * 31 // 100
    for i in range(4):
        A(f"s_add_u32 s{60+i}, s7, {1 + i*step}")
        A(f"s_and_b32 s{60+i}, s{60+i}, {TM:#x}")
    A("s_add_u32 s7, s7, 1")
def tag(r):
    for i in range(4): A(f"v_add_u32 v{r+i}, {1 << (TB-1):#x}, v{r+i}")
    for i in range(4): A(f"v_and_or_b32 v{r+i}, v{r+i}, v5, s{60+i}")
def check(r, t):
    for i in range(4): A(f"v_xor_b32 v{r+i}, s{60+i}, v{r+i}")
    A(f"v_or3_b32 v{t}, v{r}, v{r+1}, v{r+2}")
    A(f"v_or_b32 v{t}, v{t}, v{r+3}")
def masks():
    A("s_mov_b32 s56, 0x22222222"); A("s_mov_b32 s57, 0x22222222")
    A("s_mov_b32 s58, 0x44444444"); A("s_mov_b32 s59, 0x44444444")
    A("s_mov_b32 s64, 0x88888888"); A("s_mov_b32 s65, 0x88888888")
def sel4(h):
    A(f"v_cndmask_b32 v{h}, v{h}, v{h+1}, s[56:57]")
    A(f"v_cndmask_b32 v{h}, v{h}, v{h+2}, s[58:59]")
    A(f"v_cndmask_b32 v{h}, v{h}, v{h+3}, s[64:65]")
def ldspin(label, addr, target, tmp=14):
    A(f"s_mov_b32 s22, {SPIN*4}")
    A(f"{label}:")
    A(f"ds_read_b32 v{tmp}, v13 offset:{addr}")
    A("s_waitcnt lgkmcnt(0)")
    A(f"v_readfirstlane_b32 s23, v{tmp}")
    A(f"s_cmp_ge_u32 s23, {target}")
    A(f"s_cbranch_scc1 {label}_D")
    A("s_sleep 1")
    A("s_sub_u32 s22, s22, 1")
    A(f"s_cbranch_scc0 {label}")
    A(f"{label}_D:")
def swz():
    A("v_lshrrev_b32 v8, 3, v2")
    A("v_and_b32 v9, 6, v8")
    A("v_and_b32 v10, 7, v2")
    A("v_xor_b32 v9, v9, v10")
def vaddr():
    A("v_mul_u32_u24 v11, 9216, v8")
    A("v_lshl_add_u32 v11, v9, 4, v11")
    A("s_mul_i32 s20, s5, 144*9216")
    A("s_mul_i32 s21, s4, 1152")
    A("s_add_u32 s20, s20, s21")
def xids():
    A("s_mul_i32 s10, s2, 57")
    A("s_lshr_b32 s10, s10, 9")
    A("s_mul_i32 s11, s10, 9")
    A("s_sub_u32 s11, s2, s11")
def logid():
    A("s_lshl_b32 s3, s5, 3")
    A("s_add_u32 s3, s3, s4")
def flagline(r=3):
    A(f"s_lshl_b32 s18, s{r}, 7")
    A(f"s_add_u32 s18, s18, {FL_OFF}")
    A(f"s_add_u32 s18, s{sWS}, s18")
    A(f"s_addc_u32 s19, s{sWS+1}, 0")

A("s_cmp_ge_u32 s2, 256")
A("s_cbranch_scc1 L_END")
kl(sQW, 8)
A("s_getpc_b64 s[8:9]")
A("L_PC:")
A("v_lshlrev_b32 v14, 4, v0")
A("v_min_u32 v14, L_CODE_END-L_PC-4, v14")
A("global_load_dword v99, v14, s[8:9]")
kl(sU, 32); kl(sX, 0); kl(sWS, 64)
A("v_readfirstlane_b32 s6, v0")
ST(0)
A("s_bfe_u32 s4, s2, 0x30003")
A("s_and_b32 s5, s2, 7")
A("s_lshl_b32 s5, s5, 2")
A("s_lshr_b32 s3, s2, 6")
A("s_add_u32 s5, s5, s3")
A("v_and_b32 v2, 63, v0")
A("v_mov_b32 v13, 0")
A("s_lshr_b32 s6, s6, 6")
A("s_cbranch_scc1 L_NOTL")
A("s_memrealtime s[66:67]")
setsrd(sQW, 576*4608*4)
A("v_mul_u32_u24 v14, 1821, v2")
A("v_lshlrev_b32 v15, 4, v2")
A("s_movk_i32 s13, 17856")
A("s_mul_i32 s12, s4, 72*18432")
A("s_mul_i32 s14, s5, 576")
A("s_add_u32 s12, s12, s14")
A(f"s_mov_b32 m0, {QL}")
QO = 16
A(f"v_lshrrev_b32 v{QO}, 16, v14")
A(f"v_mad_u32_u24 v{QO}, v{QO}, s13, v15")
A("s_cmp_ge_u32 s2, 36")
A("s_cbranch_scc1 L_QGO")
A("s_barrier")
A("L_QGO:")
A("s_waitcnt lgkmcnt(0)")
kl(sV, 40)
for i in range(9):
    if i:
        A(f"v_add_u32 v14, {64*1821}, v14")
        if i % 4 == 0:
            A("s_add_u32 m0, m0, 4096")
            A("s_add_u32 s12, s12, 4096")
        A(f"v_lshrrev_b32 v{QO+i}, 16, v14")
        A(f"v_mad_u32_u24 v{QO+i}, v{QO+i}, s13, v15")
    A(f"buffer_load_dwordx4 v{QO+i}, s[{sQW}:{sQW+3}], s12 offen offset:{1024*(i%4)} nt lds")
A("s_mov_b32 s16, 1")
A("L_QLOOP:")
for i in range(9):
    if i % 4 == 0:
        A(f"s_add_u32 m0, m0, {4096 if i else 1024}")
        A(f"s_add_u32 s12, s12, {4096 if i else 16*18432 - 8192}")
    if i == 4:
        A("s_cmp_eq_u32 s16, 4")
        A("s_cselect_b32 exec_hi, 0, -1")
    A(f"s_waitcnt vmcnt({D1-1})")
    A(f"buffer_load_dwordx4 v{QO+i}, s[{sQW}:{sQW+3}], s12 offen offset:{1024*(i%4)} nt lds")
    if i == 4: A("s_cbranch_scc1 L_QDONE")
A("s_add_u32 s16, s16, 1")
A("s_cmp_lg_u32 s16, 2")
A("s_cbranch_scc1 L_QLOOP")
A("s_cmp_lt_u32 s2, 36")
A("s_cbranch_scc1 L_QLOOP")
A("s_barrier")
A("s_branch L_QLOOP")

A("L_NOTL:")
A("s_cmp_eq_u32 s6, 1")
A("s_cbranch_scc1 L_AUX")
A("v_lshlrev_b32 v14, 2, v2")
A(f"ds_write_b32 v14, v13 offset:{CNT}")
swz()
A("s_cmp_ge_u32 s2, 36")
A("s_cbranch_scc1 L_NOU")
xids()
setsrd(sU, 576*1152)
A("v_mul_u32_u24 v12, 1152, v8")
A("v_lshl_add_u32 v12, v9, 4, v12")
A("s_mul_i32 s14, s10, 144*1152")
A("s_lshl_b32 s13, s11, 7")
A("s_add_u32 s14, s14, s13")
A("s_mul_i32 s13, s6, 16*1152")
A("s_add_u32 s14, s14, s13")
A(f"s_sub_u32 s14, s14, {32*1152}")
A("s_lshl_b32 s13, s6, 11")
A(f"s_add_u32 m0, s13, {UL - 4096}")
A(f"s_add_u32 s15, s14, {8*1152 - 1024}")
A("s_waitcnt lgkmcnt(0)")
A(f"buffer_load_dwordx4 v12, s[{sU}:{sU+3}], s14 offen nt lds")
A(f"buffer_load_dwordx4 v12, s[{sU}:{sU+3}], s15 offen offset:1024 nt lds")
A("L_NOU:")
A("s_waitcnt lgkmcnt(0)")
kl(sV, 40); kl(sOUT, 48)
load_tags()
A("s_barrier")
A("s_branch L_COMP")
A("L_AUX:")
A("v_mul_u32_u24 v27, 3641, v2")
A("v_lshrrev_b32 v27, 16, v27")
A("v_lshlrev_b32 v29, 4, v2")
A("v_lshlrev_b32 v14, 7, v2")
A("s_cmp_ge_u32 s2, 36")
A("s_cbranch_scc1 L_NOXL")
setsrd(sX, 4*1152)
A("s_mul_i32 s10, s2, 57")
A("s_lshr_b32 s10, s10, 9")
A("v_mul_u32_u24 v28, 864, v27")
A("v_add_u32 v28, v28, v29")
A("s_mul_i32 s17, s10, 288")
A(f"s_mov_b32 m0, {XL}")
A("s_add_u32 s18, s17, 3*864")
A("s_waitcnt lgkmcnt(0)")
A(f"buffer_load_dwordx4 v28, s[{sX}:{sX+3}], s17 offen lds")
A("s_mov_b64 exec, 0xff")
A(f"buffer_load_dwordx4 v29, s[{sX}:{sX+3}], s18 offen offset:1024 lds")
A("s_cmp_lg_u32 s2, 0")
A("s_cbranch_scc1 L_NOZ")
A(f"global_store_dword v14, v13, s[{sWS}:{sWS+1}] offset:{YC_OFF} sc1")
A("L_NOZ:")
A("s_mov_b64 exec, -1")
A("L_NOXL:")
kl(sSC, 16); kl(sZ, 24)
if PT: kl(sV, 40); kl(sOUT, 48)
A("s_barrier")
setsrd(sSC, 18*9216); setsrd(sZ, 18*9216); setsrd(sWS, WS_BYTES)
A("v_mul_u32_u24 v27, 8928, v27")
A("v_add_u32 v27, v27, v29")
A("s_mul_i32 s16, s4, 9")
A("s_lshr_b32 s16, s16, 2")
A("s_mul_i32 s16, s16, 9216")
A("s_mul_i32 s17, s5, 288")
A("s_add_u32 s16, s16, s17")
A(f"s_mov_b32 m0, {SCL}")
A("s_mov_b32 exec_hi, 0x3fffff")
A("s_waitcnt lgkmcnt(0)")
load_tags()
A(f"buffer_load_dwordx4 v27, s[{sSC}:{sSC+3}], s16 offen lds")
A(f"s_mov_b32 m0, {ZL}")
A("s_nop 0")
A(f"buffer_load_dwordx4 v27, s[{sZ}:{sZ+3}], s16 offen lds")
NPT = 0
if PT:
    A("s_mov_b64 exec, 3")
    if "v" in PT:
        A("s_mul_i32 s20, s5, 144*9216")
        A(f"v_mul_u32_u24 v30, {144*9216-4}, v2")
        A("v_add_u32 v30, s20, v30")
        A(f"global_load_dword v31, v30, s[{sV}:{sV+1}]"); NPT += 1
    if "w" in PT:
        A(f"v_mul_u32_u24 v30, {(4<<20)-1024}, v2")
        A(f"global_load_dword v32, v30, s[{sWS}:{sWS+1}] offset:512"); NPT += 1
    if "o" in PT:
        A(f"global_load_dword v33, v13, s[{sOUT}:{sOUT+1}]"); NPT += 1
    if "q" in PT:
        A("s_mul_i32 s20, s4, 72*18432")
        A(f"s_add_u32 s20, s20, {72*18432-4}")
        A("v_mov_b32 v30, s20")
        A(f"global_load_dword v34, v30, s[{sQW}:{sQW+1}]"); NPT += 1
A("s_mov_b64 exec, -1")
A("s_branch L_SYNC")

A("L_QDONE:")
A("s_mov_b32 exec_hi, -1")
ST(1)
setsrd(sV, 4608*9216); setsrd(sWS, WS_BYTES)
swz(); vaddr(); logid()
A("v_mov_b32 v26, 1")
A(f"s_add_u32 s12, s20, {128*9216}")
A(f"s_mov_b32 s15, {VL}")
A("s_mov_b32 s16, 0")
A("s_waitcnt lgkmcnt(0)")
A(f"s_add_u32 s66, s66, {TA}")
def vround(depth):
    for cg in range(9):
        A(f"s_add_u32 m0, s15, {cg*1024 - cg*128}")
        A(f"s_waitcnt vmcnt({depth-1})")
        A(f"buffer_load_dwordx4 v11, s[{sV}:{sV+3}], s12 offen offset:{cg*128} nt lds")
A("L_V1:")
vround(D1)
if HY: A("s_mov_b32 s13, 0")
A("L_VT:")
A(f"s_add_u32 s12, s12, {8*9216}")
A("s_cmp_eq_u32 s16, 0")
A("s_cselect_b32 s12, s20, s12")
A("s_add_u32 s15, s15, 9216")
A("s_memrealtime s[68:69]")
if D2: A(f"ds_read_b32 v35, v13 offset:{C_A}")
A("s_add_u32 s16, s16, 1")
A("v_mov_b32 v34, s16")
A(f"ds_write_b32 v13, v34 offset:{PROG}")
A(f"s_cmp_eq_u32 s16, {RND}")
A("s_cbranch_scc0 L_VNQ")
A(f"s_waitcnt vmcnt({9*RND})")
A(f"ds_write_b32 v13, v26 offset:{R_Q}")
ST(2)
A("L_VNQ:")
A("s_cmp_eq_u32 s16, 10")
A("s_cbranch_scc0 L_VNW")
ldspin("L_WQ", C_Q, 9)
A("L_VNW:")
A("s_cmp_eq_u32 s16, 17")
A("s_cbranch_scc1 L_VEND")
A("s_waitcnt lgkmcnt(0)")
A("s_sub_u32 s67, s68, s66")
if HY: A("s_add_u32 s67, s67, s13")
A(f"s_add_u32 s66, s66, {TBk}")
A("s_cmp_lt_i32 s67, 0")
A("s_cbranch_scc1 L_V1")
if D2:
    A("v_readfirstlane_b32 s23, v35")
    A("s_cmp_ge_u32 s23, 9")
    A("s_cbranch_scc1 L_V3")
    vround(D2)
    A("s_branch L_VT")
    A("L_V3:")
vround(D3)
if HY:
    A(f"s_add_u32 s13, s13, {TBk*HY//100}")
    A(f"s_min_u32 s13, s13, {(D3-D1)*TBk*HY//900}")
A("s_branch L_VT")
A("L_VEND:")
A("v_lshlrev_b32 v12, 10, v2")
A("s_lshl_b32 s16, s4, 7")
A(f"s_add_u32 s20, s{sWS}, s16")
A(f"s_addc_u32 s21, s{sWS+1}, 0")
A(f"s_add_u32 s16, s16, {FL_OFF + 64}")
flagline(2 if OW else 3)
A("s_mov_b32 s17, 1")
ST(3)
A("s_waitcnt vmcnt(36)")
ST(4)
A("s_barrier")
ST(5)
A(f"ds_read_b32 v14, v13 offset:{R_E}")
A(f"s_waitcnt vmcnt({TK})")
A(f"s_atomic_add s17, s[20:21], {YC_OFF} glc")
A("s_waitcnt vmcnt(0)")
ST(6)
A("s_barrier")
A("s_waitcnt lgkmcnt(0)")
A("v_readfirstlane_b32 s7, v14")
A("s_cmp_lg_u32 s17, 31")
A("s_cbranch_scc1 L_NOTLAST")
A("s_mov_b32 exec_hi, 0")
A(f"buffer_store_dword v14, v12, s[{sWS}:{sWS+3}], s16 offen sc1")
A("L_NOTLAST:")
ST(7)
A(f"s_mov_b32 s22, {SPIN}")
if PP: A("s_not_b32 s23, s7")
A("L_YFL:")
A("s_load_dword s23, s[18:19], 64 glc")
if PP: A(f"s_sleep {PP}")
else: A("s_waitcnt lgkmcnt(0)")
A("s_cmp_eq_u32 s23, s7")
A("s_cbranch_scc1 L_YFLD")
A("s_sub_u32 s22, s22, 1")
A("s_cbranch_scc0 L_YFL")
A("L_YFLD:")
A("s_barrier")
if STAMPS:
    A("; STAMPDUMP 0 8")
A("L_END:")
A("s_endpgm")

def lanes():
    A(f"v_mov_b32 v5, {0xffffffff ^ TM:#x}")
    A("v_lshrrev_b32 v3, 4, v2")
    A("v_and_b32 v4, 15, v2")
    A("v_bfe_u32 v6, v2, 2, 2")
    A("v_and_b32 v7, 3, v2")
    masks()
    logid()
A("L_SYNC:")
A("s_setprio 3")
A("v_mov_b32 v17, 1")
lanes()
flagline()
A("v_lshrrev_b32 v14, 2, v2")
A("v_mul_u32_u24 v15, 576, v7")
A("v_add_lshl_u32 v15, v15, v14, 4")
A("s_mul_i32 s17, s4, 72*16")
A(f"s_add_u32 s17, s17, {XP_OFF}")
A("v_lshl_add_u32 v16, v6, 2, v7")
A("v_mul_u32_u24 v16, 48, v16")
A("v_lshl_add_u32 v16, v3, 1, v16")
A("s_lshl_b32 s68, s5, 7")
A(f"s_add_u32 s68, s68, {AG_OFF}")
A(f"s_add_u32 s68, s{sWS}, s68")
A(f"s_addc_u32 s69, s{sWS+1}, 0")
A("s_getreg_b32 s66, hwreg(HW_REG_XCC_ID, 0, 4)")
A("s_mov_b64 exec, 1")
A(f"s_waitcnt vmcnt({2+NPT})")
A(f"ds_add_u32 v13, v17 offset:{C_U}")
A("s_mov_b64 exec, -1")
A("s_waitcnt lgkmcnt(0)")
make_tags()
A("v_mov_b32 v18, s7")
A(f"ds_write_b32 v13, v18 offset:{R_E}")
A("s_lshl_b32 s67, s7, 4")
A("s_or_b32 s66, s66, s67")
A("s_lshl_b32 s67, s4, 2")
A("s_atomic_swap s66, s[68:69], s67")
A("v_mov_b32 v18, 2")
A(f"s_waitcnt vmcnt({NPT})")
A(f"ds_write_b32 v13, v18 offset:{R_U}")
ST(1)
def spoll(nm, off):
    A(f"s_mov_b32 s22, {SPIN}")
    A(f"L_SP{nm}:")
    A(f"s_load_dwordx8 s[8:15], s[18:19], {off} glc")
    A("s_waitcnt lgkmcnt(0)")
    for i in range(8): A(f"s_xor_b32 s{8+i}, s{8+i}, s7")
    A("s_or_b64 s[8:9], s[8:9], s[10:11]")
    A("s_or_b64 s[12:13], s[12:13], s[14:15]")
    A("s_or_b64 s[8:9], s[8:9], s[12:13]")
    A(f"s_cbranch_scc0 L_SP{nm}D")
    A("s_sub_u32 s22, s22, 1")
    A(f"s_cbranch_scc0 L_SP{nm}")
    A(f"L_SP{nm}D:")
spoll("X", 0)
ST(2)
G = 20
A(f"s_mov_b32 s22, {SPIN}")
A("L_XPOLL:")
for u in range(5):
    if u == 4: A("s_mov_b32 exec_hi, 0")
    A(f"buffer_load_dwordx4 v[{G+4*u}:{G+4*u+3}], v15, s[{sWS}:{sWS+3}], s17 offen offset:{256*u} sc1")
A(f"s_mov_b32 s23, {SPIN}")
A("L_AGP:")
A("s_load_dwordx8 s[8:15], s[68:69], 0 glc")
A("s_waitcnt lgkmcnt(0)")
for i in range(8): A(f"s_xor_b32 s{8+i}, s{8+i}, s66")
A("s_or_b64 s[8:9], s[8:9], s[10:11]")
A("s_or_b64 s[12:13], s[12:13], s[14:15]")
A("s_or_b64 s[8:9], s[8:9], s[12:13]")
A("s_or_b32 s8, s8, s9")
A("s_cmp_lt_u32 s8, 16")
A("s_cbranch_scc1 L_AGD")
A("s_sub_u32 s23, s23, 1")
A("s_cbranch_scc0 L_AGP")
A("L_AGD:")
A("s_cmp_eq_u32 s8, 0")
A("s_cselect_b32 s67, 2, 1")
A("s_mov_b32 exec_hi, -1")
A("v_mov_b32 v44, 0")
A("v_mov_b32 v19, s67")
A("s_mov_b32 exec_hi, 0")
A("s_waitcnt vmcnt(0)")
check(G+16, 44)
A("s_mov_b32 exec_hi, -1")
for u in range(4): check(G+4*u, 40+u)
A("v_or3_b32 v40, v40, v41, v42")
A("v_or3_b32 v40, v40, v43, v44")
A(f"v_and_b32 v40, {TM:#x}, v40")
A("v_cmp_ne_u32 vcc, 0, v40")
A("s_cmp_eq_u64 vcc, 0")
A("s_cbranch_scc1 L_XDONE")
A("s_sub_u32 s22, s22, 1")
A("s_cbranch_scc0 L_XPOLL")
A("L_XDONE:")
ST(3)
for qp in ("[1,0,3,2]", "[2,3,0,1]"):
    for i in range(20):
        A(f"v_add_f32_dpp v{G+i}, v{G+i}, v{G+i} quad_perm:{qp} row_mask:0xf bank_mask:0xf")
for u in range(5): sel4(G+4*u)
A(f"v_cvt_pk_bf16_f32 v{G}, v{G}, v{G+4}")
A(f"v_cvt_pk_bf16_f32 v{G+8}, v{G+8}, v{G+12}")
A(f"v_cvt_pk_bf16_f32 v{G+16}, v{G+16}, v{G+16}")
A(f"ds_write_b16 v16, v{G} offset:{XR}")
A(f"ds_write_b16_d16_hi v16, v{G} offset:{XR+8}")
A(f"ds_write_b16 v16, v{G+8} offset:{XR+16}")
A(f"ds_write_b16_d16_hi v16, v{G+8} offset:{XR+24}")
A("s_mov_b32 exec_hi, 0")
A(f"ds_write_b16 v16, v{G+16} offset:{XR+32}")
A(f"ds_write_b32 v13, v19 offset:{R_X}")
ST(4)
A("s_cmp_eq_u32 s67, 1")
A("s_cbranch_scc1 L_GLOBH")
ldspin("L_PHL", PROG, PH)
A("s_branch L_SEND")
A("L_GLOBH:")
spoll("H", 32)
A("L_SEND:")
A(f"ds_write_b32 v13, v17 offset:{R_H}")
ST(5)
if STAMPS:
    A("s_waitcnt vmcnt(0) lgkmcnt(0)")
    A("; STAMPDUMP 0 6")
A("s_endpgm")

A("L_COMP:")
setsrd(sWS, WS_BYTES); setsrd(sV, 4608*9216); setsrd(sOUT, 4*9216)
lanes()
vaddr()
A("s_sub_u32 s6, s6, 2")
A("v_and_b32 v89, 1, v3")
A("v_lshl_add_u32 v89, v89, 2, v6")
A("v_lshlrev_b32 v88, 7, v89")
A("v_lshl_add_u32 v88, v7, 3, v88")
A("v_lshrrev_b32 v89, 1, v89")
A("v_lshrrev_b32 v90, 1, v3")
A("v_mov_b32 v60, 1")
A("v_lshlrev_b32 v55, 4, v2")
SZ = 64
ST(1)
A("s_cmp_ge_u32 s2, 36")
A("s_cbranch_scc1 L_NOX")
A("s_cmp_lt_u32 s6, 4")
A("s_cbranch_scc1 L_XJOB")
A("s_mov_b64 exec, 1")
A("s_waitcnt vmcnt(0)")
A(f"ds_add_u32 v13, v60 offset:{C_U}")
A("s_mov_b64 exec, -1")
A("s_branch L_NOX")
A("L_XJOB:")
A("s_setprio 2")
XA = 16
XB = 100
A("v_mul_u32_u24 v15, 288, v7")
A("v_lshl_add_u32 v15, v3, 3, v15")
A(f"v_add_u32 v15, {XL}, v15")
A(f"v_mov_b32 v{XA+18}, 0"); A(f"v_mov_b32 v{XA+19}, 0")
A("v_xor_b32 v56, s6, v89")
A("v_lshl_add_u32 v56, v56, 5, v88")
A("v_lshl_add_u32 v56, v90, 10, v56")
A(f"v_add_u32 v56, {UL}, v56")
A(f"v_mov_b32 v{XB+18}, 0"); A(f"v_mov_b32 v{XB+19}, 0")
A("s_mul_i32 s17, s10, 576*16")
A("s_lshl_b32 s18, s11, 10")
A("s_add_u32 s17, s17, s18")
A("s_lshl_b32 s18, s6, 8")
A("s_add_u32 s17, s17, s18")
A(f"s_add_u32 s17, s17, {XP_OFF}")
A("v_and_b32 v57, 31, v2")
A("v_lshlrev_b32 v57, 10, v57")
A("v_lshrrev_b32 v58, 5, v2")
A("v_mul_u32_u24 v58, 124, v58")
A("v_sub_u32 v57, v57, v58")
A("v_add_u32 v57, 128, v57")
A("s_lshl_b32 s18, s11, 7")
A("s_lshl_b32 s19, s10, 3")
A("s_add_u32 s18, s18, s19")
A(f"s_add_u32 s18, s18, {FL_OFF - 128}")
A("s_cmp_eq_u32 s11, 8")
A("s_cselect_b32 s8, 0, -1")
A("s_cmp_eq_u32 s11, 0")
A("s_cselect_b32 s9, 0, -1")
A("s_waitcnt lgkmcnt(0)")
make_tags()
A("v_mov_b32 v58, s7")
A("s_mov_b64 exec, 1")
A("s_waitcnt vmcnt(0)")
A(f"ds_add_u32 v13, v60 offset:{C_U}")
A("s_mov_b64 exec, -1")
ldspin("L_RU", C_U, 10)
for t in range(5):
    if t < 4: A(f"ds_read2_b64 v[{XA+4*t}:{XA+4*t+3}], v15 offset0:{8*t} offset1:{8*t+4}")
    else: A(f"ds_read_b64 v[{XA+4*t}:{XA+4*t+1}], v15 offset:{64*t}")
    A(f"ds_read_b64_tr_b16 v[{XB+4*t}:{XB+4*t+1}], v56 offset:{4*t*1024}")
    if t < 4: A(f"ds_read_b64_tr_b16 v[{XB+4*t+2}:{XB+4*t+3}], v56 offset:{(4*t+2)*1024}")
for t in range(5):
    A(f"s_waitcnt lgkmcnt({max(0, 11-3*t)})")
    c = "0" if t == 0 else "v[40:43]"
    A(f"v_mfma_f32_16x16x32_bf16 v[40:43], v[{XA+4*t}:{XA+4*t+3}], v[{XB+4*t}:{XB+4*t+3}], {c}")
A("s_mov_b64 exec, 0xffff")
A("s_nop 6")
tag(40)
A(f"buffer_store_dwordx4 v[40:43], v55, s[{sWS}:{sWS+3}], s17 offen sc1")
A("s_mov_b64 exec, 1")
A(f"ds_add_rtn_u32 v14, v13, v60 offset:{C_XW}")
A("s_waitcnt lgkmcnt(0)")
A("v_readfirstlane_b32 s23, v14")
A("s_cmp_lg_u32 s23, 3")
A("s_cbranch_scc1 L_XNF")
A("s_mov_b64 exec, s[8:9]")
A(f"buffer_store_dword v58, v57, s[{sWS}:{sWS+3}], s18 offen sc1")
A("L_XNF:")
A("s_mov_b64 exec, -1")
A("s_setprio 0")
A("s_branch L_XEND")
A("L_NOX:")
A("s_waitcnt lgkmcnt(0)")
make_tags()
A("L_XEND:")
ST(2)
A("v_mul_u32_u24 v15, 576, v3")
A("v_lshl_add_u32 v15, v4, 2, v15")
A("s_lshl_b32 s12, s6, 6")
A(f"s_add_u32 s12, s12, {QL}")
A("v_add_u32 v15, s12, v15")
A("v_lshl_add_u32 v56, v3, 2, v7")
A("v_mul_u32_u24 v56, 48, v56")
A("s_and_b32 s12, s4, 3")
for k in (1, 2, 3):
    A(f"s_cmp_ge_u32 s12, {k}")
    A(f"s_cselect_b64 s[{12+2*k}:{13+2*k}], -1, 0")
A("v_lshlrev_b32 v57, 1, v4")
A("s_lshl_b32 s12, s6, 5")
A("v_add_u32 v57, s12, v57")
ldspin("L_RU2", R_U, 2)
for g in range(3):
    A(f"ds_read_u16 v{SZ+g}, v57 offset:{SCL + 288*g}")
    A(f"ds_read_u16 v{SZ+3+g}, v57 offset:{ZL + 288*g}")
A("s_waitcnt lgkmcnt(0)")
for g in range(6): A(f"v_lshlrev_b32 v{SZ+g}, 16, v{SZ+g}")
SP, ZP = 70, 79
def pairsz(p):
    base = p >> 2
    r = p & 3
    if r == 0: return SZ+base, SZ+3+base
    return SP+p, ZP+p
for p in range(9):
    base, r = p >> 2, p & 3
    if r:
        k = 4 - r
        A(f"v_cndmask_b32 v{SP+p}, v{SZ+base}, v{SZ+base+1}, s[{12+2*k}:{13+2*k}]")
        A(f"v_cndmask_b32 v{ZP+p}, v{SZ+3+base}, v{SZ+3+base+1}, s[{12+2*k}:{13+2*k}]")
QW = 16
B = 36
AX = 100
for r in (B+9, B+10, B+11, AX+9, AX+10, AX+11): A(f"v_mov_b32 v{r}, 0")
A("s_mul_i32 s18, s3, 2304")
A("s_lshl_b32 s19, s6, 8")
A("s_add_u32 s18, s18, s19")
A(f"s_add_u32 s18, s18, {HP_OFF}")
A("s_mul_i32 s17, s5, 8*2304")
A("s_add_u32 s17, s17, s19")
A(f"s_add_u32 s17, s17, {HP_OFF}")
A("v_lshlrev_b32 v61, 7, v2")
A("v_mov_b32 v62, s7")
A("s_lshl_b32 s16, s5, 10")
A("s_lshl_b32 s19, s4, 2")
A("s_add_u32 s16, s16, s19")
A(f"s_add_u32 s16, s16, {FL_OFF + 32}")
ldspin("L_RQ", R_Q, 1)
ST(3)
for p in range(9):
    A(f"ds_read2st64_b32 v[{QW+2*p}:{QW+2*p+1}], v15 offset0:{18*p} offset1:{18*p+9}")
for p in range(9):
    A(f"s_waitcnt lgkmcnt({8-p})")
    if p == 8:
        A("s_mov_b64 exec, 1")
        A(f"ds_add_u32 v13, v60 offset:{C_Q}")
        A("s_mov_b64 exec, -1")
    r0, r1 = QW+2*p, QW+2*p+1
    sr, zr = pairsz(p)
    A(f"v_cvt_f32_i32 v{r0}, v{r0}")
    A(f"v_cvt_f32_i32 v{r1}, v{r1}")
    A(f"v_sub_f32 v{r0}, v{r0}, v{zr}")
    A(f"v_sub_f32 v{r1}, v{r1}, v{zr}")
    A(f"v_cvt_pk_bf16_f32 v{r1}, v{r0}, v{r1}")
    A(f"v_lshlrev_b32 v{r0}, 16, v{r1}")
    A(f"v_and_b32 v{r1}, 0xffff0000, v{r1}")
    A(f"v_mul_f32 v{r0}, v{r0}, v{sr}")
    A(f"v_mul_f32 v{r1}, v{r1}, v{sr}")
    A(f"v_cvt_pk_bf16_f32 v{B+p}, v{r0}, v{r1}")
if RM == 2:
    A("s_lshl_b32 s21, s6, 7")
    A("s_add_u32 s21, s20, s21")
    A(f"s_add_u32 s21, s21, {136*9216}")
    ldspin("L_RX", R_X, 1)
    A(f"buffer_load_dwordx4 v[112:115], v11, s[{sV}:{sV+3}], s21 offen nt")
else:
    ldspin("L_RX", R_X, 1)
A(f"ds_read_b128 v[{AX}:{AX+3}], v56 offset:{XR}")
A(f"ds_read_b128 v[{AX+4}:{AX+7}], v56 offset:{XR+16}")
A(f"ds_read_b32 v{AX+8}, v56 offset:{XR+32}")
for t in range(3):
    A(f"s_waitcnt lgkmcnt({2-t})")
    c = "0" if t == 0 else "v[48:51]"
    A(f"v_mfma_f32_16x16x32_bf16 v[48:51], v[{AX+4*t}:{AX+4*t+3}], v[{B+4*t}:{B+4*t+3}], {c}")
A("s_mov_b64 exec, 0xffff")
A("s_cmp_eq_u32 s23, 2")
A("s_nop 5")
tag(48)
A("s_cbranch_scc0 L_HGL")
A(f"buffer_store_dwordx4 v[48:51], v55, s[{sWS}:{sWS+3}], s18 offen")
A("s_branch L_HNF")
A("L_HGL:")
A(f"buffer_store_dwordx4 v[48:51], v55, s[{sWS}:{sWS+3}], s18 offen sc1")
A("s_mov_b64 exec, 1")
A(f"ds_add_rtn_u32 v14, v13, v60 offset:{C_H}")
A("s_waitcnt lgkmcnt(0)")
A("v_readfirstlane_b32 s23, v14")
A("s_cmp_lg_u32 s23, 8")
A("s_cbranch_scc1 L_HNF")
A("s_mov_b64 exec, 0xff")
A(f"buffer_store_dword v62, v61, s[{sWS}:{sWS+3}], s16 offen sc1")
A("L_HNF:")
A("s_mov_b64 exec, -1")
REM = 112
A("s_lshl_b32 s21, s6, 7")
A("s_add_u32 s20, s20, s21")
A(f"s_add_u32 s20, s20, {136*9216}")
if not RM: A(f"buffer_load_dwordx4 v[{REM}:{REM+3}], v11, s[{sV}:{sV+3}], s20 offen nt")
else: A("v_mov_b32 v118, v11")
ST(4)
A("v_mul_u32_u24 v96, 2304, v10")
A("v_lshl_add_u32 v96, v8, 4, v96")
A("v_lshrrev_b32 v58, 2, v8")
A("v_lshlrev_b32 v58, 6, v58")
A("v_lshl_add_u32 v58, v7, 4, v58")
A("v_and_b32 v59, 3, v8")
A("v_lshl_add_u32 v58, v59, 1, v58")
A("s_lshr_b32 s18, s6, 1")
A("s_lshl_b32 s18, s18, 8")
A("s_and_b32 s19, s6, 1")
A("s_lshl_b32 s19, s19, 3")
A("s_add_u32 s18, s18, s19")
A("v_add_u32 v97, s18, v58")
A("v_mov_b32 v9, v55")
A("v_mov_b32 v15, v60")
AV = 16
def areg(t, i=0): return AV + 4*t
A("v_mul_u32_u24 v98, 9216, v90")
A("v_add_u32 v98, v98, v88")
A("s_lshl_b32 s18, s6, 10")
A(f"s_add_u32 s18, s18, {VL}")
A("v_add_u32 v98, s18, v98")
TRA, TRB = 100, 104
for i in range(4):
    A(f"v_xor_b32 v99, {i}, v89")
    A(f"v_lshl_add_u32 v{TRA+i}, v99, 5, v98")
    A(f"v_add_u32 v{TRB+i}, 73728, v{TRA+i}")
A("v_add_u32 v99, s18, v9")
A("v_lshlrev_b32 v98, 6, v3")
A("v_lshl_add_u32 v98, v7, 4, v98")
A("v_mov_b32 v34, 0"); A("v_mov_b32 v35, 0")
A(f"v_mov_b32 v117, {1 << (TB-1):#x}")
A("s_lshl_b32 s16, s4, 5")
A("s_add_u32 s14, s16, s5")
A("s_mul_i32 s14, s14, 9216")
A("s_lshl_b32 s19, s6, 10")
A("s_add_u32 s14, s14, s19")
A(f"s_add_u32 s14, s14, {YP_OFF}")
A("v_subrev_u32 v8, 128, v0")
A("v_mul_u32_u24 v10, 3641, v8")
A("v_lshrrev_b32 v10, 16, v10")
A("v_mul_u32_u24 v10, 8928, v10")
A("v_lshlrev_b32 v11, 4, v8")
A("v_add_u32 v10, v10, v11")
if OW:
    A("s_and_b32 s12, s2, 7")
    A("s_lshr_b32 s13, s2, 3")
else:
    A("s_mov_b32 s12, s4"); A("s_mov_b32 s13, s5")
A("s_mul_i32 s16, s12, 32*9216")
A("s_mul_i32 s19, s13, 288")
A("s_add_u32 s16, s16, s19")
A(f"s_add_u32 s16, s16, {YP_OFF}")
A("v_and_b32 v1, 7, v8")
A("v_mul_u32_u24 v1, 288, v1")
A("v_lshrrev_b32 v8, 3, v8")
A("v_lshl_add_u32 v1, v8, 2, v1")
A(f"v_add_u32 v1, {VL}, v1")
A("v_and_b32 v12, 3, v8")
A("v_mul_u32_u24 v12, 9216, v12")
A("v_lshrrev_b32 v8, 2, v8")
A("v_lshl_add_u32 v12, v8, 1, v12")
A("s_mul_i32 s15, s12, 1152")
A("s_mul_i32 s19, s13, 36")
A("s_add_u32 s15, s15, s19")
if os.environ.get("FAKEOUT"):
    A("v_subrev_u32 v12, 128, v0")
    A("v_lshrrev_b32 v12, 3, v12")
    A("v_lshlrev_b32 v12, 1, v12")
    A("s_mul_i32 s15, s3, 144")
BT = 48
ldspin("L_RH", R_H, 1)
H0, H1 = 48, 52
A(f"s_mov_b32 s22, {SPIN}")
A("L_HPOLL:")
A(f"buffer_load_dwordx4 v[{H0}:{H0+3}], v96, s[{sWS}:{sWS+3}], s17 offen sc1")
A(f"buffer_load_dwordx4 v[{H1}:{H1+3}], v96, s[{sWS}:{sWS+3}], s17 offen offset:128 sc1")
A("s_waitcnt vmcnt(0)")
check(H0, 56)
check(H1, 57)
A("v_or_b32 v56, v56, v57")
A(f"v_and_b32 v56, {TM:#x}, v56")
A("v_cmp_ne_u32 vcc, 0, v56")
A("s_and_b64 exec, vcc, vcc")
A("s_cbranch_scc0 L_HDONE")
A("s_sub_u32 s22, s22, 1")
A("s_cbranch_scc0 L_HPOLL")
A("L_HDONE:")
A("s_mov_b64 exec, -1")
if RM in (1, 3): A(f"buffer_load_dwordx4 v[{REM}:{REM+3}], v118, s[{sV}:{sV+3}], s20 offen nt")
ST(5)
for dp in ("quad_perm:[1,0,3,2]", "quad_perm:[2,3,0,1]", "row_half_mirror"):
    for i in range(8):
        A(f"v_add_f32_dpp v{H0+i}, v{H0+i}, v{H0+i} {dp} row_mask:0xf bank_mask:0xf")
sel4(H0); sel4(H1)
A(f"v_cvt_pk_bf16_f32 v{H0}, v{H0}, v{H1}")
A(f"ds_write_b16 v97, v{H0} offset:{HA}")
A(f"ds_write_b16_d16_hi v97, v{H0} offset:{HA+128}")
A("s_mov_b64 exec, 1")
A(f"ds_add_u32 v13, v15 offset:{C_A}")
A("s_mov_b64 exec, -1")
ldspin("L_CA", C_A, 9)
for t in range(4):
    a = areg(t)
    A(f"ds_read_b128 v[{a}:{a+3}], v98 offset:{HA + 256*t}")
A(f"ds_read_b64 v[32:33], v98 offset:{HA + 1024}")
Y = 108
YD = [36, 40, 44, 120]
def trreads(t, base):
    tr = TRA if t < 2 else TRB
    o = (1 + 4*(t % 2))*9216
    for i in range(4):
        A(f"ds_read_b64_tr_b16 v[{base+4*i}:{base+4*i+1}], v{tr+i} offset:{o}")
        A(f"ds_read_b64_tr_b16 v[{base+4*i+2}:{base+4*i+3}], v{tr+i} offset:{o + 2*9216}")
def mf(t, i, base, first=False):
    a = areg(t); d = YD[i]
    c = "0" if first else f"v[{d}:{d+3}]"
    A(f"v_mfma_f32_16x16x32_bf16 v[{d}:{d+3}], v[{a}:{a+3}], v[{base+4*i}:{base+4*i+3}], {c}")
def mfmas(t, base, first=False):
    for i in range(4): mf(t, i, base, first)
def kstep(t, base):
    trreads(t, base)
    for i in range(4):
        A(f"s_waitcnt lgkmcnt({6-2*i})")
        mf(t, i, base)
LG = (max(D1, D3) + 8)//9
ST(6)
if RM != 3:
    ldspin("L_EB", PROG, 9 + LG)
    trreads(0, BT)
    if RM: A("s_waitcnt vmcnt(0)")
    A(f"ds_write_b128 v99, v[{REM}:{REM+3}] offset:9216")
    trreads(1, BT+16)
    for i in range(4):
        A(f"v_mov_b32 v{BT+32+4*i+2}, 0"); A(f"v_mov_b32 v{BT+32+4*i+3}, 0")
    A("s_waitcnt lgkmcnt(9)")
    mfmas(0, BT, True)
    for i in range(4):
        A(f"ds_read_b64_tr_b16 v[{BT+32+4*i}:{BT+32+4*i+1}], v{TRA+i}")
    A("s_waitcnt lgkmcnt(4)")
    mfmas(1, BT+16)
    A("s_waitcnt lgkmcnt(0)")
    mfmas(4, BT+32)
    A(f"s_mov_b32 s22, {SPIN}")
    A("s_barrier")
    ST(7)
    kstep(2, BT)
else:
    ldspin("L_EB", PROG, 9 + LG)
    trreads(0, BT)
    trreads(1, BT+16)
    for i in range(4):
        A(f"v_mov_b32 v{BT+32+4*i+2}, 0"); A(f"v_mov_b32 v{BT+32+4*i+3}, 0")
    A("s_waitcnt lgkmcnt(8)")
    mfmas(0, BT, True)
    A("s_waitcnt lgkmcnt(0)")
    mfmas(1, BT+16)
    A(f"s_mov_b32 s22, {SPIN}")
    A("s_barrier")
    ST(7)
    trreads(2, BT)
    A("s_waitcnt vmcnt(0)")
    A(f"ds_write_b128 v99, v[{REM}:{REM+3}] offset:9216")
    for i in range(4):
        A(f"ds_read_b64_tr_b16 v[{BT+32+4*i}:{BT+32+4*i+1}], v{TRA+i}")
    A("s_waitcnt lgkmcnt(5)")
    mfmas(2, BT)
    A("s_waitcnt lgkmcnt(0)")
    mfmas(4, BT+32)
ST(8)
A("s_barrier")
ST(9)
kstep(3, BT+16)
A("s_nop 1")
for g in range(4):
    for r in range(4):
        A(f"v_add_u32_dpp v{Y+r}, v{YD[g]+r}, v117 quad_perm:[0,1,2,3] row_mask:{1 << g:#x} bank_mask:0xf")
for i in range(4): A(f"v_and_or_b32 v{Y+i}, v{Y+i}, v5, s{60+i}")
A(f"buffer_store_dwordx4 v[{Y}:{Y+3}], v9, s[{sWS}:{sWS+3}], s14 offen sc1")
ST(10)
A("s_barrier")
YG = 112
A("s_branch L_YP0")
A("L_YPOLL:")
A("s_sleep 2")
A("L_YP0:")
A(f"buffer_load_dwordx4 v[{YG}:{YG+3}], v10, s[{sWS}:{sWS+3}], s16 offen sc1")
A("s_waitcnt vmcnt(0)")
check(YG, 116)
A(f"v_and_b32 v116, {TM:#x}, v116")
A("v_cmp_ne_u32 vcc, 0, v116")
A("s_and_b64 exec, vcc, vcc")
A("s_cbranch_scc0 L_YDONE")
A("s_sub_u32 s22, s22, 1")
A("s_cbranch_scc0 L_YPOLL")
A("L_YDONE:")
A("s_mov_b64 exec, -1")
ST(11)
A(f"ds_write_b128 v11, v[{YG}:{YG+3}] offset:{VL}")
A("s_waitcnt lgkmcnt(0)")
A("s_barrier")
A(f"ds_read2st64_b32 v[{YG}:{YG+1}], v1 offset0:0 offset1:9")
A(f"ds_read2st64_b32 v[{YG+2}:{YG+3}], v1 offset0:18 offset1:27")
A("s_waitcnt lgkmcnt(0)")
A(f"v_add_f32 v{YG}, v{YG}, v{YG+1}")
A(f"v_add_f32 v{YG+2}, v{YG+2}, v{YG+3}")
A(f"v_add_f32 v{YG}, v{YG}, v{YG+2}")
for dp in ("quad_perm:[1,0,3,2]", "quad_perm:[2,3,0,1]", "row_half_mirror"):
    A("s_nop 1")
    A(f"v_add_f32_dpp v{YG}, v{YG}, v{YG} {dp} row_mask:0xf bank_mask:0xf")
A(f"v_cvt_pk_bf16_f32 v{YG}, v{YG}, v{YG}")
A("s_mov_b32 exec_lo, 0x01010101")
A("s_mov_b32 exec_hi, 0x01010101")
A(f"buffer_store_short v{YG}, v12, s[{sOUT}:{sOUT+3}], s15 offen")
A("s_or_b32 s19, s2, s6")
A("s_cbranch_scc1 L_CEND")
A("s_mov_b64 exec, 1")
A("v_mov_b32 v14, s7")
A(f"buffer_store_dword v14, v13, s[{sWS}:{sWS+3}], 0 offen offset:{EP_OFF}")
A("L_CEND:")
if STAMPS:
    A("s_waitcnt vmcnt(0)")
    A("; STAMPDUMP 0 12")
A("s_endpgm")
A("L_CODE_END:")

VG = 124
A('.section .rodata,"a"')
A(".p2align 6")
A(f""".amdhsa_kernel {KN}
  .amdhsa_next_free_vgpr {VG}
  .amdhsa_next_free_sgpr 70
  .amdhsa_accum_offset {(VG+3)//4*4}
  .amdhsa_group_segment_fixed_size 0
  .amdhsa_kernarg_size 72
  .amdhsa_user_sgpr_count 2
  .amdhsa_user_sgpr_kernarg_segment_ptr 1
  .amdhsa_system_sgpr_workgroup_id_x 1
  .amdhsa_float_denorm_mode_32 3
.end_amdhsa_kernel""")
dst = sys.argv[1]
if STAMPS:
    open(dst + ".pre", "w").write("\n".join(out) + "\n")
    import subprocess
    subprocess.check_call([sys.executable, "stamp.py", dst + ".pre", dst])
else:
    open(dst, "w").write("\n".join(out) + "\n")
```

```python
import sys, os
NAME = "standalone__weight_only_int_quip__decode"
KN = NAME + "_kernel"
E = lambda k, d: int(os.environ.get(k, str(d)))
D1 = E("D1", 18); D3 = E("D3", 45); TK = E("TK", 8); PH = E("PH", 8)
D2 = E("D2", 0)
HY = E("HY", 0)
PP = E("PP", 0)
PT = os.environ.get("PT", "wo")
RM = E("RM", 3)
OW = E("OW", 1)
TA = E("TA", 205); TBk = E("TBK", 32)
TB = E("TB", 10)
STAMPS = bool(os.environ.get("STAMPS"))
SPIN = 1 << 16
RND = (D1 + 8)//9
out = []
def A(s): out.append(s)
def ST(k):
    if STAMPS: A(f"; STAMP {k}")
TM = (1 << TB) - 1

XR, HA, CNT, SCL, ZL, XL, VL = 0, 768, 2048, 2304, 3328, 4352, 7168
R_U, R_Q, R_X, R_H, C_A, C_Q, C_XW, C_H, R_E, PROG, C_U = [CNT + 4*i for i in range(11)]
LDS_BYTES = VL + 17*9216
QL = LDS_BYTES - 41472
UL = QL - 18432
assert LDS_BYTES == 163840 and UL >= VL + 10*9216
EP_OFF, YC_OFF, XP_OFF, AG_OFF, FL_OFF, HP_OFF, YP_OFF, WS_BYTES = 0, 1024, 4096, 49152, 65536, 131072, 1 << 20, 4 << 20

A(f"""; Kernarg layout for this problem (72 bytes, ptrs only, base s[0:1]):
; @launch grid=(256,1,1) block=(704,1,1) lds={LDS_BYTES}
.amdgcn_target "amdgcn-amd-amdhsa--gfx950"
.text
.globl {KN}
.p2align 8
.type {KN},@function
{KN}:""")

sQW, sSC, sZ, sV, sWS, sOUT, sU, sX = 24, 28, 32, 36, 40, 44, 48, 52
def kl(r, off): A(f"s_load_dwordx2 s[{r}:{r+1}], s[0:1], {off}")
def setsrd(r, nb):
    A(f"s_mov_b32 s{r+2}, {nb}")
    A(f"s_mov_b32 s{r+3}, 0x00020000")
def load_tags(): A(f"s_load_dword s7, s[{sWS}:{sWS+1}], {EP_OFF}")
def make_tags():
    step = (1 << TB) * 31 // 100
    for i in range(4):
        A(f"s_add_u32 s{60+i}, s7, {1 + i*step}")
        A(f"s_and_b32 s{60+i}, s{60+i}, {TM:#x}")
    A("s_add_u32 s7, s7, 1")
def tag(r):
    for i in range(4): A(f"v_add_u32 v{r+i}, {1 << (TB-1):#x}, v{r+i}")
    for i in range(4): A(f"v_and_or_b32 v{r+i}, v{r+i}, v5, s{60+i}")
def check(r, t):
    for i in range(4): A(f"v_xor_b32 v{r+i}, s{60+i}, v{r+i}")
    A(f"v_or3_b32 v{t}, v{r}, v{r+1}, v{r+2}")
    A(f"v_or_b32 v{t}, v{t}, v{r+3}")
def masks():
    A("s_mov_b32 s56, 0x22222222"); A("s_mov_b32 s57, 0x22222222")
    A("s_mov_b32 s58, 0x44444444"); A("s_mov_b32 s59, 0x44444444")
    A("s_mov_b32 s64, 0x88888888"); A("s_mov_b32 s65, 0x88888888")
def sel4(h):
    A(f"v_cndmask_b32 v{h}, v{h}, v{h+1}, s[56:57]")
    A(f"v_cndmask_b32 v{h}, v{h}, v{h+2}, s[58:59]")
    A(f"v_cndmask_b32 v{h}, v{h}, v{h+3}, s[64:65]")
def ldspin(label, addr, target, tmp=14):
    A(f"s_mov_b32 s22, {SPIN*4}")
    A(f"{label}:")
    A(f"ds_read_b32 v{tmp}, v13 offset:{addr}")
    A("s_waitcnt lgkmcnt(0)")
    A(f"v_readfirstlane_b32 s23, v{tmp}")
    A(f"s_cmp_ge_u32 s23, {target}")
    A(f"s_cbranch_scc1 {label}_D")
    A("s_sleep 1")
    A("s_sub_u32 s22, s22, 1")
    A(f"s_cbranch_scc0 {label}")
    A(f"{label}_D:")
def swz():
    A("v_lshrrev_b32 v8, 3, v2")
    A("v_and_b32 v9, 6, v8")
    A("v_and_b32 v10, 7, v2")
    A("v_xor_b32 v9, v9, v10")
def vaddr():
    A("v_mul_u32_u24 v11, 9216, v8")
    A("v_lshl_add_u32 v11, v9, 4, v11")
    A("s_mul_i32 s20, s5, 144*9216")
    A("s_mul_i32 s21, s4, 1152")
    A("s_add_u32 s20, s20, s21")
def xids():
    A("s_mul_i32 s10, s2, 57")
    A("s_lshr_b32 s10, s10, 9")
    A("s_mul_i32 s11, s10, 9")
    A("s_sub_u32 s11, s2, s11")
def logid():
    A("s_lshl_b32 s3, s5, 3")
    A("s_add_u32 s3, s3, s4")
def flagline(r=3):
    A(f"s_lshl_b32 s18, s{r}, 7")
    A(f"s_add_u32 s18, s18, {FL_OFF}")
    A(f"s_add_u32 s18, s{sWS}, s18")
    A(f"s_addc_u32 s19, s{sWS+1}, 0")

A("s_cmp_ge_u32 s2, 256")
A("s_cbranch_scc1 L_END")
kl(sQW, 8)
A("s_getpc_b64 s[8:9]")
A("L_PC:")
A("v_lshlrev_b32 v14, 4, v0")
A("v_min_u32 v14, L_CODE_END-L_PC-4, v14")
A("global_load_dword v99, v14, s[8:9]")
kl(sU, 32); kl(sX, 0); kl(sWS, 64)
A("v_readfirstlane_b32 s6, v0")
ST(0)
A("s_bfe_u32 s4, s2, 0x30003")
A("s_and_b32 s5, s2, 7")
A("s_lshl_b32 s5, s5, 2")
A("s_lshr_b32 s3, s2, 6")
A("s_add_u32 s5, s5, s3")
A("v_and_b32 v2, 63, v0")
A("v_mov_b32 v13, 0")
A("s_lshr_b32 s6, s6, 6")
A("s_cbranch_scc1 L_NOTL")
A("s_memrealtime s[66:67]")
setsrd(sQW, 576*4608*4)
A("v_mul_u32_u24 v14, 1821, v2")
A("v_lshlrev_b32 v15, 4, v2")
A("s_movk_i32 s13, 17856")
A("s_mul_i32 s12, s4, 72*18432")
A("s_mul_i32 s14, s5, 576")
A("s_add_u32 s12, s12, s14")
A(f"s_mov_b32 m0, {QL}")
QO = 16
A(f"v_lshrrev_b32 v{QO}, 16, v14")
A(f"v_mad_u32_u24 v{QO}, v{QO}, s13, v15")
A("s_cmp_ge_u32 s2, 36")
A("s_cbranch_scc1 L_QGO")
A("s_barrier")
A("L_QGO:")
A("s_waitcnt lgkmcnt(0)")
kl(sV, 40)
for i in range(9):
    if i:
        A(f"v_add_u32 v14, {64*1821}, v14")
        if i % 4 == 0:
            A("s_add_u32 m0, m0, 4096")
            A("s_add_u32 s12, s12, 4096")
        A(f"v_lshrrev_b32 v{QO+i}, 16, v14")
        A(f"v_mad_u32_u24 v{QO+i}, v{QO+i}, s13, v15")
    A(f"buffer_load_dwordx4 v{QO+i}, s[{sQW}:{sQW+3}], s12 offen offset:{1024*(i%4)} nt lds")
A("s_mov_b32 s16, 1")
A("L_QLOOP:")
for i in range(9):
    if i % 4 == 0:
        A(f"s_add_u32 m0, m0, {4096 if i else 1024}")
        A(f"s_add_u32 s12, s12, {4096 if i else 16*18432 - 8192}")
    if i == 4:
        A("s_cmp_eq_u32 s16, 4")
        A("s_cselect_b32 exec_hi, 0, -1")
    A(f"s_waitcnt vmcnt({D1-1})")
    A(f"buffer_load_dwordx4 v{QO+i}, s[{sQW}:{sQW+3}], s12 offen offset:{1024*(i%4)} nt lds")
    if i == 4: A("s_cbranch_scc1 L_QDONE")
A("s_add_u32 s16, s16, 1")
A("s_cmp_lg_u32 s16, 2")
A("s_cbranch_scc1 L_QLOOP")
A("s_cmp_lt_u32 s2, 36")
A("s_cbranch_scc1 L_QLOOP")
A("s_barrier")
A("s_branch L_QLOOP")

A("L_NOTL:")
A("s_cmp_eq_u32 s6, 1")
A("s_cbranch_scc1 L_AUX")
A("v_lshlrev_b32 v14, 2, v2")
A(f"ds_write_b32 v14, v13 offset:{CNT}")
swz()
A("s_cmp_ge_u32 s2, 36")
A("s_cbranch_scc1 L_NOU")
xids()
setsrd(sU, 576*1152)
A("v_mul_u32_u24 v12, 1152, v8")
A("v_lshl_add_u32 v12, v9, 4, v12")
A("s_mul_i32 s14, s10, 144*1152")
A("s_lshl_b32 s13, s11, 7")
A("s_add_u32 s14, s14, s13")
A("s_mul_i32 s13, s6, 16*1152")
A("s_add_u32 s14, s14, s13")
A(f"s_sub_u32 s14, s14, {32*1152}")
A("s_lshl_b32 s13, s6, 11")
A(f"s_add_u32 m0, s13, {UL - 4096}")
A(f"s_add_u32 s15, s14, {8*1152 - 1024}")
A("s_waitcnt lgkmcnt(0)")
A(f"buffer_load_dwordx4 v12, s[{sU}:{sU+3}], s14 offen nt lds")
A(f"buffer_load_dwordx4 v12, s[{sU}:{sU+3}], s15 offen offset:1024 nt lds")
A("L_NOU:")
A("s_waitcnt lgkmcnt(0)")
kl(sV, 40); kl(sOUT, 48)
load_tags()
A("s_barrier")
A("s_branch L_COMP")
A("L_AUX:")
A("v_mul_u32_u24 v27, 3641, v2")
A("v_lshrrev_b32 v27, 16, v27")
A("v_lshlrev_b32 v29, 4, v2")
A("v_lshlrev_b32 v14, 7, v2")
A("s_cmp_ge_u32 s2, 36")
A("s_cbranch_scc1 L_NOXL")
setsrd(sX, 4*1152)
A("s_mul_i32 s10, s2, 57")
A("s_lshr_b32 s10, s10, 9")
A("v_mul_u32_u24 v28, 864, v27")
A("v_add_u32 v28, v28, v29")
A("s_mul_i32 s17, s10, 288")
A(f"s_mov_b32 m0, {XL}")
A("s_add_u32 s18, s17, 3*864")
A("s_waitcnt lgkmcnt(0)")
A(f"buffer_load_dwordx4 v28, s[{sX}:{sX+3}], s17 offen lds")
A("s_mov_b64 exec, 0xff")
A(f"buffer_load_dwordx4 v29, s[{sX}:{sX+3}], s18 offen offset:1024 lds")
A("s_cmp_lg_u32 s2, 0")
A("s_cbranch_scc1 L_NOZ")
A(f"global_store_dword v14, v13, s[{sWS}:{sWS+1}] offset:{YC_OFF} sc1")
A("L_NOZ:")
A("s_mov_b64 exec, -1")
A("L_NOXL:")
kl(sSC, 16); kl(sZ, 24)
if PT: kl(sV, 40); kl(sOUT, 48)
A("s_barrier")
setsrd(sSC, 18*9216); setsrd(sZ, 18*9216); setsrd(sWS, WS_BYTES)
A("v_mul_u32_u24 v27, 8928, v27")
A("v_add_u32 v27, v27, v29")
A("s_mul_i32 s16, s4, 9")
A("s_lshr_b32 s16, s16, 2")
A("s_mul_i32 s16, s16, 9216")
A("s_mul_i32 s17, s5, 288")
A("s_add_u32 s16, s16, s17")
A(f"s_mov_b32 m0, {SCL}")
A("s_mov_b32 exec_hi, 0x3fffff")
A("s_waitcnt lgkmcnt(0)")
load_tags()
A(f"buffer_load_dwordx4 v27, s[{sSC}:{sSC+3}], s16 offen lds")
A(f"s_mov_b32 m0, {ZL}")
A("s_nop 0")
A(f"buffer_load_dwordx4 v27, s[{sZ}:{sZ+3}], s16 offen lds")
NPT = 0
if PT:
    A("s_mov_b64 exec, 3")
    if "v" in PT:
        A("s_mul_i32 s20, s5, 144*9216")
        A(f"v_mul_u32_u24 v30, {144*9216-4}, v2")
        A("v_add_u32 v30, s20, v30")
        A(f"global_load_dword v31, v30, s[{sV}:{sV+1}]"); NPT += 1
    if "w" in PT:
        A(f"v_mul_u32_u24 v30, {(4<<20)-1024}, v2")
        A(f"global_load_dword v32, v30, s[{sWS}:{sWS+1}] offset:512"); NPT += 1
    if "o" in PT:
        A(f"global_load_dword v33, v13, s[{sOUT}:{sOUT+1}]"); NPT += 1
    if "q" in PT:
        A("s_mul_i32 s20, s4, 72*18432")
        A(f"s_add_u32 s20, s20, {72*18432-4}")
        A("v_mov_b32 v30, s20")
        A(f"global_load_dword v34, v30, s[{sQW}:{sQW+1}]"); NPT += 1
A("s_mov_b64 exec, -1")
A("s_branch L_SYNC")

A("L_QDONE:")
A("s_mov_b32 exec_hi, -1")
ST(1)
setsrd(sV, 4608*9216); setsrd(sWS, WS_BYTES)
swz(); vaddr(); logid()
A("v_mov_b32 v26, 1")
A(f"s_add_u32 s12, s20, {128*9216}")
A(f"s_mov_b32 s15, {VL}")
A("s_mov_b32 s16, 0")
A("s_waitcnt lgkmcnt(0)")
A(f"s_add_u32 s66, s66, {TA}")
def vround(depth):
    for cg in range(9):
        A(f"s_add_u32 m0, s15, {cg*1024 - cg*128}")
        A(f"s_waitcnt vmcnt({depth-1})")
        A(f"buffer_load_dwordx4 v11, s[{sV}:{sV+3}], s12 offen offset:{cg*128} nt lds")
A("L_V1:")
vround(D1)
if HY: A("s_mov_b32 s13, 0")
A("L_VT:")
A(f"s_add_u32 s12, s12, {8*9216}")
A("s_cmp_eq_u32 s16, 0")
A("s_cselect_b32 s12, s20, s12")
A("s_add_u32 s15, s15, 9216")
A("s_memrealtime s[68:69]")
if D2: A(f"ds_read_b32 v35, v13 offset:{C_A}")
A("s_add_u32 s16, s16, 1")
A("v_mov_b32 v34, s16")
A(f"ds_write_b32 v13, v34 offset:{PROG}")
A(f"s_cmp_eq_u32 s16, {RND}")
A("s_cbranch_scc0 L_VNQ")
A(f"s_waitcnt vmcnt({9*RND})")
A(f"ds_write_b32 v13, v26 offset:{R_Q}")
ST(2)
A("L_VNQ:")
A("s_cmp_eq_u32 s16, 10")
A("s_cbranch_scc0 L_VNW")
ldspin("L_WQ", C_Q, 9)
A("L_VNW:")
A("s_cmp_eq_u32 s16, 17")
A("s_cbranch_scc1 L_VEND")
A("s_waitcnt lgkmcnt(0)")
A("s_sub_u32 s67, s68, s66")
if HY: A("s_add_u32 s67, s67, s13")
A(f"s_add_u32 s66, s66, {TBk}")
A("s_cmp_lt_i32 s67, 0")
A("s_cbranch_scc1 L_V1")
if D2:
    A("v_readfirstlane_b32 s23, v35")
    A("s_cmp_ge_u32 s23, 9")
    A("s_cbranch_scc1 L_V3")
    vround(D2)
    A("s_branch L_VT")
    A("L_V3:")
vround(D3)
if HY:
    A(f"s_add_u32 s13, s13, {TBk*HY//100}")
    A(f"s_min_u32 s13, s13, {(D3-D1)*TBk*HY//900}")
A("s_branch L_VT")
A("L_VEND:")
A("v_lshlrev_b32 v12, 10, v2")
A("s_lshl_b32 s16, s4, 7")
A(f"s_add_u32 s20, s{sWS}, s16")
A(f"s_addc_u32 s21, s{sWS+1}, 0")
A(f"s_add_u32 s16, s16, {FL_OFF + 64}")
flagline(2 if OW else 3)
A("s_mov_b32 s17, 1")
ST(3)
A("s_waitcnt vmcnt(36)")
ST(4)
A("s_barrier")
ST(5)
A(f"ds_read_b32 v14, v13 offset:{R_E}")
A(f"s_waitcnt vmcnt({TK})")
A(f"s_atomic_add s17, s[20:21], {YC_OFF} glc")
A("s_waitcnt vmcnt(0)")
ST(6)
A("s_barrier")
A("s_waitcnt lgkmcnt(0)")
A("v_readfirstlane_b32 s7, v14")
A("s_cmp_lg_u32 s17, 31")
A("s_cbranch_scc1 L_NOTLAST")
A("s_mov_b32 exec_hi, 0")
A(f"buffer_store_dword v14, v12, s[{sWS}:{sWS+3}], s16 offen sc1")
A("L_NOTLAST:")
ST(7)
A(f"s_mov_b32 s22, {SPIN}")
if PP: A("s_not_b32 s23, s7")
A("L_YFL:")
A("s_load_dword s23, s[18:19], 64 glc")
if PP: A(f"s_sleep {PP}")
else: A("s_waitcnt lgkmcnt(0)")
A("s_cmp_eq_u32 s23, s7")
A("s_cbranch_scc1 L_YFLD")
A("s_sub_u32 s22, s22, 1")
A("s_cbranch_scc0 L_YFL")
A("L_YFLD:")
A("s_barrier")
if STAMPS:
    A("; STAMPDUMP 0 8")
A("L_END:")
A("s_endpgm")

def lanes():
    A(f"v_mov_b32 v5, {0xffffffff ^ TM:#x}")
    A("v_lshrrev_b32 v3, 4, v2")
    A("v_and_b32 v4, 15, v2")
    A("v_bfe_u32 v6, v2, 2, 2")
    A("v_and_b32 v7, 3, v2")
    masks()
    logid()
A("L_SYNC:")
A("s_setprio 3")
A("v_mov_b32 v17, 1")
lanes()
flagline()
A("v_lshrrev_b32 v14, 2, v2")
A("v_mul_u32_u24 v15, 576, v7")
A("v_add_lshl_u32 v15, v15, v14, 4")
A("s_mul_i32 s17, s4, 72*16")
A(f"s_add_u32 s17, s17, {XP_OFF}")
A("v_lshl_add_u32 v16, v6, 2, v7")
A("v_mul_u32_u24 v16, 48, v16")
A("v_lshl_add_u32 v16, v3, 1, v16")
A("s_lshl_b32 s68, s5, 7")
A(f"s_add_u32 s68, s68, {AG_OFF}")
A(f"s_add_u32 s68, s{sWS}, s68")
A(f"s_addc_u32 s69, s{sWS+1}, 0")
A("s_getreg_b32 s66, hwreg(HW_REG_XCC_ID, 0, 4)")
A("s_mov_b64 exec, 1")
A(f"s_waitcnt vmcnt({2+NPT})")
A(f"ds_add_u32 v13, v17 offset:{C_U}")
A("s_mov_b64 exec, -1")
A("s_waitcnt lgkmcnt(0)")
make_tags()
A("v_mov_b32 v18, s7")
A(f"ds_write_b32 v13, v18 offset:{R_E}")
A("s_lshl_b32 s67, s7, 4")
A("s_or_b32 s66, s66, s67")
A("s_lshl_b32 s67, s4, 2")
A("s_atomic_swap s66, s[68:69], s67")
A("v_mov_b32 v18, 2")
A(f"s_waitcnt vmcnt({NPT})")
A(f"ds_write_b32 v13, v18 offset:{R_U}")
ST(1)
def spoll(nm, off):
    A(f"s_mov_b32 s22, {SPIN}")
    A(f"L_SP{nm}:")
    A(f"s_load_dwordx8 s[8:15], s[18:19], {off} glc")
    A("s_waitcnt lgkmcnt(0)")
    for i in range(8): A(f"s_xor_b32 s{8+i}, s{8+i}, s7")
    A("s_or_b64 s[8:9], s[8:9], s[10:11]")
    A("s_or_b64 s[12:13], s[12:13], s[14:15]")
    A("s_or_b64 s[8:9], s[8:9], s[12:13]")
    A(f"s_cbranch_scc0 L_SP{nm}D")
    A("s_sub_u32 s22, s22, 1")
    A(f"s_cbranch_scc0 L_SP{nm}")
    A(f"L_SP{nm}D:")
spoll("X", 0)
ST(2)
G = 20
A(f"s_mov_b32 s22, {SPIN}")
A("L_XPOLL:")
for u in range(5):
    if u == 4: A("s_mov_b32 exec_hi, 0")
    A(f"buffer_load_dwordx4 v[{G+4*u}:{G+4*u+3}], v15, s[{sWS}:{sWS+3}], s17 offen offset:{256*u} sc1")
A(f"s_mov_b32 s23, {SPIN}")
A("L_AGP:")
A("s_load_dwordx8 s[8:15], s[68:69], 0 glc")
A("s_waitcnt lgkmcnt(0)")
for i in range(8): A(f"s_xor_b32 s{8+i}, s{8+i}, s66")
A("s_or_b64 s[8:9], s[8:9], s[10:11]")
A("s_or_b64 s[12:13], s[12:13], s[14:15]")
A("s_or_b64 s[8:9], s[8:9], s[12:13]")
A("s_or_b32 s8, s8, s9")
A("s_cmp_lt_u32 s8, 16")
A("s_cbranch_scc1 L_AGD")
A("s_sub_u32 s23, s23, 1")
A("s_cbranch_scc0 L_AGP")
A("L_AGD:")
A("s_cmp_eq_u32 s8, 0")
A("s_cselect_b32 s67, 2, 1")
A("s_mov_b32 exec_hi, -1")
A("v_mov_b32 v44, 0")
A("v_mov_b32 v19, s67")
A("s_mov_b32 exec_hi, 0")
A("s_waitcnt vmcnt(0)")
check(G+16, 44)
A("s_mov_b32 exec_hi, -1")
for u in range(4): check(G+4*u, 40+u)
A("v_or3_b32 v40, v40, v41, v42")
A("v_or3_b32 v40, v40, v43, v44")
A(f"v_and_b32 v40, {TM:#x}, v40")
A("v_cmp_ne_u32 vcc, 0, v40")
A("s_cmp_eq_u64 vcc, 0")
A("s_cbranch_scc1 L_XDONE")
A("s_sub_u32 s22, s22, 1")
A("s_cbranch_scc0 L_XPOLL")
A("L_XDONE:")
ST(3)
for qp in ("[1,0,3,2]", "[2,3,0,1]"):
    for i in range(20):
        A(f"v_add_f32_dpp v{G+i}, v{G+i}, v{G+i} quad_perm:{qp} row_mask:0xf bank_mask:0xf")
for u in range(5): sel4(G+4*u)
A(f"v_cvt_pk_bf16_f32 v{G}, v{G}, v{G+4}")
A(f"v_cvt_pk_bf16_f32 v{G+8}, v{G+8}, v{G+12}")
A(f"v_cvt_pk_bf16_f32 v{G+16}, v{G+16}, v{G+16}")
A(f"ds_write_b16 v16, v{G} offset:{XR}")
A(f"ds_write_b16_d16_hi v16, v{G} offset:{XR+8}")
A(f"ds_write_b16 v16, v{G+8} offset:{XR+16}")
A(f"ds_write_b16_d16_hi v16, v{G+8} offset:{XR+24}")
A("s_mov_b32 exec_hi, 0")
A(f"ds_write_b16 v16, v{G+16} offset:{XR+32}")
A(f"ds_write_b32 v13, v19 offset:{R_X}")
ST(4)
A("s_cmp_eq_u32 s67, 1")
A("s_cbranch_scc1 L_GLOBH")
ldspin("L_PHL", PROG, PH)
A("s_branch L_SEND")
A("L_GLOBH:")
spoll("H", 32)
A("L_SEND:")
A(f"ds_write_b32 v13, v17 offset:{R_H}")
ST(5)
if STAMPS:
    A("s_waitcnt vmcnt(0) lgkmcnt(0)")
    A("; STAMPDUMP 0 6")
A("s_endpgm")

A("L_COMP:")
setsrd(sWS, WS_BYTES); setsrd(sV, 4608*9216); setsrd(sOUT, 4*9216)
lanes()
vaddr()
A("s_sub_u32 s6, s6, 2")
A("v_and_b32 v89, 1, v3")
A("v_lshl_add_u32 v89, v89, 2, v6")
A("v_lshlrev_b32 v88, 7, v89")
A("v_lshl_add_u32 v88, v7, 3, v88")
A("v_lshrrev_b32 v89, 1, v89")
A("v_lshrrev_b32 v90, 1, v3")
A("v_mov_b32 v60, 1")
A("v_lshlrev_b32 v55, 4, v2")
SZ = 64
ST(1)
A("s_cmp_ge_u32 s2, 36")
A("s_cbranch_scc1 L_NOX")
A("s_cmp_lt_u32 s6, 4")
A("s_cbranch_scc1 L_XJOB")
A("s_mov_b64 exec, 1")
A("s_waitcnt vmcnt(0)")
A(f"ds_add_u32 v13, v60 offset:{C_U}")
A("s_mov_b64 exec, -1")
A("s_branch L_NOX")
A("L_XJOB:")
A("s_setprio 2")
XA = 16
XB = 100
A("v_mul_u32_u24 v15, 288, v7")
A("v_lshl_add_u32 v15, v3, 3, v15")
A(f"v_add_u32 v15, {XL}, v15")
A(f"v_mov_b32 v{XA+18}, 0"); A(f"v_mov_b32 v{XA+19}, 0")
A("v_xor_b32 v56, s6, v89")
A("v_lshl_add_u32 v56, v56, 5, v88")
A("v_lshl_add_u32 v56, v90, 10, v56")
A(f"v_add_u32 v56, {UL}, v56")
A(f"v_mov_b32 v{XB+18}, 0"); A(f"v_mov_b32 v{XB+19}, 0")
A("s_mul_i32 s17, s10, 576*16")
A("s_lshl_b32 s18, s11, 10")
A("s_add_u32 s17, s17, s18")
A("s_lshl_b32 s18, s6, 8")
A("s_add_u32 s17, s17, s18")
A(f"s_add_u32 s17, s17, {XP_OFF}")
A("v_and_b32 v57, 31, v2")
A("v_lshlrev_b32 v57, 10, v57")
A("v_lshrrev_b32 v58, 5, v2")
A("v_mul_u32_u24 v58, 124, v58")
A("v_sub_u32 v57, v57, v58")
A("v_add_u32 v57, 128, v57")
A("s_lshl_b32 s18, s11, 7")
A("s_lshl_b32 s19, s10, 3")
A("s_add_u32 s18, s18, s19")
A(f"s_add_u32 s18, s18, {FL_OFF - 128}")
A("s_cmp_eq_u32 s11, 8")
A("s_cselect_b32 s8, 0, -1")
A("s_cmp_eq_u32 s11, 0")
A("s_cselect_b32 s9, 0, -1")
A("s_waitcnt lgkmcnt(0)")
make_tags()
A("v_mov_b32 v58, s7")
A("s_mov_b64 exec, 1")
A("s_waitcnt vmcnt(0)")
A(f"ds_add_u32 v13, v60 offset:{C_U}")
A("s_mov_b64 exec, -1")
ldspin("L_RU", C_U, 10)
for t in range(5):
    if t < 4: A(f"ds_read2_b64 v[{XA+4*t}:{XA+4*t+3}], v15 offset0:{8*t} offset1:{8*t+4}")
    else: A(f"ds_read_b64 v[{XA+4*t}:{XA+4*t+1}], v15 offset:{64*t}")
    A(f"ds_read_b64_tr_b16 v[{XB+4*t}:{XB+4*t+1}], v56 offset:{4*t*1024}")
    if t < 4: A(f"ds_read_b64_tr_b16 v[{XB+4*t+2}:{XB+4*t+3}], v56 offset:{(4*t+2)*1024}")
for t in range(5):
    A(f"s_waitcnt lgkmcnt({max(0, 11-3*t)})")
    c = "0" if t == 0 else "v[40:43]"
    A(f"v_mfma_f32_16x16x32_bf16 v[40:43], v[{XA+4*t}:{XA+4*t+3}], v[{XB+4*t}:{XB+4*t+3}], {c}")
A("s_mov_b64 exec, 0xffff")
A("s_nop 6")
tag(40)
A(f"buffer_store_dwordx4 v[40:43], v55, s[{sWS}:{sWS+3}], s17 offen sc1")
A("s_mov_b64 exec, 1")
A(f"ds_add_rtn_u32 v14, v13, v60 offset:{C_XW}")
A("s_waitcnt lgkmcnt(0)")
A("v_readfirstlane_b32 s23, v14")
A("s_cmp_lg_u32 s23, 3")
A("s_cbranch_scc1 L_XNF")
A("s_mov_b64 exec, s[8:9]")
A(f"buffer_store_dword v58, v57, s[{sWS}:{sWS+3}], s18 offen sc1")
A("L_XNF:")
A("s_mov_b64 exec, -1")
A("s_setprio 0")
A("s_branch L_XEND")
A("L_NOX:")
A("s_waitcnt lgkmcnt(0)")
make_tags()
A("L_XEND:")
ST(2)
A("v_mul_u32_u24 v15, 576, v3")
A("v_lshl_add_u32 v15, v4, 2, v15")
A("s_lshl_b32 s12, s6, 6")
A(f"s_add_u32 s12, s12, {QL}")
A("v_add_u32 v15, s12, v15")
A("v_lshl_add_u32 v56, v3, 2, v7")
A("v_mul_u32_u24 v56, 48, v56")
A("s_and_b32 s12, s4, 3")
for k in (1, 2, 3):
    A(f"s_cmp_ge_u32 s12, {k}")
    A(f"s_cselect_b64 s[{12+2*k}:{13+2*k}], -1, 0")
A("v_lshlrev_b32 v57, 1, v4")
A("s_lshl_b32 s12, s6, 5")
A("v_add_u32 v57, s12, v57")
ldspin("L_RU2", R_U, 2)
for g in range(3):
    A(f"ds_read_u16 v{SZ+g}, v57 offset:{SCL + 288*g}")
    A(f"ds_read_u16 v{SZ+3+g}, v57 offset:{ZL + 288*g}")
A("s_waitcnt lgkmcnt(0)")
for g in range(6): A(f"v_lshlrev_b32 v{SZ+g}, 16, v{SZ+g}")
SP, ZP = 70, 79
def pairsz(p):
    base = p >> 2
    r = p & 3
    if r == 0: return SZ+base, SZ+3+base
    return SP+p, ZP+p
for p in range(9):
    base, r = p >> 2, p & 3
    if r:
        k = 4 - r
        A(f"v_cndmask_b32 v{SP+p}, v{SZ+base}, v{SZ+base+1}, s[{12+2*k}:{13+2*k}]")
        A(f"v_cndmask_b32 v{ZP+p}, v{SZ+3+base}, v{SZ+3+base+1}, s[{12+2*k}:{13+2*k}]")
QW = 16
B = 36
AX = 100
for r in (B+9, B+10, B+11, AX+9, AX+10, AX+11): A(f"v_mov_b32 v{r}, 0")
A("s_mul_i32 s18, s3, 2304")
A("s_lshl_b32 s19, s6, 8")
A("s_add_u32 s18, s18, s19")
A(f"s_add_u32 s18, s18, {HP_OFF}")
A("s_mul_i32 s17, s5, 8*2304")
A("s_add_u32 s17, s17, s19")
A(f"s_add_u32 s17, s17, {HP_OFF}")
A("v_lshlrev_b32 v61, 7, v2")
A("v_mov_b32 v62, s7")
A("s_lshl_b32 s16, s5, 10")
A("s_lshl_b32 s19, s4, 2")
A("s_add_u32 s16, s16, s19")
A(f"s_add_u32 s16, s16, {FL_OFF + 32}")
ldspin("L_RQ", R_Q, 1)
ST(3)
for p in range(9):
    A(f"ds_read2st64_b32 v[{QW+2*p}:{QW+2*p+1}], v15 offset0:{18*p} offset1:{18*p+9}")
for p in range(9):
    A(f"s_waitcnt lgkmcnt({8-p})")
    if p == 8:
        A("s_mov_b64 exec, 1")
        A(f"ds_add_u32 v13, v60 offset:{C_Q}")
        A("s_mov_b64 exec, -1")
    r0, r1 = QW+2*p, QW+2*p+1
    sr, zr = pairsz(p)
    A(f"v_cvt_f32_i32 v{r0}, v{r0}")
    A(f"v_cvt_f32_i32 v{r1}, v{r1}")
    A(f"v_sub_f32 v{r0}, v{r0}, v{zr}")
    A(f"v_sub_f32 v{r1}, v{r1}, v{zr}")
    A(f"v_cvt_pk_bf16_f32 v{r1}, v{r0}, v{r1}")
    A(f"v_lshlrev_b32 v{r0}, 16, v{r1}")
    A(f"v_and_b32 v{r1}, 0xffff0000, v{r1}")
    A(f"v_mul_f32 v{r0}, v{r0}, v{sr}")
    A(f"v_mul_f32 v{r1}, v{r1}, v{sr}")
    A(f"v_cvt_pk_bf16_f32 v{B+p}, v{r0}, v{r1}")
if RM == 2:
    A("s_lshl_b32 s21, s6, 7")
    A("s_add_u32 s21, s20, s21")
    A(f"s_add_u32 s21, s21, {136*9216}")
    ldspin("L_RX", R_X, 1)
    A(f"buffer_load_dwordx4 v[112:115], v11, s[{sV}:{sV+3}], s21 offen nt")
else:
    ldspin("L_RX", R_X, 1)
A(f"ds_read_b128 v[{AX}:{AX+3}], v56 offset:{XR}")
A(f"ds_read_b128 v[{AX+4}:{AX+7}], v56 offset:{XR+16}")
A(f"ds_read_b32 v{AX+8}, v56 offset:{XR+32}")
for t in range(3):
    A(f"s_waitcnt lgkmcnt({2-t})")
    c = "0" if t == 0 else "v[48:51]"
    A(f"v_mfma_f32_16x16x32_bf16 v[48:51], v[{AX+4*t}:{AX+4*t+3}], v[{B+4*t}:{B+4*t+3}], {c}")
A("s_mov_b64 exec, 0xffff")
A("s_cmp_eq_u32 s23, 2")
A("s_nop 5")
tag(48)
A("s_cbranch_scc0 L_HGL")
A(f"buffer_store_dwordx4 v[48:51], v55, s[{sWS}:{sWS+3}], s18 offen")
A("s_branch L_HNF")
A("L_HGL:")
A(f"buffer_store_dwordx4 v[48:51], v55, s[{sWS}:{sWS+3}], s18 offen sc1")
A("s_mov_b64 exec, 1")
A(f"ds_add_rtn_u32 v14, v13, v60 offset:{C_H}")
A("s_waitcnt lgkmcnt(0)")
A("v_readfirstlane_b32 s23, v14")
A("s_cmp_lg_u32 s23, 8")
A("s_cbranch_scc1 L_HNF")
A("s_mov_b64 exec, 0xff")
A(f"buffer_store_dword v62, v61, s[{sWS}:{sWS+3}], s16 offen sc1")
A("L_HNF:")
A("s_mov_b64 exec, -1")
REM = 112
A("s_lshl_b32 s21, s6, 7")
A("s_add_u32 s20, s20, s21")
A(f"s_add_u32 s20, s20, {136*9216}")
if not RM: A(f"buffer_load_dwordx4 v[{REM}:{REM+3}], v11, s[{sV}:{sV+3}], s20 offen nt")
else: A("v_mov_b32 v118, v11")
ST(4)
A("v_mul_u32_u24 v96, 2304, v10")
A("v_lshl_add_u32 v96, v8, 4, v96")
A("v_lshrrev_b32 v58, 2, v8")
A("v_lshlrev_b32 v58, 6, v58")
A("v_lshl_add_u32 v58, v7, 4, v58")
A("v_and_b32 v59, 3, v8")
A("v_lshl_add_u32 v58, v59, 1, v58")
A("s_lshr_b32 s18, s6, 1")
A("s_lshl_b32 s18, s18, 8")
A("s_and_b32 s19, s6, 1")
A("s_lshl_b32 s19, s19, 3")
A("s_add_u32 s18, s18, s19")
A("v_add_u32 v97, s18, v58")
A("v_mov_b32 v9, v55")
A("v_mov_b32 v15, v60")
AV = 16
def areg(t, i=0): return AV + 4*t
A("v_mul_u32_u24 v98, 9216, v90")
A("v_add_u32 v98, v98, v88")
A("s_lshl_b32 s18, s6, 10")
A(f"s_add_u32 s18, s18, {VL}")
A("v_add_u32 v98, s18, v98")
TRA, TRB = 100, 104
for i in range(4):
    A(f"v_xor_b32 v99, {i}, v89")
    A(f"v_lshl_add_u32 v{TRA+i}, v99, 5, v98")
    A(f"v_add_u32 v{TRB+i}, 73728, v{TRA+i}")
A("v_add_u32 v99, s18, v9")
A("v_lshlrev_b32 v98, 6, v3")
A("v_lshl_add_u32 v98, v7, 4, v98")
A("v_mov_b32 v34, 0"); A("v_mov_b32 v35, 0")
A(f"v_mov_b32 v117, {1 << (TB-1):#x}")
A("s_lshl_b32 s16, s4, 5")
A("s_add_u32 s14, s16, s5")
A("s_mul_i32 s14, s14, 9216")
A("s_lshl_b32 s19, s6, 10")
A("s_add_u32 s14, s14, s19")
A(f"s_add_u32 s14, s14, {YP_OFF}")
A("v_subrev_u32 v8, 128, v0")
A("v_mul_u32_u24 v10, 3641, v8")
A("v_lshrrev_b32 v10, 16, v10")
A("v_mul_u32_u24 v10, 8928, v10")
A("v_lshlrev_b32 v11, 4, v8")
A("v_add_u32 v10, v10, v11")
if OW:
    A("s_and_b32 s12, s2, 7")
    A("s_lshr_b32 s13, s2, 3")
else:
    A("s_mov_b32 s12, s4"); A("s_mov_b32 s13, s5")
A("s_mul_i32 s16, s12, 32*9216")
A("s_mul_i32 s19, s13, 288")
A("s_add_u32 s16, s16, s19")
A(f"s_add_u32 s16, s16, {YP_OFF}")
A("v_and_b32 v1, 7, v8")
A("v_mul_u32_u24 v1, 288, v1")
A("v_lshrrev_b32 v8, 3, v8")
A("v_lshl_add_u32 v1, v8, 2, v1")
A(f"v_add_u32 v1, {VL}, v1")
A("v_and_b32 v12, 3, v8")
A("v_mul_u32_u24 v12, 9216, v12")
A("v_lshrrev_b32 v8, 2, v8")
A("v_lshl_add_u32 v12, v8, 1, v12")
A("s_mul_i32 s15, s12, 1152")
A("s_mul_i32 s19, s13, 36")
A("s_add_u32 s15, s15, s19")
if os.environ.get("FAKEOUT"):
    A("v_subrev_u32 v12, 128, v0")
    A("v_lshrrev_b32 v12, 3, v12")
    A("v_lshlrev_b32 v12, 1, v12")
    A("s_mul_i32 s15, s3, 144")
BT = 48
ldspin("L_RH", R_H, 1)
H0, H1 = 48, 52
A(f"s_mov_b32 s22, {SPIN}")
A("L_HPOLL:")
A(f"buffer_load_dwordx4 v[{H0}:{H0+3}], v96, s[{sWS}:{sWS+3}], s17 offen sc1")
A(f"buffer_load_dwordx4 v[{H1}:{H1+3}], v96, s[{sWS}:{sWS+3}], s17 offen offset:128 sc1")
A("s_waitcnt vmcnt(0)")
check(H0, 56)
check(H1, 57)
A("v_or_b32 v56, v56, v57")
A(f"v_and_b32 v56, {TM:#x}, v56")
A("v_cmp_ne_u32 vcc, 0, v56")
A("s_and_b64 exec, vcc, vcc")
A("s_cbranch_scc0 L_HDONE")
A("s_sub_u32 s22, s22, 1")
A("s_cbranch_scc0 L_HPOLL")
A("L_HDONE:")
A("s_mov_b64 exec, -1")
if RM in (1, 3): A(f"buffer_load_dwordx4 v[{REM}:{REM+3}], v118, s[{sV}:{sV+3}], s20 offen nt")
ST(5)
for dp in ("quad_perm:[1,0,3,2]", "quad_perm:[2,3,0,1]", "row_half_mirror"):
    for i in range(8):
        A(f"v_add_f32_dpp v{H0+i}, v{H0+i}, v{H0+i} {dp} row_mask:0xf bank_mask:0xf")
sel4(H0); sel4(H1)
A(f"v_cvt_pk_bf16_f32 v{H0}, v{H0}, v{H1}")
A(f"ds_write_b16 v97, v{H0} offset:{HA}")
A(f"ds_write_b16_d16_hi v97, v{H0} offset:{HA+128}")
A("s_mov_b64 exec, 1")
A(f"ds_add_u32 v13, v15 offset:{C_A}")
A("s_mov_b64 exec, -1")
ldspin("L_CA", C_A, 9)
for t in range(4):
    a = areg(t)
    A(f"ds_read_b128 v[{a}:{a+3}], v98 offset:{HA + 256*t}")
A(f"ds_read_b64 v[32:33], v98 offset:{HA + 1024}")
Y = 108
YD = [36, 40, 44, 120]
def trreads(t, base):
    tr = TRA if t < 2 else TRB
    o = (1 + 4*(t % 2))*9216
    for i in range(4):
        A(f"ds_read_b64_tr_b16 v[{base+4*i}:{base+4*i+1}], v{tr+i} offset:{o}")
        A(f"ds_read_b64_tr_b16 v[{base+4*i+2}:{base+4*i+3}], v{tr+i} offset:{o + 2*9216}")
def mf(t, i, base, first=False):
    a = areg(t); d = YD[i]
    c = "0" if first else f"v[{d}:{d+3}]"
    A(f"v_mfma_f32_16x16x32_bf16 v[{d}:{d+3}], v[{a}:{a+3}], v[{base+4*i}:{base+4*i+3}], {c}")
def mfmas(t, base, first=False):
    for i in range(4): mf(t, i, base, first)
def kstep(t, base):
    trreads(t, base)
    for i in range(4):
        A(f"s_waitcnt lgkmcnt({6-2*i})")
        mf(t, i, base)
LG = (max(D1, D3) + 8)//9
ST(6)
if RM != 3:
    ldspin("L_EB", PROG, 9 + LG)
    trreads(0, BT)
    if RM: A("s_waitcnt vmcnt(0)")
    A(f"ds_write_b128 v99, v[{REM}:{REM+3}] offset:9216")
    trreads(1, BT+16)
    for i in range(4):
        A(f"v_mov_b32 v{BT+32+4*i+2}, 0"); A(f"v_mov_b32 v{BT+32+4*i+3}, 0")
    A("s_waitcnt lgkmcnt(9)")
    mfmas(0, BT, True)
    for i in range(4):
        A(f"ds_read_b64_tr_b16 v[{BT+32+4*i}:{BT+32+4*i+1}], v{TRA+i}")
    A("s_waitcnt lgkmcnt(4)")
    mfmas(1, BT+16)
    A("s_waitcnt lgkmcnt(0)")
    mfmas(4, BT+32)
    A(f"s_mov_b32 s22, {SPIN}")
    A("s_barrier")
    ST(7)
    kstep(2, BT)
else:
    ldspin("L_EB", PROG, 9 + LG)
    trreads(0, BT)
    trreads(1, BT+16)
    for i in range(4):
        A(f"v_mov_b32 v{BT+32+4*i+2}, 0"); A(f"v_mov_b32 v{BT+32+4*i+3}, 0")
    A("s_waitcnt lgkmcnt(8)")
    mfmas(0, BT, True)
    A("s_waitcnt lgkmcnt(0)")
    mfmas(1, BT+16)
    A(f"s_mov_b32 s22, {SPIN}")
    A("s_barrier")
    ST(7)
    trreads(2, BT)
    A("s_waitcnt vmcnt(0)")
    A(f"ds_write_b128 v99, v[{REM}:{REM+3}] offset:9216")
    for i in range(4):
        A(f"ds_read_b64_tr_b16 v[{BT+32+4*i}:{BT+32+4*i+1}], v{TRA+i}")
    A("s_waitcnt lgkmcnt(5)")
    mfmas(2, BT)
    A("s_waitcnt lgkmcnt(0)")
    mfmas(4, BT+32)
ST(8)
A("s_barrier")
ST(9)
kstep(3, BT+16)
A("s_nop 1")
for g in range(4):
    for r in range(4):
        A(f"v_add_u32_dpp v{Y+r}, v{YD[g]+r}, v117 quad_perm:[0,1,2,3] row_mask:{1 << g:#x} bank_mask:0xf")
for i in range(4): A(f"v_and_or_b32 v{Y+i}, v{Y+i}, v5, s{60+i}")
A(f"buffer_store_dwordx4 v[{Y}:{Y+3}], v9, s[{sWS}:{sWS+3}], s14 offen sc1")
ST(10)
A("s_barrier")
YG = 112
A("s_branch L_YP0")
A("L_YPOLL:")
A("s_sleep 2")
A("L_YP0:")
A(f"buffer_load_dwordx4 v[{YG}:{YG+3}], v10, s[{sWS}:{sWS+3}], s16 offen sc1")
A("s_waitcnt vmcnt(0)")
check(YG, 116)
A(f"v_and_b32 v116, {TM:#x}, v116")
A("v_cmp_ne_u32 vcc, 0, v116")
A("s_and_b64 exec, vcc, vcc")
A("s_cbranch_scc0 L_YDONE")
A("s_sub_u32 s22, s22, 1")
A("s_cbranch_scc0 L_YPOLL")
A("L_YDONE:")
A("s_mov_b64 exec, -1")
ST(11)
A(f"ds_write_b128 v11, v[{YG}:{YG+3}] offset:{VL}")
A("s_waitcnt lgkmcnt(0)")
A("s_barrier")
A(f"ds_read2st64_b32 v[{YG}:{YG+1}], v1 offset0:0 offset1:9")
A(f"ds_read2st64_b32 v[{YG+2}:{YG+3}], v1 offset0:18 offset1:27")
A("s_waitcnt lgkmcnt(0)")
A(f"v_add_f32 v{YG}, v{YG}, v{YG+1}")
A(f"v_add_f32 v{YG+2}, v{YG+2}, v{YG+3}")
A(f"v_add_f32 v{YG}, v{YG}, v{YG+2}")
for dp in ("quad_perm:[1,0,3,2]", "quad_perm:[2,3,0,1]", "row_half_mirror"):
    A("s_nop 1")
    A(f"v_add_f32_dpp v{YG}, v{YG}, v{YG} {dp} row_mask:0xf bank_mask:0xf")
A(f"v_cvt_pk_bf16_f32 v{YG}, v{YG}, v{YG}")
A("s_mov_b32 exec_lo, 0x01010101")
A("s_mov_b32 exec_hi, 0x01010101")
A(f"buffer_store_short v{YG}, v12, s[{sOUT}:{sOUT+3}], s15 offen")
A("s_or_b32 s19, s2, s6")
A("s_cbranch_scc1 L_CEND")
A("s_mov_b64 exec, 1")
A("v_mov_b32 v14, s7")
A(f"buffer_store_dword v14, v13, s[{sWS}:{sWS+3}], 0 offen offset:{EP_OFF}")
A("L_CEND:")
if os.environ.get("MODEDG"):
    A("s_cmp_lg_u32 s2, 100")
    A("s_cbranch_scc1 L_DGE")
    A("s_cmp_lg_u32 s6, 0")
    A("s_cbranch_scc1 L_DGE")
    A("s_mov_b64 exec, -1")
    A("s_memrealtime s[64:65]")
    A(f"ds_read_b32 v24, v13 offset:{R_X}")
    A("s_waitcnt lgkmcnt(0)")
    A("v_readfirstlane_b32 s12, v24")
    A("s_mul_i32 s10, s64, 0x9E3779B1")
    A("s_lshr_b32 s10, s10, 19")
    A("s_cmp_eq_u32 s12, 2")
    A("s_cselect_b32 s10, s10, " + ("12000" if os.environ["MODEDG"] == "hi" else "0"))
    A("s_add_u32 s10, s10, s64")
    A("L_DGW:")
    A("s_memrealtime s[12:13]")
    A("s_waitcnt lgkmcnt(0)")
    A("s_sub_u32 s11, s12, s10")
    A("s_cmp_lt_i32 s11, 0")
    A("s_cbranch_scc1 L_DGW")
    A("L_DGE:")
if STAMPS:
    A("s_waitcnt vmcnt(0)")
    A("; STAMPDUMP 0 12")
A("s_endpgm")
A("L_CODE_END:")

VG = 124
A('.section .rodata,"a"')
A(".p2align 6")
A(f""".amdhsa_kernel {KN}
  .amdhsa_next_free_vgpr {VG}
  .amdhsa_next_free_sgpr 70
  .amdhsa_accum_offset {(VG+3)//4*4}
  .amdhsa_group_segment_fixed_size 0
  .amdhsa_kernarg_size 72
  .amdhsa_user_sgpr_count 2
  .amdhsa_user_sgpr_kernarg_segment_ptr 1
  .amdhsa_system_sgpr_workgroup_id_x 1
  .amdhsa_float_denorm_mode_32 3
.end_amdhsa_kernel""")
dst = sys.argv[1]
if STAMPS:
    open(dst + ".pre", "w").write("\n".join(out) + "\n")
    import subprocess
    subprocess.check_call([sys.executable, "stamp.py", dst + ".pre", dst])
else:
    open(dst, "w").write("\n".join(out) + "\n")
```

```python
import sys, os
NAME = "standalone__weight_only_int_quip__decode"
KN = NAME + "_kernel"
E = lambda k, d: int(os.environ.get(k, str(d)))
D1 = E("D1", 18); D3 = E("D3", 36); TK = E("TK", 8); PH = E("PH", 8)
D2 = E("D2", 0)
HY = E("HY", 0)
PP = E("PP", 0)
PT = os.environ.get("PT", "wo")
RM = E("RM", 3)
OW = E("OW", 1)
HI = E("HI", 2)
DX = E("DX", 30)
GT = E("GT", 1)
FD = E("FD", 99)
FM = E("FM", 0)
DM = E("DM", 0); LT = E("LT", 30)
EI = E("EI", 1)
XS = E("XS", 1)
YS = E("YS", 128)
YF1 = os.environ.get("YF1", "sc1").replace("none", "").replace("+", " ")
TA = E("TA", 205); TBk = E("TBK", 32)
TB = E("TB", 8)
STAMPS = bool(os.environ.get("STAMPS"))
SPIN = 1 << 21
RND = (D1 + 8)//9
out = []
def A(s): out.append(s)
def ST(k):
    if STAMPS: A(f"; STAMP {k}")
TM = (1 << TB) - 1

XR, HA, CNT, SCL, ZL, XL, VL = 0, 768, 2048, 2304, 3328, 4352, 7168
R_U, R_Q, R_X, R_H, C_A, C_Q, C_XW, C_H, R_E, PROG, C_U, C_I, T_ADJ = [CNT + 4*i for i in range(13)]
LDS_BYTES = VL + 17*9216
QL = LDS_BYTES - 41472
UL = QL - 18432
assert LDS_BYTES == 163840 and UL >= VL + 10*9216
EP_OFF, YC_OFF, AG_OFF, FL_OFF, XP_OFF, HP_OFF, YP_OFF, WS_BYTES = 0, 1024, 4096, 8192, 65536, 196608, 1 << 20, 4 << 20
XPB = 36864
XF_OFF = 49152
if YS != 128: YC_OFF = 819200

A(f"""; Kernarg layout for this problem (72 bytes, ptrs only, base s[0:1]):
; @launch grid=(256,1,1) block=(704,1,1) lds={LDS_BYTES}
.amdgcn_target "amdgcn-amd-amdhsa--gfx950"
.text
.globl {KN}
.p2align 8
.type {KN},@function
{KN}:""")

sQW, sSC, sZ, sV, sWS, sOUT, sU, sX = 24, 28, 32, 36, 40, 44, 48, 52
def kl(r, off): A(f"s_load_dwordx2 s[{r}:{r+1}], s[0:1], {off}")
def setsrd(r, nb):
    A(f"s_mov_b32 s{r+2}, {nb}")
    A(f"s_mov_b32 s{r+3}, 0x00020000")
def load_tags(): A(f"s_load_dword s7, s[{sWS}:{sWS+1}], {EP_OFF}")
def make_tags():
    step = (1 << TB) * 31 // 100
    for i in range(4):
        A(f"s_add_u32 s{60+i}, s7, {1 + i*step}")
        A(f"s_and_b32 s{60+i}, s{60+i}, {TM:#x}")
    A("s_add_u32 s7, s7, 1")
def tag(r):
    for i in range(4): A(f"v_add_u32 v{r+i}, {1 << (TB-1):#x}, v{r+i}")
    for i in range(4): A(f"v_and_or_b32 v{r+i}, v{r+i}, v5, s{60+i}")
def check(r, t):
    for i in range(4): A(f"v_xor_b32 v{r+i}, s{60+i}, v{r+i}")
    A(f"v_or3_b32 v{t}, v{r}, v{r+1}, v{r+2}")
    A(f"v_or_b32 v{t}, v{t}, v{r+3}")
def masks():
    A("s_mov_b32 s56, 0x22222222"); A("s_mov_b32 s57, 0x22222222")
    A("s_mov_b32 s58, 0x44444444"); A("s_mov_b32 s59, 0x44444444")
    A("s_mov_b32 s64, 0x88888888"); A("s_mov_b32 s65, 0x88888888")
def sel4(h):
    A(f"v_cndmask_b32 v{h}, v{h}, v{h+1}, s[56:57]")
    A(f"v_cndmask_b32 v{h}, v{h}, v{h+2}, s[58:59]")
    A(f"v_cndmask_b32 v{h}, v{h}, v{h+3}, s[64:65]")
def ldspin(label, addr, target, tmp=14):
    A(f"s_mov_b32 s22, {SPIN*16}")
    A(f"{label}:")
    A(f"ds_read_b32 v{tmp}, v13 offset:{addr}")
    A("s_waitcnt lgkmcnt(0)")
    A(f"v_readfirstlane_b32 s23, v{tmp}")
    A(f"s_cmp_ge_u32 s23, {target}")
    A(f"s_cbranch_scc1 {label}_D")
    A("s_sleep 1")
    A("s_sub_u32 s22, s22, 1")
    A(f"s_cbranch_scc0 {label}")
    A(f"{label}_D:")
def swz():
    A("v_lshrrev_b32 v8, 3, v2")
    A("v_and_b32 v9, 6, v8")
    A("v_and_b32 v10, 7, v2")
    A("v_xor_b32 v9, v9, v10")
def vaddr():
    A("v_mul_u32_u24 v11, 9216, v8")
    A("v_lshl_add_u32 v11, v9, 4, v11")
    A("s_mul_i32 s20, s5, 144*9216")
    A("s_mul_i32 s21, s4, 1152")
    A("s_add_u32 s20, s20, s21")
def xids():
    A("s_mul_i32 s10, s2, 57")
    A("s_lshr_b32 s10, s10, 9")
    A("s_mul_i32 s11, s10, 9")
    A("s_sub_u32 s11, s2, s11")
def logid():
    A("s_lshl_b32 s3, s5, 3")
    A("s_add_u32 s3, s3, s4")
def flagline(r=3):
    A(f"s_lshl_b32 s18, s{r}, 7")
    A(f"s_add_u32 s18, s18, {FL_OFF}")
    A(f"s_add_u32 s18, s{sWS}, s18")
    A(f"s_addc_u32 s19, s{sWS+1}, 0")

A("s_cmp_ge_u32 s2, 256")
A("s_cbranch_scc1 L_END")
kl(sQW, 8)
A("s_getpc_b64 s[8:9]")
A("L_PC:")
A("v_lshlrev_b32 v14, 4, v0")
A("v_min_u32 v14, L_CODE_END-L_PC-4, v14")
A("global_load_dword v99, v14, s[8:9]")
kl(sU, 32); kl(sX, 0); kl(sWS, 64)
if GT: A("s_memrealtime s[66:67]")
A("v_readfirstlane_b32 s6, v0")
ST(0)
A("s_bfe_u32 s4, s2, 0x30003")
A("s_and_b32 s5, s2, 7")
A("s_lshl_b32 s5, s5, 2")
A("s_lshr_b32 s3, s2, 6")
A("s_add_u32 s5, s5, s3")
A("v_and_b32 v2, 63, v0")
A("v_mov_b32 v13, 0")
A("s_lshr_b32 s6, s6, 6")
A("s_cbranch_scc1 L_NOTL")
if not GT: A("s_memrealtime s[66:67]")
setsrd(sQW, 576*4608*4)
A("v_mul_u32_u24 v14, 1821, v2")
A("v_lshlrev_b32 v15, 4, v2")
A("s_movk_i32 s13, 17856")
A("s_mul_i32 s12, s4, 72*18432")
A("s_mul_i32 s14, s5, 576")
A("s_add_u32 s12, s12, s14")
A(f"s_mov_b32 m0, {QL}")
QO = 16
A(f"v_lshrrev_b32 v{QO}, 16, v14")
A(f"v_mad_u32_u24 v{QO}, v{QO}, s13, v15")
A("s_cmp_ge_u32 s2, 36")
A("s_cbranch_scc1 L_QGO")
A("s_barrier")
A("L_QGO:")
A("s_waitcnt lgkmcnt(0)")
kl(sV, 40)
for i in range(9):
    if i:
        A(f"v_add_u32 v14, {64*1821}, v14")
        if i % 4 == 0:
            A("s_add_u32 m0, m0, 4096")
            A("s_add_u32 s12, s12, 4096")
        A(f"v_lshrrev_b32 v{QO+i}, 16, v14")
        A(f"v_mad_u32_u24 v{QO+i}, v{QO+i}, s13, v15")
    A(f"buffer_load_dwordx4 v{QO+i}, s[{sQW}:{sQW+3}], s12 offen offset:{1024*(i%4)} nt lds")
A("s_mov_b32 s16, 1")
if DX:
    A("s_cmp_lt_u32 s2, 36")
    A("s_cbranch_scc1 L_QLOOPX")
A("L_QLOOP:")
for i in range(9):
    if i % 4 == 0:
        A(f"s_add_u32 m0, m0, {4096 if i else 1024}")
        A(f"s_add_u32 s12, s12, {4096 if i else 16*18432 - 8192}")
    if i == 4:
        A("s_cmp_eq_u32 s16, 4")
        A("s_cselect_b32 exec_hi, 0, -1")
    A(f"s_waitcnt vmcnt({D1-1})")
    A(f"buffer_load_dwordx4 v{QO+i}, s[{sQW}:{sQW+3}], s12 offen offset:{1024*(i%4)} nt lds")
    if i == 4: A("s_cbranch_scc1 L_QDONE")
A("s_add_u32 s16, s16, 1")
A("s_cmp_lg_u32 s16, 2")
A("s_cbranch_scc1 L_QLOOP")
A("s_cmp_lt_u32 s2, 36")
A("s_cbranch_scc1 L_QLOOP")
A("s_barrier")
A("s_branch L_QLOOP")

A("L_NOTL:")
A("s_cmp_eq_u32 s6, 1")
A("s_cbranch_scc1 L_AUX")
A("v_lshlrev_b32 v14, 2, v2")
A(f"ds_write_b32 v14, v13 offset:{CNT}")
swz()
A("s_cmp_ge_u32 s2, 36")
A("s_cbranch_scc1 L_NOU")
xids()
setsrd(sU, 576*1152)
A("v_mul_u32_u24 v12, 1152, v8")
A("v_lshl_add_u32 v12, v9, 4, v12")
A("s_mul_i32 s14, s10, 144*1152")
A("s_lshl_b32 s13, s11, 7")
A("s_add_u32 s14, s14, s13")
A("s_mul_i32 s13, s6, 16*1152")
A("s_add_u32 s14, s14, s13")
A(f"s_sub_u32 s14, s14, {32*1152}")
A("s_lshl_b32 s13, s6, 11")
A(f"s_add_u32 m0, s13, {UL - 4096}")
A(f"s_add_u32 s15, s14, {8*1152 - 1024}")
A("s_waitcnt lgkmcnt(0)")
A(f"buffer_load_dwordx4 v12, s[{sU}:{sU+3}], s14 offen nt lds")
A(f"buffer_load_dwordx4 v12, s[{sU}:{sU+3}], s15 offen offset:1024 nt lds")
A("L_NOU:")
A("s_waitcnt lgkmcnt(0)")
kl(sV, 40); kl(sOUT, 48)
load_tags()
A("s_barrier")
A("s_branch L_COMP")
A("L_AUX:")
A("v_mul_u32_u24 v27, 3641, v2")
A("v_lshrrev_b32 v27, 16, v27")
A("v_lshlrev_b32 v29, 4, v2")
A("v_lshlrev_b32 v14, 7, v2")
A("s_cmp_ge_u32 s2, 36")
A("s_cbranch_scc1 L_NOXL")
setsrd(sX, 4*1152)
A("s_mul_i32 s10, s2, 57")
A("s_lshr_b32 s10, s10, 9")
A("v_mul_u32_u24 v28, 864, v27")
A("v_add_u32 v28, v28, v29")
A("s_mul_i32 s17, s10, 288")
A(f"s_mov_b32 m0, {XL}")
A("s_add_u32 s18, s17, 3*864")
A("s_waitcnt lgkmcnt(0)")
A(f"buffer_load_dwordx4 v28, s[{sX}:{sX+3}], s17 offen lds")
A("s_mov_b64 exec, 0xff")
A(f"buffer_load_dwordx4 v29, s[{sX}:{sX+3}], s18 offen offset:1024 lds")
A("s_cmp_lg_u32 s2, 0")
A("s_cbranch_scc1 L_NOZ")
if YS == 128: A(f"global_store_dword v14, v13, s[{sWS}:{sWS+1}] offset:{YC_OFF} sc1")
else:
    A(f"v_mul_u32_u24 v14, {YS}, v2")
    A(f"v_add_u32 v14, {YC_OFF}, v14")
    A(f"global_store_dword v14, v13, s[{sWS}:{sWS+1}] sc1")
A("L_NOZ:")
A("s_mov_b64 exec, -1")
A("L_NOXL:")
kl(sSC, 16); kl(sZ, 24)
if PT: kl(sV, 40); kl(sOUT, 48)
A("s_barrier")
setsrd(sSC, 18*9216); setsrd(sZ, 18*9216); setsrd(sWS, WS_BYTES)
A("v_mul_u32_u24 v27, 8928, v27")
A("v_add_u32 v27, v27, v29")
A("s_mul_i32 s16, s4, 9")
A("s_lshr_b32 s16, s16, 2")
A("s_mul_i32 s16, s16, 9216")
A("s_mul_i32 s17, s5, 288")
A("s_add_u32 s16, s16, s17")
A(f"s_mov_b32 m0, {SCL}")
A("s_mov_b32 exec_hi, 0x3fffff")
A("s_waitcnt lgkmcnt(0)")
load_tags()
A(f"buffer_load_dwordx4 v27, s[{sSC}:{sSC+3}], s16 offen lds")
A(f"s_mov_b32 m0, {ZL}")
A("s_nop 0")
A(f"buffer_load_dwordx4 v27, s[{sZ}:{sZ+3}], s16 offen lds")
NPT = 0
if PT:
    A("s_mov_b64 exec, 3")
    if "v" in PT:
        A("s_mul_i32 s20, s5, 144*9216")
        A(f"v_mul_u32_u24 v30, {144*9216-4}, v2")
        A("v_add_u32 v30, s20, v30")
        A(f"global_load_dword v31, v30, s[{sV}:{sV+1}]"); NPT += 1
    if "w" in PT:
        A(f"v_mul_u32_u24 v30, {(4<<20)-1024}, v2")
        A(f"global_load_dword v32, v30, s[{sWS}:{sWS+1}] offset:512"); NPT += 1
    if "o" in PT:
        A(f"global_load_dword v33, v13, s[{sOUT}:{sOUT+1}]"); NPT += 1
    if "q" in PT:
        A("s_mul_i32 s20, s4, 72*18432")
        A(f"s_add_u32 s20, s20, {72*18432-4}")
        A("v_mov_b32 v30, s20")
        A(f"global_load_dword v34, v30, s[{sQW}:{sQW+1}]"); NPT += 1
A("s_mov_b64 exec, -1")
if HI == 2 and EI:
    logid()
    A("s_mul_i32 s8, s3, 2304")
    A(f"s_add_u32 s8, s8, {HP_OFF}")
    for r in range(20, 24): A(f"v_mov_b32 v{r}, 0")
    A(f"buffer_store_dwordx4 v[20:23], v29, s[{sWS}:{sWS+3}], s8 offen")
    A(f"buffer_store_dwordx4 v[20:23], v29, s[{sWS}:{sWS+3}], s8 offen offset:1024")
    A("s_mov_b64 exec, 0xffff")
    A(f"buffer_store_dwordx4 v[20:23], v29, s[{sWS}:{sWS+3}], s8 offen offset:2048")
    A("s_mov_b64 exec, -1")
    NPT += 3
A("s_branch L_SYNC")

if DX:
    A("L_QLOOPX:")
    for i in range(9):
        if i % 4 == 0:
            A(f"s_add_u32 m0, m0, {4096 if i else 1024}")
            A(f"s_add_u32 s12, s12, {4096 if i else 16*18432 - 8192}")
        if i == 4:
            A("s_cmp_eq_u32 s16, 4")
            A("s_cselect_b32 exec_hi, 0, -1")
        A(f"s_waitcnt vmcnt({DX-1})")
        A(f"buffer_load_dwordx4 v{QO+i}, s[{sQW}:{sQW+3}], s12 offen offset:{1024*(i%4)} nt lds")
        if i == 4: A("s_cbranch_scc1 L_QDONE")
    A("s_add_u32 s16, s16, 1")
    A("s_branch L_QLOOPX")
A("L_QDONE:")
A("s_mov_b32 exec_hi, -1")
ST(1)
setsrd(sV, 4608*9216); setsrd(sWS, WS_BYTES)
swz(); vaddr(); logid()
A("v_mov_b32 v26, 1")
A(f"s_add_u32 s12, s20, {128*9216}")
A(f"s_mov_b32 s15, {VL}")
A("s_mov_b32 s16, 0")
A("s_mov_b32 s14, 0")
A("s_waitcnt lgkmcnt(0)")
A(f"s_add_u32 s66, s66, {TA}")
def vround(depth):
    for cg in range(9):
        A(f"s_add_u32 m0, s15, {cg*1024 - cg*128}")
        A(f"s_waitcnt vmcnt({depth-1})")
        A(f"buffer_load_dwordx4 v11, s[{sV}:{sV+3}], s12 offen offset:{cg*128} nt lds")
A("L_V1:")
vround(D1)
if HY: A("s_mov_b32 s13, 0")
A("L_VT:")
A(f"s_add_u32 s12, s12, {8*9216}")
A("s_cmp_eq_u32 s16, 0")
A("s_cselect_b32 s12, s20, s12")
A("s_add_u32 s15, s15, 9216")
A("s_memrealtime s[68:69]")
if GT: A(f"ds_read_b32 v36, v13 offset:{T_ADJ}")
if D2: A(f"ds_read_b32 v35, v13 offset:{C_A}")
A("s_add_u32 s16, s16, 1")
A("v_mov_b32 v34, s16")
A(f"ds_write_b32 v13, v34 offset:{PROG}")
A(f"s_cmp_eq_u32 s16, {RND}")
A("s_cbranch_scc0 L_VNQ")
A(f"s_waitcnt vmcnt({9*RND})")
A(f"ds_write_b32 v13, v26 offset:{R_Q}")
ST(2)
A("L_VNQ:")
A("s_cmp_eq_u32 s16, 10")
A("s_cbranch_scc0 L_VNW")
ldspin("L_WQ", C_Q, 9)
A("L_VNW:")
A("s_cmp_eq_u32 s16, 17")
A("s_cbranch_scc1 L_VEND")
A("s_waitcnt lgkmcnt(0)")
A("s_sub_u32 s67, s68, s66")
if GT:
    A("v_readfirstlane_b32 s13, v36")
    A("s_sub_u32 s67, s67, s13")
if HY: A("s_add_u32 s67, s67, s13")
A(f"s_add_u32 s66, s66, {TBk}")
if FD < 17:
    if FM:
        A(f"s_cmp_ge_u32 s16, {FD}")
        A("s_cselect_b32 s13, s14, 0")
        A("s_cmp_lg_u32 s13, 0")
    else:
        A(f"s_cmp_ge_u32 s16, {FD}")
    A("s_cselect_b32 s67, 0, s67")
A("s_cmp_lt_i32 s67, 0")
if FM: A("s_cselect_b32 s14, 0, 1")
A("s_cbranch_scc1 L_V1")
if D2:
    A("v_readfirstlane_b32 s23, v35")
    A("s_cmp_ge_u32 s23, 9")
    A("s_cbranch_scc1 L_V3")
    vround(D2)
    A("s_branch L_VT")
    A("L_V3:")
if DM:
    A(f"s_cmp_ge_i32 s67, {LT}")
    A("s_cbranch_scc1 L_V4")
    vround(DM)
    A("s_branch L_VT")
    A("L_V4:")
vround(D3)
if HY:
    A(f"s_add_u32 s13, s13, {TBk*HY//100}")
    A(f"s_min_u32 s13, s13, {(D3-D1)*TBk*HY//900}")
A("s_branch L_VT")
A("L_VEND:")
A("v_lshlrev_b32 v12, 10, v2")
A("s_lshl_b32 s16, s4, 7")
A(f"s_mul_i32 s21, s4, {YS}")
A(f"s_add_u32 s20, s{sWS}, s21")
A(f"s_addc_u32 s21, s{sWS+1}, 0")
A(f"s_add_u32 s16, s16, {FL_OFF + 64}")
flagline(2 if OW else 3)
A("s_mov_b32 s17, 1")
ST(3)
A("s_waitcnt vmcnt(36)")
ST(4)
A("s_barrier")
ST(5)
A(f"ds_read_b32 v14, v13 offset:{R_E}")
A(f"s_waitcnt vmcnt({TK})")
A(f"s_atomic_add s17, s[20:21], {YC_OFF} glc")
A("s_waitcnt vmcnt(0)")
ST(6)
A("s_barrier")
A("s_waitcnt lgkmcnt(0)")
A("v_readfirstlane_b32 s7, v14")
A("s_cmp_lg_u32 s17, 31")
A("s_cbranch_scc1 L_NOTLAST")
A("s_mov_b32 exec_hi, 0")
A(f"buffer_store_dword v14, v12, s[{sWS}:{sWS+3}], s16 offen sc1")
A("L_NOTLAST:")
ST(7)
A(f"s_mov_b32 s22, {SPIN}")
if PP: A("s_not_b32 s23, s7")
A("L_YFL:")
A("s_load_dword s23, s[18:19], 64 glc")
if PP: A(f"s_sleep {PP}")
else: A("s_waitcnt lgkmcnt(0)")
A("s_cmp_eq_u32 s23, s7")
A("s_cbranch_scc1 L_YFLD")
A("s_sub_u32 s22, s22, 1")
A("s_cbranch_scc0 L_YFL")
A("L_YFLD:")
A("s_barrier")
if STAMPS:
    A("; STAMPDUMP 0 8")
A("L_END:")
A("s_endpgm")

def lanes():
    A(f"v_mov_b32 v5, {0xffffffff ^ TM:#x}")
    A("v_lshrrev_b32 v3, 4, v2")
    A("v_and_b32 v4, 15, v2")
    A("v_bfe_u32 v6, v2, 2, 2")
    A("v_and_b32 v7, 3, v2")
    masks()
    logid()
A("L_SYNC:")
A("s_setprio 3")
A("v_mov_b32 v17, 1")
lanes()
flagline()
A("v_lshrrev_b32 v14, 2, v2")
A("v_mul_u32_u24 v15, 576, v7")
A("v_add_lshl_u32 v15, v15, v14, 4")
A("s_mul_i32 s17, s4, 72*16")
A(f"s_add_u32 s17, s17, {XP_OFF}")
A(f"s_add_u32 s16, s17, {XPB}")
A("v_lshl_add_u32 v16, v6, 2, v7")
A("v_mul_u32_u24 v16, 48, v16")
A("v_lshl_add_u32 v16, v3, 1, v16")
A("s_lshl_b32 s68, s5, 7")
A(f"s_add_u32 s68, s68, {AG_OFF}")
A(f"s_add_u32 s68, s{sWS}, s68")
A(f"s_addc_u32 s69, s{sWS+1}, 0")
A("s_mov_b32 s44, s66")
A("s_getreg_b32 s66, hwreg(HW_REG_XCC_ID, 0, 4)")
A("s_mov_b64 exec, 1")
A(f"s_waitcnt vmcnt({2+NPT})")
A(f"ds_add_u32 v13, v17 offset:{C_U}")
A("s_mov_b64 exec, -1")
A("s_waitcnt lgkmcnt(0)")
make_tags()
A("v_mov_b32 v18, s7")
A(f"ds_write_b32 v13, v18 offset:{R_E}")
A("s_xor_b32 s67, s7, 0x5bd1e995")
A("s_lshl_b32 s67, s67, 4")
A("s_or_b32 s66, s66, s67")
A("s_lshl_b32 s67, s4, 2")
A("s_mov_b32 s20, s7")
A("s_not_b32 s21, s7")
A("v_mov_b32 v18, 2")
A(f"s_waitcnt vmcnt({NPT})")
A(f"ds_write_b32 v13, v18 offset:{R_U}")
if HI == 1: ldspin("L_CI", C_I, 9)
if HI == 2 and not EI:
    A("s_mul_i32 s8, s3, 2304")
    A(f"s_add_u32 s8, s8, {HP_OFF}")
    A("v_lshlrev_b32 v24, 4, v2")
    for r in range(20, 24): A(f"v_mov_b32 v{r}, 0")
    A(f"buffer_store_dwordx4 v[20:23], v24, s[{sWS}:{sWS+3}], s8 offen")
    A(f"buffer_store_dwordx4 v[20:23], v24, s[{sWS}:{sWS+3}], s8 offen offset:1024")
    A("s_mov_b64 exec, 0xffff")
    A(f"buffer_store_dwordx4 v[20:23], v24, s[{sWS}:{sWS+3}], s8 offen offset:2048")
    A("s_mov_b64 exec, -1")
    A("s_waitcnt vmcnt(0)")
if HI == 2 and EI: A("s_waitcnt vmcnt(0)")
A("s_atomic_swap s66, s[68:69], s67")
ST(1)
def spoll(nm, off, pr=18):
    A(f"s_mov_b32 s22, {SPIN}")
    A(f"L_SP{nm}:")
    A(f"s_load_dwordx8 s[8:15], s[{pr}:{pr+1}], {off} glc")
    A("s_waitcnt lgkmcnt(0)")
    for i in range(8): A(f"s_xor_b32 s{8+i}, s{8+i}, s7")
    A("s_or_b64 s[8:9], s[8:9], s[10:11]")
    A("s_or_b64 s[12:13], s[12:13], s[14:15]")
    A("s_or_b64 s[8:9], s[8:9], s[12:13]")
    A(f"s_cbranch_scc0 L_SP{nm}D")
    A("s_sub_u32 s22, s22, 1")
    A(f"s_cbranch_scc0 L_SP{nm}")
    A(f"L_SP{nm}D:")
if XS:
    A("s_lshr_b32 s24, s5, 2")
    A("s_lshl_b32 s24, s24, 3")
    A("s_add_u32 s24, s24, s4")
    A("s_lshl_b32 s24, s24, 7")
    A(f"s_add_u32 s24, s24, {XF_OFF}")
    A(f"s_add_u32 s24, s{sWS}, s24")
    A(f"s_addc_u32 s25, s{sWS+1}, 0")
    if not GT: spoll("X", 0, 24)
    else:
        A("s_mov_b64 s[46:47], s[24:25]")
        A(f"s_mov_b32 s22, {SPIN}")
        A("L_SPX:")
        A("s_load_dwordx16 s[24:39], s[46:47], 0 glc")
        A("s_waitcnt lgkmcnt(0)")
        for i in range(8): A(f"s_xor_b32 s{8+i}, s{24+2*i}, s7")
        A("s_or_b64 s[8:9], s[8:9], s[10:11]")
        A("s_or_b64 s[12:13], s[12:13], s[14:15]")
        A("s_or_b64 s[8:9], s[8:9], s[12:13]")
        A("s_cbranch_scc0 L_SPXD")
        A("s_sub_u32 s22, s22, 1")
        A("s_cbranch_scc0 L_SPX")
        A("L_SPXD:")
else: spoll("X", 0)
ST(2)
G = 20
A(f"s_mov_b32 s22, {SPIN}")
A("L_XPOLL:")
for u in range(5):
    if u == 4: A("s_mov_b32 exec_hi, 0")
    A(f"buffer_load_dwordx4 v[{G+8*u}:{G+8*u+3}], v15, s[{sWS}:{sWS+3}], s17 offen offset:{256*u} sc1")
    A(f"buffer_load_dwordx4 v[{G+8*u+4}:{G+8*u+7}], v15, s[{sWS}:{sWS+3}], s16 offen offset:{256*u} sc1")
if GT:
    A(f"s_cmp_lg_u32 s22, {SPIN}")
    A("s_cbranch_scc1 L_NOADJ")
    A("s_sub_u32 s45, s25, s44")
    for i in range(1, 8):
        A(f"s_sub_u32 s23, s{25+2*i}, s44")
        A(("s_add_i32" if GT == 1 else "s_min_i32") + " s45, s45, s23")
    if GT == 1: A("s_ashr_i32 s45, s45, 3")
    A("s_max_i32 s45, s45, -300")
    A("s_min_i32 s45, s45, 300")
    A("v_mov_b32 v18, s45")
    A(f"ds_write_b32 v13, v18 offset:{T_ADJ}")
    A("L_NOADJ:")
A(f"s_mov_b32 s23, {SPIN}")
A("L_AGP:")
A("s_load_dwordx8 s[8:15], s[68:69], 0 glc")
A("s_waitcnt lgkmcnt(0)")
for i in range(8): A(f"s_xor_b32 s{8+i}, s{8+i}, s66")
A("s_or_b64 s[8:9], s[8:9], s[10:11]")
A("s_or_b64 s[12:13], s[12:13], s[14:15]")
A("s_or_b64 s[8:9], s[8:9], s[12:13]")
A("s_or_b32 s8, s8, s9")
A("s_cmp_lt_u32 s8, 16")
A("s_cbranch_scc1 L_AGD")
A("s_sub_u32 s23, s23, 1")
A("s_cbranch_scc0 L_AGP")
A("L_AGD:")
A("s_cmp_eq_u32 s8, 0")
A("s_cselect_b32 s67, 2, 1")
A("v_mov_b32 v19, s67")
A("s_waitcnt vmcnt(0)")
for k, u in enumerate((4, 0, 1, 2, 3)):
    d = 24+4*k if k < 4 else 8
    A(f"v_cmp_ne_u64 s[{d}:{d+1}], s[20:21], v[{G+8*u}:{G+8*u+1}]")
    A(f"v_cmp_ne_u64 s[{26+4*k}:{27+4*k}], s[20:21], v[{G+8*u+6}:{G+8*u+7}]") if k < 4 else A(f"v_cmp_ne_u64 vcc, s[20:21], v[{G+8*u+6}:{G+8*u+7}]")
    if k == 0: A("s_mov_b32 exec_hi, -1")
for r in (24, 26, 28, 30, 32, 34, 36, 38): A(f"s_or_b64 vcc, vcc, s[{r}:{r+1}]")
A("s_or_b64 vcc, vcc, s[8:9]")
A("s_cbranch_scc0 L_XDONE")
A("s_sub_u32 s22, s22, 1")
A("s_cbranch_scc0 L_XPOLL")
A("L_XDONE:")
ST(3)
for qp in ("[1,0,3,2]", "[2,3,0,1]"):
    for u in range(5):
        for i in range(4):
            r = G+8*u+2+i
            A(f"v_add_f32_dpp v{r}, v{r}, v{r} quad_perm:{qp} row_mask:0xf bank_mask:0xf")
for u in range(5): sel4(G+8*u+2)
A(f"v_cvt_pk_bf16_f32 v{G}, v{G+2}, v{G+10}")
A(f"v_cvt_pk_bf16_f32 v{G+8}, v{G+18}, v{G+26}")
A(f"v_cvt_pk_bf16_f32 v{G+16}, v{G+34}, v{G+34}")
A(f"ds_write_b16 v16, v{G} offset:{XR}")
A(f"ds_write_b16_d16_hi v16, v{G} offset:{XR+8}")
A(f"ds_write_b16 v16, v{G+8} offset:{XR+16}")
A(f"ds_write_b16_d16_hi v16, v{G+8} offset:{XR+24}")
A("s_mov_b32 exec_hi, 0")
A(f"ds_write_b16 v16, v{G+16} offset:{XR+32}")
A(f"ds_write_b32 v13, v19 offset:{R_X}")
ST(4)
A("s_cmp_eq_u32 s67, 1")
A("s_cbranch_scc1 L_GLOBH")
ldspin("L_PHL", PROG, PH)
A("s_branch L_SEND")
A("L_GLOBH:")
spoll("H", 32)
A("L_SEND:")
A(f"ds_write_b32 v13, v17 offset:{R_H}")
ST(5)
if STAMPS:
    A("s_waitcnt vmcnt(0) lgkmcnt(0)")
    A("; STAMPDUMP 0 6")
A("s_endpgm")

A("L_COMP:")
setsrd(sWS, WS_BYTES); setsrd(sV, 4608*9216); setsrd(sOUT, 4*9216)
lanes()
vaddr()
A("s_sub_u32 s6, s6, 2")
A("v_and_b32 v89, 1, v3")
A("v_lshl_add_u32 v89, v89, 2, v6")
A("v_lshlrev_b32 v88, 7, v89")
A("v_lshl_add_u32 v88, v7, 3, v88")
A("v_lshrrev_b32 v89, 1, v89")
A("v_lshrrev_b32 v90, 1, v3")
A("v_mov_b32 v60, 1")
A("v_lshlrev_b32 v55, 4, v2")
SZ = 64
if GT: A("v_mov_b32 v59, s66")
A("s_mul_i32 s66, s3, 2304")
A("s_lshl_b32 s19, s6, 8")
A("s_add_u32 s66, s66, s19")
A(f"s_add_u32 s66, s66, {HP_OFF}")
if HI == 1:
    for r in range(48, 52): A(f"v_mov_b32 v{r}, 0")
    A("s_mov_b64 exec, 0xffff")
    A(f"buffer_store_dwordx4 v[48:51], v55, s[{sWS}:{sWS+3}], s66 offen")
    A("s_mov_b64 exec, -1")
ST(1)
A("s_cmp_ge_u32 s2, 36")
A("s_cbranch_scc1 L_NOX")
A("s_cmp_lt_u32 s6, 4")
A("s_cbranch_scc1 L_XJOB")
A("s_mov_b64 exec, 1")
A(f"s_waitcnt vmcnt({1 if HI == 1 else 0})")
A(f"ds_add_u32 v13, v60 offset:{C_U}")
A("s_mov_b64 exec, -1")
A("s_branch L_NOX")
A("L_XJOB:")
A("s_setprio 2")
XA = 16
XB = 100
A("v_mul_u32_u24 v15, 288, v7")
A("v_lshl_add_u32 v15, v3, 3, v15")
A(f"v_add_u32 v15, {XL}, v15")
A(f"v_mov_b32 v{XA+18}, 0"); A(f"v_mov_b32 v{XA+19}, 0")
A("v_xor_b32 v56, s6, v89")
A("v_lshl_add_u32 v56, v56, 5, v88")
A("v_lshl_add_u32 v56, v90, 10, v56")
A(f"v_add_u32 v56, {UL}, v56")
A(f"v_mov_b32 v{XB+18}, 0"); A(f"v_mov_b32 v{XB+19}, 0")
A("s_mul_i32 s17, s10, 576*16")
A("s_lshl_b32 s18, s11, 10")
A("s_add_u32 s17, s17, s18")
A("s_lshl_b32 s18, s6, 8")
A("s_add_u32 s17, s17, s18")
A(f"s_add_u32 s17, s17, {XP_OFF}")
A(f"v_and_b32 v57, {7 if XS else 31}, v2")
A("v_lshlrev_b32 v57, 10, v57")
A("v_lshrrev_b32 v58, 5, v2")
A(f"v_mul_u32_u24 v58, {120 if GT else 124}, v58")
A("v_sub_u32 v57, v57, v58")
A("v_add_u32 v57, 128, v57")
A("s_lshl_b32 s18, s11, 7")
A(f"s_lshl_b32 s19, s10, {4 if GT else 3}")
A("s_add_u32 s18, s18, s19")
A(f"s_add_u32 s18, s18, {(XF_OFF if XS else FL_OFF) - 128}")
A("s_cmp_eq_u32 s11, 8")
A("s_cselect_b32 s8, 0, " + ("0xff" if XS else "-1"))
A("s_cmp_eq_u32 s11, 0")
A("s_cselect_b32 s9, 0, " + ("0xff" if XS else "-1"))
A("s_waitcnt lgkmcnt(0)")
make_tags()
A("v_mov_b32 v58, s7")
A("v_mov_b32 v38, s7"); A("v_not_b32 v39, s7"); A("v_mov_b32 v44, s7"); A("v_not_b32 v45, s7")
A(f"s_add_u32 s16, s17, {XPB}")
A("s_mov_b64 exec, 1")
A(f"s_waitcnt vmcnt({1 if HI == 1 else 0})")
A(f"ds_add_u32 v13, v60 offset:{C_U}")
A("s_mov_b64 exec, -1")
ldspin("L_RU", C_U, 10)
for t in range(5):
    if t < 4: A(f"ds_read2_b64 v[{XA+4*t}:{XA+4*t+3}], v15 offset0:{8*t} offset1:{8*t+4}")
    else: A(f"ds_read_b64 v[{XA+4*t}:{XA+4*t+1}], v15 offset:{64*t}")
    A(f"ds_read_b64_tr_b16 v[{XB+4*t}:{XB+4*t+1}], v56 offset:{4*t*1024}")
    if t < 4: A(f"ds_read_b64_tr_b16 v[{XB+4*t+2}:{XB+4*t+3}], v56 offset:{(4*t+2)*1024}")
for t in range(5):
    A(f"s_waitcnt lgkmcnt({max(0, 11-3*t)})")
    c = "0" if t == 0 else "v[40:43]"
    A(f"v_mfma_f32_16x16x32_bf16 v[40:43], v[{XA+4*t}:{XA+4*t+3}], v[{XB+4*t}:{XB+4*t+3}], {c}")
A("s_mov_b64 exec, 0xffff")
A("s_nop 6")
A(f"buffer_store_dwordx4 v[38:41], v55, s[{sWS}:{sWS+3}], s17 offen sc1")
A(f"buffer_store_dwordx4 v[42:45], v55, s[{sWS}:{sWS+3}], s16 offen sc1")
A("s_mov_b64 exec, 1")
A(f"ds_add_rtn_u32 v14, v13, v60 offset:{C_XW}")
A("s_waitcnt lgkmcnt(0)")
A("v_readfirstlane_b32 s23, v14")
A("s_cmp_lg_u32 s23, 3")
A("s_cbranch_scc1 L_XNF")
A("s_mov_b64 exec, s[8:9]")
A(f"buffer_store_dwordx2 v[58:59], v57, s[{sWS}:{sWS+3}], s18 offen sc1" if GT else f"buffer_store_dword v58, v57, s[{sWS}:{sWS+3}], s18 offen sc1")
if HI == 1:
    A("s_waitcnt vmcnt(3)")
    A("s_branch L_XEND")
A("L_XNF:")
if HI == 1: A("s_waitcnt vmcnt(2)")
A("s_branch L_XEND")
A("L_NOX:")
A("s_waitcnt lgkmcnt(0)")
make_tags()
if HI == 1: A("s_waitcnt vmcnt(0)")
A("L_XEND:")
A("s_setprio 0")
if HI == 1:
    A("s_mov_b64 exec, 1")
    A(f"ds_add_u32 v13, v60 offset:{C_I}")
A("s_mov_b64 exec, -1")
ST(2)
A("v_mul_u32_u24 v15, 576, v3")
A("v_lshl_add_u32 v15, v4, 2, v15")
A("s_lshl_b32 s12, s6, 6")
A(f"s_add_u32 s12, s12, {QL}")
A("v_add_u32 v15, s12, v15")
A("v_lshl_add_u32 v56, v3, 2, v7")
A("v_mul_u32_u24 v56, 48, v56")
A("s_and_b32 s12, s4, 3")
for k in (1, 2, 3):
    A(f"s_cmp_ge_u32 s12, {k}")
    A(f"s_cselect_b64 s[{12+2*k}:{13+2*k}], -1, 0")
A("v_lshlrev_b32 v57, 1, v4")
A("s_lshl_b32 s12, s6, 5")
A("v_add_u32 v57, s12, v57")
ldspin("L_RU2", R_U, 2)
for g in range(3):
    A(f"ds_read_u16 v{SZ+g}, v57 offset:{SCL + 288*g}")
    A(f"ds_read_u16 v{SZ+3+g}, v57 offset:{ZL + 288*g}")
A("s_waitcnt lgkmcnt(0)")
for g in range(6): A(f"v_lshlrev_b32 v{SZ+g}, 16, v{SZ+g}")
SP, ZP = 70, 79
def pairsz(p):
    base = p >> 2
    r = p & 3
    if r == 0: return SZ+base, SZ+3+base
    return SP+p, ZP+p
for p in range(9):
    base, r = p >> 2, p & 3
    if r:
        k = 4 - r
        A(f"v_cndmask_b32 v{SP+p}, v{SZ+base}, v{SZ+base+1}, s[{12+2*k}:{13+2*k}]")
        A(f"v_cndmask_b32 v{ZP+p}, v{SZ+3+base}, v{SZ+3+base+1}, s[{12+2*k}:{13+2*k}]")
QW = 16
B = 36
AX = 100
for r in (B+9, B+10, B+11, AX+9, AX+10, AX+11): A(f"v_mov_b32 v{r}, 0")
A("s_lshl_b32 s19, s6, 8")
A("s_mov_b32 s18, s66")
A("s_mul_i32 s17, s5, 8*2304")
A("s_add_u32 s17, s17, s19")
A(f"s_add_u32 s17, s17, {HP_OFF}")
A("v_lshlrev_b32 v61, 7, v2")
A("v_mov_b32 v62, s7")
A("s_lshl_b32 s16, s5, 10")
A("s_lshl_b32 s19, s4, 2")
A("s_add_u32 s16, s16, s19")
A(f"s_add_u32 s16, s16, {FL_OFF + 32}")
ldspin("L_RQ", R_Q, 1)
ST(3)
for p in range(9):
    A(f"ds_read2st64_b32 v[{QW+2*p}:{QW+2*p+1}], v15 offset0:{18*p} offset1:{18*p+9}")
for p in range(9):
    A(f"s_waitcnt lgkmcnt({8-p})")
    if p == 8:
        A("s_mov_b64 exec, 1")
        A(f"ds_add_u32 v13, v60 offset:{C_Q}")
        A("s_mov_b64 exec, -1")
    r0, r1 = QW+2*p, QW+2*p+1
    sr, zr = pairsz(p)
    A(f"v_cvt_f32_i32 v{r0}, v{r0}")
    A(f"v_cvt_f32_i32 v{r1}, v{r1}")
    A(f"v_sub_f32 v{r0}, v{r0}, v{zr}")
    A(f"v_sub_f32 v{r1}, v{r1}, v{zr}")
    A(f"v_cvt_pk_bf16_f32 v{r1}, v{r0}, v{r1}")
    A(f"v_lshlrev_b32 v{r0}, 16, v{r1}")
    A(f"v_and_b32 v{r1}, 0xffff0000, v{r1}")
    A(f"v_mul_f32 v{r0}, v{r0}, v{sr}")
    A(f"v_mul_f32 v{r1}, v{r1}, v{sr}")
    A(f"v_cvt_pk_bf16_f32 v{B+p}, v{r0}, v{r1}")
if RM == 2:
    A("s_lshl_b32 s21, s6, 7")
    A("s_add_u32 s21, s20, s21")
    A(f"s_add_u32 s21, s21, {136*9216}")
    ldspin("L_RX", R_X, 1)
    A(f"buffer_load_dwordx4 v[112:115], v11, s[{sV}:{sV+3}], s21 offen nt")
else:
    ldspin("L_RX", R_X, 1)
A(f"ds_read_b128 v[{AX}:{AX+3}], v56 offset:{XR}")
A(f"ds_read_b128 v[{AX+4}:{AX+7}], v56 offset:{XR+16}")
A(f"ds_read_b32 v{AX+8}, v56 offset:{XR+32}")
for t in range(3):
    A(f"s_waitcnt lgkmcnt({2-t})")
    c = "0" if t == 0 else "v[48:51]"
    A(f"v_mfma_f32_16x16x32_bf16 v[48:51], v[{AX+4*t}:{AX+4*t+3}], v[{B+4*t}:{B+4*t+3}], {c}")
A("s_mov_b64 exec, 0xffff")
A("s_cmp_eq_u32 s23, 2")
A("s_nop 5")
if HI:
    for i in range(4): A(f"v_or_b32 v{48+i}, 1, v{48+i}")
else: tag(48)
A("s_cbranch_scc0 L_HGL")
A(f"buffer_store_dwordx4 v[48:51], v55, s[{sWS}:{sWS+3}], s18 offen")
A("s_branch L_HNF")
A("L_HGL:")
A(f"buffer_store_dwordx4 v[48:51], v55, s[{sWS}:{sWS+3}], s18 offen sc1")
A("s_mov_b64 exec, 1")
A("s_waitcnt vmcnt(0)")
A(f"ds_add_rtn_u32 v14, v13, v60 offset:{C_H}")
A("s_waitcnt lgkmcnt(0)")
A("v_readfirstlane_b32 s23, v14")
A("s_cmp_lg_u32 s23, 8")
A("s_cbranch_scc1 L_HNF")
A("s_mov_b64 exec, 0xff")
A(f"buffer_store_dword v62, v61, s[{sWS}:{sWS+3}], s16 offen sc1")
A("L_HNF:")
A("s_mov_b64 exec, -1")
REM = 112
A("s_lshl_b32 s21, s6, 7")
A("s_add_u32 s20, s20, s21")
A(f"s_add_u32 s20, s20, {136*9216}")
if not RM: A(f"buffer_load_dwordx4 v[{REM}:{REM+3}], v11, s[{sV}:{sV+3}], s20 offen nt")
else: A("v_mov_b32 v118, v11")
ST(4)
A("v_mul_u32_u24 v96, 2304, v10")
A("v_lshl_add_u32 v96, v8, 4, v96")
A("v_lshrrev_b32 v58, 2, v8")
A("v_lshlrev_b32 v58, 6, v58")
A("v_lshl_add_u32 v58, v7, 4, v58")
A("v_and_b32 v59, 3, v8")
A("v_lshl_add_u32 v58, v59, 1, v58")
A("s_lshr_b32 s18, s6, 1")
A("s_lshl_b32 s18, s18, 8")
A("s_and_b32 s19, s6, 1")
A("s_lshl_b32 s19, s19, 3")
A("s_add_u32 s18, s18, s19")
A("v_add_u32 v97, s18, v58")
A("v_mov_b32 v9, v55")
A("v_mov_b32 v15, v60")
AV = 16
def areg(t, i=0): return AV + 4*t
A("v_mul_u32_u24 v98, 9216, v90")
A("v_add_u32 v98, v98, v88")
A("s_lshl_b32 s18, s6, 10")
A(f"s_add_u32 s18, s18, {VL}")
A("v_add_u32 v98, s18, v98")
TRA, TRB = 100, 104
for i in range(4):
    A(f"v_xor_b32 v99, {i}, v89")
    A(f"v_lshl_add_u32 v{TRA+i}, v99, 5, v98")
    A(f"v_add_u32 v{TRB+i}, 73728, v{TRA+i}")
A("v_add_u32 v99, s18, v9")
A("v_lshlrev_b32 v98, 6, v3")
A("v_lshl_add_u32 v98, v7, 4, v98")
A("v_mov_b32 v34, 0"); A("v_mov_b32 v35, 0")
A(f"v_mov_b32 v117, {1 << (TB-1):#x}")
A("s_lshl_b32 s16, s4, 5")
A("s_add_u32 s14, s16, s5")
A("s_mul_i32 s14, s14, 9216")
A("s_lshl_b32 s19, s6, 10")
A("s_add_u32 s14, s14, s19")
A(f"s_add_u32 s14, s14, {YP_OFF}")
A("v_subrev_u32 v8, 128, v0")
A("v_mul_u32_u24 v10, 3641, v8")
A("v_lshrrev_b32 v10, 16, v10")
A("v_mul_u32_u24 v10, 8928, v10")
A("v_lshlrev_b32 v11, 4, v8")
A("v_add_u32 v10, v10, v11")
if OW:
    A("s_and_b32 s12, s2, 7")
    A("s_lshr_b32 s13, s2, 3")
else:
    A("s_mov_b32 s12, s4"); A("s_mov_b32 s13, s5")
A("s_mul_i32 s16, s12, 32*9216")
A("s_mul_i32 s19, s13, 288")
A("s_add_u32 s16, s16, s19")
A(f"s_add_u32 s16, s16, {YP_OFF}")
A("v_and_b32 v1, 7, v8")
A("v_mul_u32_u24 v1, 288, v1")
A("v_lshrrev_b32 v8, 3, v8")
A("v_lshl_add_u32 v1, v8, 2, v1")
A(f"v_add_u32 v1, {VL}, v1")
A("v_and_b32 v12, 3, v8")
A("v_mul_u32_u24 v12, 9216, v12")
A("v_lshrrev_b32 v8, 2, v8")
A("v_lshl_add_u32 v12, v8, 1, v12")
A("s_mul_i32 s15, s12, 1152")
A("s_mul_i32 s19, s13, 36")
A("s_add_u32 s15, s15, s19")
if os.environ.get("FAKEOUT"):
    A("v_subrev_u32 v12, 128, v0")
    A("v_lshrrev_b32 v12, 3, v12")
    A("v_lshlrev_b32 v12, 1, v12")
    A("s_mul_i32 s15, s3, 144")
BT = 48
ldspin("L_RH", R_H, 1)
H0, H1 = 48, 52
A(f"s_mov_b32 s22, {SPIN}")
A("L_HPOLL:")
A(f"buffer_load_dwordx4 v[{H0}:{H0+3}], v96, s[{sWS}:{sWS+3}], s17 offen sc1")
A(f"buffer_load_dwordx4 v[{H1}:{H1+3}], v96, s[{sWS}:{sWS+3}], s17 offen offset:128 sc1")
A("s_waitcnt vmcnt(0)")
if HI:
    for i in range(4): A(f"v_and_b32 v{56+i}, v{H0+i}, v{H1+i}")
    A("v_and_b32 v56, v56, v57")
    A("v_and_b32 v58, v58, v59")
    A("v_and_b32 v56, v56, v58")
    A("v_and_b32 v56, 1, v56")
    A("v_cmp_eq_u32 vcc, 0, v56")
else:
    check(H0, 56)
    check(H1, 57)
    A("v_or_b32 v56, v56, v57")
    A(f"v_and_b32 v56, {TM:#x}, v56")
    A("v_cmp_ne_u32 vcc, 0, v56")
A("s_and_b64 exec, vcc, vcc")
A("s_cbranch_scc0 L_HDONE")
A("s_sub_u32 s22, s22, 1")
A("s_cbranch_scc0 L_HPOLL")
A("L_HDONE:")
A("s_mov_b64 exec, -1")
if RM in (1, 3): A(f"buffer_load_dwordx4 v[{REM}:{REM+3}], v118, s[{sV}:{sV+3}], s20 offen nt")
ST(5)
for dp in ("quad_perm:[1,0,3,2]", "quad_perm:[2,3,0,1]", "row_half_mirror"):
    for i in range(8):
        A(f"v_add_f32_dpp v{H0+i}, v{H0+i}, v{H0+i} {dp} row_mask:0xf bank_mask:0xf")
sel4(H0); sel4(H1)
A(f"v_cvt_pk_bf16_f32 v{H0}, v{H0}, v{H1}")
A(f"ds_write_b16 v97, v{H0} offset:{HA}")
A(f"ds_write_b16_d16_hi v97, v{H0} offset:{HA+128}")
A("s_mov_b64 exec, 1")
A(f"ds_add_u32 v13, v15 offset:{C_A}")
A("s_mov_b64 exec, -1")
ldspin("L_CA", C_A, 9)
for t in range(4):
    a = areg(t)
    A(f"ds_read_b128 v[{a}:{a+3}], v98 offset:{HA + 256*t}")
A(f"ds_read_b64 v[32:33], v98 offset:{HA + 1024}")
Y = 108
YD = [36, 40, 44, 120]
def trreads(t, base):
    tr = TRA if t < 2 else TRB
    o = (1 + 4*(t % 2))*9216
    for i in range(4):
        A(f"ds_read_b64_tr_b16 v[{base+4*i}:{base+4*i+1}], v{tr+i} offset:{o}")
        A(f"ds_read_b64_tr_b16 v[{base+4*i+2}:{base+4*i+3}], v{tr+i} offset:{o + 2*9216}")
def mf(t, i, base, first=False):
    a = areg(t); d = YD[i]
    c = "0" if first else f"v[{d}:{d+3}]"
    A(f"v_mfma_f32_16x16x32_bf16 v[{d}:{d+3}], v[{a}:{a+3}], v[{base+4*i}:{base+4*i+3}], {c}")
def mfmas(t, base, first=False):
    for i in range(4): mf(t, i, base, first)
def kstep(t, base):
    trreads(t, base)
    for i in range(4):
        A(f"s_waitcnt lgkmcnt({6-2*i})")
        mf(t, i, base)
LG = (max(D1, D3) + 8)//9
ST(6)
if RM != 3:
    ldspin("L_EB", PROG, 9 + LG)
    trreads(0, BT)
    if RM: A("s_waitcnt vmcnt(0)")
    A(f"ds_write_b128 v99, v[{REM}:{REM+3}] offset:9216")
    trreads(1, BT+16)
    for i in range(4):
        A(f"v_mov_b32 v{BT+32+4*i+2}, 0"); A(f"v_mov_b32 v{BT+32+4*i+3}, 0")
    A("s_waitcnt lgkmcnt(9)")
    mfmas(0, BT, True)
    for i in range(4):
        A(f"ds_read_b64_tr_b16 v[{BT+32+4*i}:{BT+32+4*i+1}], v{TRA+i}")
    A("s_waitcnt lgkmcnt(4)")
    mfmas(1, BT+16)
    A("s_waitcnt lgkmcnt(0)")
    mfmas(4, BT+32)
    A(f"s_mov_b32 s22, {SPIN}")
    A("s_barrier")
    ST(7)
    kstep(2, BT)
else:
    ldspin("L_EB", PROG, 9 + LG)
    trreads(0, BT)
    trreads(1, BT+16)
    for i in range(4):
        A(f"v_mov_b32 v{BT+32+4*i+2}, 0"); A(f"v_mov_b32 v{BT+32+4*i+3}, 0")
    A("s_waitcnt lgkmcnt(8)")
    mfmas(0, BT, True)
    A("s_waitcnt lgkmcnt(0)")
    mfmas(1, BT+16)
    A(f"s_mov_b32 s22, {SPIN}")
    A("s_barrier")
    ST(7)
    trreads(2, BT)
    A("s_waitcnt vmcnt(0)")
    A(f"ds_write_b128 v99, v[{REM}:{REM+3}] offset:9216")
    for i in range(4):
        A(f"ds_read_b64_tr_b16 v[{BT+32+4*i}:{BT+32+4*i+1}], v{TRA+i}")
    A("s_waitcnt lgkmcnt(5)")
    mfmas(2, BT)
    A("s_waitcnt lgkmcnt(0)")
    mfmas(4, BT+32)
ST(8)
A("s_barrier")
ST(9)
kstep(3, BT+16)
A("s_nop 1")
for g in range(4):
    for r in range(4):
        A(f"v_add_u32_dpp v{Y+r}, v{YD[g]+r}, v117 quad_perm:[0,1,2,3] row_mask:{1 << g:#x} bank_mask:0xf")
for i in range(4): A(f"v_and_or_b32 v{Y+i}, v{Y+i}, v5, s{60+i}")
A(f"buffer_store_dwordx4 v[{Y}:{Y+3}], v9, s[{sWS}:{sWS+3}], s14 offen sc1")
ST(10)
A("s_barrier")
YG = 112
A(f"buffer_load_dwordx4 v[{YG}:{YG+3}], v10, s[{sWS}:{sWS+3}], s16 offen {YF1}")
A("L_YCHK:")
A("s_waitcnt vmcnt(0)")
check(YG, 116)
A(f"v_and_b32 v116, {TM:#x}, v116")
A("v_cmp_ne_u32 vcc, 0, v116")
A("s_cbranch_vccnz L_YRETRY")
A("L_YDONE:")
A("s_mov_b64 exec, -1")
ST(11)
A(f"ds_write_b128 v11, v[{YG}:{YG+3}] offset:{VL}")
A("s_waitcnt lgkmcnt(0)")
A("s_barrier")
A(f"ds_read2st64_b32 v[{YG}:{YG+1}], v1 offset0:0 offset1:9")
A(f"ds_read2st64_b32 v[{YG+2}:{YG+3}], v1 offset0:18 offset1:27")
A("s_waitcnt lgkmcnt(0)")
A(f"v_add_f32 v{YG}, v{YG}, v{YG+1}")
A(f"v_add_f32 v{YG+2}, v{YG+2}, v{YG+3}")
A(f"v_add_f32 v{YG}, v{YG}, v{YG+2}")
for dp in ("quad_perm:[1,0,3,2]", "quad_perm:[2,3,0,1]", "row_half_mirror"):
    A("s_nop 1")
    A(f"v_add_f32_dpp v{YG}, v{YG}, v{YG} {dp} row_mask:0xf bank_mask:0xf")
A(f"v_cvt_pk_bf16_f32 v{YG}, v{YG}, v{YG}")
A("s_mov_b32 exec_lo, 0x01010101")
A("s_mov_b32 exec_hi, 0x01010101")
A(f"buffer_store_short v{YG}, v12, s[{sOUT}:{sOUT+3}], s15 offen")
A("s_or_b32 s19, s2, s6")
A("s_cbranch_scc1 L_CEND")
A("s_mov_b64 exec, 1")
A("v_mov_b32 v14, s7")
A(f"buffer_store_dword v14, v13, s[{sWS}:{sWS+3}], 0 offen offset:{EP_OFF}")
A("L_CEND:")
if STAMPS:
    A("s_waitcnt vmcnt(0)")
    A("; STAMPDUMP 0 12")
A("s_endpgm")
A("L_YRETRY:")
A("s_sub_u32 s22, s22, 1")
A("s_cbranch_scc1 L_YDONE")
A("s_mov_b64 exec, vcc")
A("s_sleep 2")
A(f"buffer_load_dwordx4 v[{YG}:{YG+3}], v10, s[{sWS}:{sWS+3}], s16 offen " + ("sc1" if YF1 == "sc1" else "sc0 sc1"))
A("s_branch L_YCHK")
A("L_CODE_END:")

VG = 124
A('.section .rodata,"a"')
A(".p2align 6")
A(f""".amdhsa_kernel {KN}
  .amdhsa_next_free_vgpr {VG}
  .amdhsa_next_free_sgpr 70
  .amdhsa_accum_offset {(VG+3)//4*4}
  .amdhsa_group_segment_fixed_size 0
  .amdhsa_kernarg_size 72
  .amdhsa_user_sgpr_count 2
  .amdhsa_user_sgpr_kernarg_segment_ptr 1
  .amdhsa_system_sgpr_workgroup_id_x 1
  .amdhsa_float_denorm_mode_32 3
.end_amdhsa_kernel""")
dst = sys.argv[1]
if STAMPS:
    open(dst + ".pre", "w").write("\n".join(out) + "\n")
    import subprocess
    subprocess.check_call([sys.executable, "stamp.py", dst + ".pre", dst])
else:
    open(dst, "w").write("\n".join(out) + "\n")
```

```python
import sys, os
NAME = "standalone__weight_only_int_quip__decode"
KN = NAME + "_kernel"
E = lambda k, d: int(os.environ.get(k, str(d)))
D1 = E("D1", 18); D3 = E("D3", 36); TK = E("TK", 8); PH = E("PH", 8)
D2 = E("D2", 0)
HY = E("HY", 0)
PP = E("PP", 0)
PT = os.environ.get("PT", "vwoq")
RM = E("RM", 3)
OW = E("OW", 1)
HI = E("HI", 2)
DX = E("DX", 30)
GT = E("GT", 1)
GK = E("GK", 145)
GB = E("GB", 0)
FD = E("FD", 99)
FM = E("FM", 0)
DM = E("DM", 0); LT = E("LT", 30)
EI = E("EI", 1)
XS = E("XS", 1)
YS = E("YS", 128)
YF1 = os.environ.get("YF1", "sc1").replace("none", "").replace("+", " ")
TA = E("TA", 205); TBk = E("TBK", 32)
TB = E("TB", 8)
STAMPS = bool(os.environ.get("STAMPS"))
SPIN = 1 << 21
RND = (D1 + 8)//9
out = []
def A(s): out.append(s)
def ST(k):
    if STAMPS: A(f"; STAMP {k}")
TM = (1 << TB) - 1

XR, HA, CNT, SCL, ZL, XL, VL = 0, 768, 2048, 2304, 3328, 4352, 7168
R_U, R_Q, R_X, R_H, C_A, C_Q, C_XW, C_H, R_E, PROG, C_U, C_I, T_ADJ = [CNT + 4*i for i in range(13)]
LDS_BYTES = VL + 17*9216
QL = LDS_BYTES - 41472
UL = QL - 18432
assert LDS_BYTES == 163840 and UL >= VL + 10*9216
EP_OFF, YC_OFF, AG_OFF, FL_OFF, XP_OFF, HP_OFF, YP_OFF, WS_BYTES = 0, 1024, 4096, 8192, 65536, 196608, 1 << 20, 4 << 20
XPB = 36864
XF_OFF = 49152
if YS != 128: YC_OFF = 819200

A(f"""; Kernarg layout for this problem (72 bytes, ptrs only, base s[0:1]):
; @launch grid=(256,1,1) block=(704,1,1) lds={LDS_BYTES}
.amdgcn_target "amdgcn-amd-amdhsa--gfx950"
.text
.globl {KN}
.p2align 8
.type {KN},@function
{KN}:""")

sQW, sSC, sZ, sV, sWS, sOUT, sU, sX = 24, 28, 32, 36, 40, 44, 48, 52
def kl(r, off): A(f"s_load_dwordx2 s[{r}:{r+1}], s[0:1], {off}")
def setsrd(r, nb):
    A(f"s_mov_b32 s{r+2}, {nb}")
    A(f"s_mov_b32 s{r+3}, 0x00020000")
def load_tags(): A(f"s_load_dword s7, s[{sWS}:{sWS+1}], {EP_OFF}")
def make_tags():
    step = (1 << TB) * 31 // 100
    for i in range(4):
        A(f"s_add_u32 s{60+i}, s7, {1 + i*step}")
        A(f"s_and_b32 s{60+i}, s{60+i}, {TM:#x}")
    A("s_add_u32 s7, s7, 1")
def tag(r):
    for i in range(4): A(f"v_add_u32 v{r+i}, {1 << (TB-1):#x}, v{r+i}")
    for i in range(4): A(f"v_and_or_b32 v{r+i}, v{r+i}, v5, s{60+i}")
def check(r, t):
    for i in range(4): A(f"v_xor_b32 v{r+i}, s{60+i}, v{r+i}")
    A(f"v_or3_b32 v{t}, v{r}, v{r+1}, v{r+2}")
    A(f"v_or_b32 v{t}, v{t}, v{r+3}")
def masks():
    A("s_mov_b32 s56, 0x22222222"); A("s_mov_b32 s57, 0x22222222")
    A("s_mov_b32 s58, 0x44444444"); A("s_mov_b32 s59, 0x44444444")
    A("s_mov_b32 s64, 0x88888888"); A("s_mov_b32 s65, 0x88888888")
def sel4(h):
    A(f"v_cndmask_b32 v{h}, v{h}, v{h+1}, s[56:57]")
    A(f"v_cndmask_b32 v{h}, v{h}, v{h+2}, s[58:59]")
    A(f"v_cndmask_b32 v{h}, v{h}, v{h+3}, s[64:65]")
def ldspin(label, addr, target, tmp=14):
    A(f"s_mov_b32 s22, {SPIN*16}")
    A(f"{label}:")
    A(f"ds_read_b32 v{tmp}, v13 offset:{addr}")
    A("s_waitcnt lgkmcnt(0)")
    A(f"v_readfirstlane_b32 s23, v{tmp}")
    A(f"s_cmp_ge_u32 s23, {target}")
    A(f"s_cbranch_scc1 {label}_D")
    A("s_sleep 1")
    A("s_sub_u32 s22, s22, 1")
    A(f"s_cbranch_scc0 {label}")
    A(f"{label}_D:")
def swz():
    A("v_lshrrev_b32 v8, 3, v2")
    A("v_and_b32 v9, 6, v8")
    A("v_and_b32 v10, 7, v2")
    A("v_xor_b32 v9, v9, v10")
def vaddr():
    A("v_mul_u32_u24 v11, 9216, v8")
    A("v_lshl_add_u32 v11, v9, 4, v11")
    A("s_mul_i32 s20, s5, 144*9216")
    A("s_mul_i32 s21, s4, 1152")
    A("s_add_u32 s20, s20, s21")
def xids():
    A("s_mul_i32 s10, s2, 57")
    A("s_lshr_b32 s10, s10, 9")
    A("s_mul_i32 s11, s10, 9")
    A("s_sub_u32 s11, s2, s11")
def logid():
    A("s_lshl_b32 s3, s5, 3")
    A("s_add_u32 s3, s3, s4")
def flagline(r=3):
    A(f"s_lshl_b32 s18, s{r}, 7")
    A(f"s_add_u32 s18, s18, {FL_OFF}")
    A(f"s_add_u32 s18, s{sWS}, s18")
    A(f"s_addc_u32 s19, s{sWS+1}, 0")

A("s_cmp_ge_u32 s2, 256")
A("s_cbranch_scc1 L_END")
kl(sQW, 8)
A("s_getpc_b64 s[8:9]")
A("L_PC:")
A("v_lshlrev_b32 v14, 4, v0")
A("v_min_u32 v14, L_CODE_END-L_PC-4, v14")
A("global_load_dword v99, v14, s[8:9]")
kl(sU, 32); kl(sX, 0); kl(sWS, 64)
if GT: A("s_memrealtime s[66:67]")
A("v_readfirstlane_b32 s6, v0")
ST(0)
A("s_bfe_u32 s4, s2, 0x30003")
A("s_and_b32 s5, s2, 7")
A("s_lshl_b32 s5, s5, 2")
A("s_lshr_b32 s3, s2, 6")
A("s_add_u32 s5, s5, s3")
A("v_and_b32 v2, 63, v0")
A("v_mov_b32 v13, 0")
A("s_lshr_b32 s6, s6, 6")
A("s_cbranch_scc1 L_NOTL")
if not GT: A("s_memrealtime s[66:67]")
setsrd(sQW, 576*4608*4)
A("v_mul_u32_u24 v14, 1821, v2")
A("v_lshlrev_b32 v15, 4, v2")
A("s_movk_i32 s13, 17856")
A("s_mul_i32 s12, s4, 72*18432")
A("s_mul_i32 s14, s5, 576")
A("s_add_u32 s12, s12, s14")
A(f"s_mov_b32 m0, {QL}")
QO = 16
A(f"v_lshrrev_b32 v{QO}, 16, v14")
A(f"v_mad_u32_u24 v{QO}, v{QO}, s13, v15")
A("s_cmp_ge_u32 s2, 36")
A("s_cbranch_scc1 L_QGO")
A("s_barrier")
A("L_QGO:")
A("s_waitcnt lgkmcnt(0)")
kl(sV, 40)
for i in range(9):
    if i:
        A(f"v_add_u32 v14, {64*1821}, v14")
        if i % 4 == 0:
            A("s_add_u32 m0, m0, 4096")
            A("s_add_u32 s12, s12, 4096")
        A(f"v_lshrrev_b32 v{QO+i}, 16, v14")
        A(f"v_mad_u32_u24 v{QO+i}, v{QO+i}, s13, v15")
    A(f"buffer_load_dwordx4 v{QO+i}, s[{sQW}:{sQW+3}], s12 offen offset:{1024*(i%4)} nt lds")
A("s_mov_b32 s16, 1")
if DX:
    A("s_cmp_lt_u32 s2, 36")
    A("s_cbranch_scc1 L_QLOOPX")
A("L_QLOOP:")
for i in range(9):
    if i % 4 == 0:
        A(f"s_add_u32 m0, m0, {4096 if i else 1024}")
        A(f"s_add_u32 s12, s12, {4096 if i else 16*18432 - 8192}")
    if i == 4:
        A("s_cmp_eq_u32 s16, 4")
        A("s_cselect_b32 exec_hi, 0, -1")
    A(f"s_waitcnt vmcnt({D1-1})")
    A(f"buffer_load_dwordx4 v{QO+i}, s[{sQW}:{sQW+3}], s12 offen offset:{1024*(i%4)} nt lds")
    if i == 4: A("s_cbranch_scc1 L_QDONE")
A("s_add_u32 s16, s16, 1")
A("s_cmp_lg_u32 s16, 2")
A("s_cbranch_scc1 L_QLOOP")
A("s_cmp_lt_u32 s2, 36")
A("s_cbranch_scc1 L_QLOOP")
A("s_barrier")
A("s_branch L_QLOOP")

A("L_NOTL:")
A("s_cmp_eq_u32 s6, 1")
A("s_cbranch_scc1 L_AUX")
A("v_lshlrev_b32 v14, 2, v2")
A(f"ds_write_b32 v14, v13 offset:{CNT}")
swz()
A("s_cmp_ge_u32 s2, 36")
A("s_cbranch_scc1 L_NOU")
xids()
setsrd(sU, 576*1152)
A("v_mul_u32_u24 v12, 1152, v8")
A("v_lshl_add_u32 v12, v9, 4, v12")
A("s_mul_i32 s14, s10, 144*1152")
A("s_lshl_b32 s13, s11, 7")
A("s_add_u32 s14, s14, s13")
A("s_mul_i32 s13, s6, 16*1152")
A("s_add_u32 s14, s14, s13")
A(f"s_sub_u32 s14, s14, {32*1152}")
A("s_lshl_b32 s13, s6, 11")
A(f"s_add_u32 m0, s13, {UL - 4096}")
A(f"s_add_u32 s15, s14, {8*1152 - 1024}")
A("s_waitcnt lgkmcnt(0)")
A(f"buffer_load_dwordx4 v12, s[{sU}:{sU+3}], s14 offen nt lds")
A(f"buffer_load_dwordx4 v12, s[{sU}:{sU+3}], s15 offen offset:1024 nt lds")
A("L_NOU:")
A("s_waitcnt lgkmcnt(0)")
kl(sV, 40); kl(sOUT, 48)
load_tags()
A("s_barrier")
A("s_branch L_COMP")
A("L_AUX:")
A("v_mul_u32_u24 v27, 3641, v2")
A("v_lshrrev_b32 v27, 16, v27")
A("v_lshlrev_b32 v29, 4, v2")
A("v_lshlrev_b32 v14, 7, v2")
A("s_cmp_ge_u32 s2, 36")
A("s_cbranch_scc1 L_NOXL")
setsrd(sX, 4*1152)
A("s_mul_i32 s10, s2, 57")
A("s_lshr_b32 s10, s10, 9")
A("v_mul_u32_u24 v28, 864, v27")
A("v_add_u32 v28, v28, v29")
A("s_mul_i32 s17, s10, 288")
A(f"s_mov_b32 m0, {XL}")
A("s_add_u32 s18, s17, 3*864")
A("s_waitcnt lgkmcnt(0)")
A(f"buffer_load_dwordx4 v28, s[{sX}:{sX+3}], s17 offen lds")
A("s_mov_b64 exec, 0xff")
A(f"buffer_load_dwordx4 v29, s[{sX}:{sX+3}], s18 offen offset:1024 lds")
A("s_cmp_lg_u32 s2, 0")
A("s_cbranch_scc1 L_NOZ")
if YS == 128: A(f"global_store_dword v14, v13, s[{sWS}:{sWS+1}] offset:{YC_OFF} sc1")
else:
    A(f"v_mul_u32_u24 v14, {YS}, v2")
    A(f"v_add_u32 v14, {YC_OFF}, v14")
    A(f"global_store_dword v14, v13, s[{sWS}:{sWS+1}] sc1")
A("L_NOZ:")
A("s_mov_b64 exec, -1")
A("L_NOXL:")
kl(sSC, 16); kl(sZ, 24)
if PT: kl(sV, 40); kl(sOUT, 48)
A("s_barrier")
setsrd(sSC, 18*9216); setsrd(sZ, 18*9216); setsrd(sWS, WS_BYTES)
A("v_mul_u32_u24 v27, 8928, v27")
A("v_add_u32 v27, v27, v29")
A("s_mul_i32 s16, s4, 9")
A("s_lshr_b32 s16, s16, 2")
A("s_mul_i32 s16, s16, 9216")
A("s_mul_i32 s17, s5, 288")
A("s_add_u32 s16, s16, s17")
A(f"s_mov_b32 m0, {SCL}")
A("s_mov_b32 exec_hi, 0x3fffff")
A("s_waitcnt lgkmcnt(0)")
load_tags()
A(f"buffer_load_dwordx4 v27, s[{sSC}:{sSC+3}], s16 offen lds")
A(f"s_mov_b32 m0, {ZL}")
A("s_nop 0")
A(f"buffer_load_dwordx4 v27, s[{sZ}:{sZ+3}], s16 offen lds")
NPT = 0
if PT:
    A("s_mov_b64 exec, 3")
    if "v" in PT:
        A("s_mul_i32 s20, s5, 144*9216")
        A(f"v_mul_u32_u24 v30, {144*9216-4}, v2")
        A("v_add_u32 v30, s20, v30")
        A(f"global_load_dword v31, v30, s[{sV}:{sV+1}]"); NPT += 1
    if "w" in PT:
        A(f"v_mul_u32_u24 v30, {(4<<20)-1024}, v2")
        A(f"global_load_dword v32, v30, s[{sWS}:{sWS+1}] offset:512"); NPT += 1
    if "o" in PT:
        A(f"global_load_dword v33, v13, s[{sOUT}:{sOUT+1}]"); NPT += 1
    if "q" in PT:
        A("s_mul_i32 s20, s4, 72*18432")
        A(f"s_add_u32 s20, s20, {72*18432-4}")
        A("v_mov_b32 v30, s20")
        A(f"global_load_dword v34, v30, s[{sQW}:{sQW+1}]"); NPT += 1
A("s_mov_b64 exec, -1")
if HI == 2 and EI:
    logid()
    A("s_mul_i32 s8, s3, 2304")
    A(f"s_add_u32 s8, s8, {HP_OFF}")
    for r in range(20, 24): A(f"v_mov_b32 v{r}, 0")
    A(f"buffer_store_dwordx4 v[20:23], v29, s[{sWS}:{sWS+3}], s8 offen")
    A(f"buffer_store_dwordx4 v[20:23], v29, s[{sWS}:{sWS+3}], s8 offen offset:1024")
    A("s_mov_b64 exec, 0xffff")
    A(f"buffer_store_dwordx4 v[20:23], v29, s[{sWS}:{sWS+3}], s8 offen offset:2048")
    A("s_mov_b64 exec, -1")
    NPT += 3
A("s_branch L_SYNC")

if DX:
    A("L_QLOOPX:")
    for i in range(9):
        if i % 4 == 0:
            A(f"s_add_u32 m0, m0, {4096 if i else 1024}")
            A(f"s_add_u32 s12, s12, {4096 if i else 16*18432 - 8192}")
        if i == 4:
            A("s_cmp_eq_u32 s16, 4")
            A("s_cselect_b32 exec_hi, 0, -1")
        A(f"s_waitcnt vmcnt({DX-1})")
        A(f"buffer_load_dwordx4 v{QO+i}, s[{sQW}:{sQW+3}], s12 offen offset:{1024*(i%4)} nt lds")
        if i == 4: A("s_cbranch_scc1 L_QDONE")
    A("s_add_u32 s16, s16, 1")
    A("s_branch L_QLOOPX")
A("L_QDONE:")
A("s_mov_b32 exec_hi, -1")
ST(1)
setsrd(sV, 4608*9216); setsrd(sWS, WS_BYTES)
swz(); vaddr(); logid()
A("v_mov_b32 v26, 1")
A(f"s_add_u32 s12, s20, {128*9216}")
A(f"s_mov_b32 s15, {VL}")
A("s_mov_b32 s16, 0")
A("s_mov_b32 s14, 0")
A("s_waitcnt lgkmcnt(0)")
A(f"s_add_u32 s66, s66, {TA + GB}")
def vround(depth):
    for cg in range(9):
        A(f"s_add_u32 m0, s15, {cg*1024 - cg*128}")
        A(f"s_waitcnt vmcnt({depth-1})")
        A(f"buffer_load_dwordx4 v11, s[{sV}:{sV+3}], s12 offen offset:{cg*128} nt lds")
A("L_V1:")
vround(D1)
if HY: A("s_mov_b32 s13, 0")
A("L_VT:")
A(f"s_add_u32 s12, s12, {8*9216}")
A("s_cmp_eq_u32 s16, 0")
A("s_cselect_b32 s12, s20, s12")
A("s_add_u32 s15, s15, 9216")
A("s_memrealtime s[68:69]")
if GT: A(f"ds_read_b32 v36, v13 offset:{T_ADJ}")
if D2: A(f"ds_read_b32 v35, v13 offset:{C_A}")
A("s_add_u32 s16, s16, 1")
A("v_mov_b32 v34, s16")
A(f"ds_write_b32 v13, v34 offset:{PROG}")
A(f"s_cmp_eq_u32 s16, {RND}")
A("s_cbranch_scc0 L_VNQ")
A(f"s_waitcnt vmcnt({9*RND})")
A(f"ds_write_b32 v13, v26 offset:{R_Q}")
ST(2)
A("L_VNQ:")
A("s_cmp_eq_u32 s16, 10")
A("s_cbranch_scc0 L_VNW")
ldspin("L_WQ", C_Q, 9)
A("L_VNW:")
A("s_cmp_eq_u32 s16, 17")
A("s_cbranch_scc1 L_VEND")
A("s_waitcnt lgkmcnt(0)")
A("s_sub_u32 s67, s68, s66")
if GT:
    A("v_readfirstlane_b32 s13, v36")
    A("s_sub_u32 s67, s67, s13")
if HY: A("s_add_u32 s67, s67, s13")
A(f"s_add_u32 s66, s66, {TBk}")
if FD < 17:
    if FM:
        A(f"s_cmp_ge_u32 s16, {FD}")
        A("s_cselect_b32 s13, s14, 0")
        A("s_cmp_lg_u32 s13, 0")
    else:
        A(f"s_cmp_ge_u32 s16, {FD}")
    A("s_cselect_b32 s67, 0, s67")
A("s_cmp_lt_i32 s67, 0")
if FM: A("s_cselect_b32 s14, 0, 1")
A("s_cbranch_scc1 L_V1")
if D2:
    A("v_readfirstlane_b32 s23, v35")
    A("s_cmp_ge_u32 s23, 9")
    A("s_cbranch_scc1 L_V3")
    vround(D2)
    A("s_branch L_VT")
    A("L_V3:")
if DM:
    A(f"s_cmp_ge_i32 s67, {LT}")
    A("s_cbranch_scc1 L_V4")
    vround(DM)
    A("s_branch L_VT")
    A("L_V4:")
vround(D3)
if HY:
    A(f"s_add_u32 s13, s13, {TBk*HY//100}")
    A(f"s_min_u32 s13, s13, {(D3-D1)*TBk*HY//900}")
A("s_branch L_VT")
A("L_VEND:")
A("v_lshlrev_b32 v12, 10, v2")
A("s_lshl_b32 s16, s4, 7")
A(f"s_mul_i32 s21, s4, {YS}")
A(f"s_add_u32 s20, s{sWS}, s21")
A(f"s_addc_u32 s21, s{sWS+1}, 0")
A(f"s_add_u32 s16, s16, {FL_OFF + 64}")
flagline(2 if OW else 3)
A("s_mov_b32 s17, 1")
ST(3)
A("s_waitcnt vmcnt(36)")
ST(4)
A("s_barrier")
ST(5)
A(f"ds_read_b32 v14, v13 offset:{R_E}")
A(f"s_waitcnt vmcnt({TK})")
A(f"s_atomic_add s17, s[20:21], {YC_OFF} glc")
A("s_waitcnt vmcnt(0)")
ST(6)
A("s_barrier")
A("s_waitcnt lgkmcnt(0)")
A("v_readfirstlane_b32 s7, v14")
A("s_cmp_lg_u32 s17, 31")
A("s_cbranch_scc1 L_NOTLAST")
A("s_mov_b32 exec_hi, 0")
A(f"buffer_store_dword v14, v12, s[{sWS}:{sWS+3}], s16 offen sc1")
A("L_NOTLAST:")
ST(7)
A(f"s_mov_b32 s22, {SPIN}")
if PP: A("s_not_b32 s23, s7")
A("L_YFL:")
A("s_load_dword s23, s[18:19], 64 glc")
if PP: A(f"s_sleep {PP}")
else: A("s_waitcnt lgkmcnt(0)")
A("s_cmp_eq_u32 s23, s7")
A("s_cbranch_scc1 L_YFLD")
A("s_sub_u32 s22, s22, 1")
A("s_cbranch_scc0 L_YFL")
A("L_YFLD:")
A("s_barrier")
if STAMPS:
    A("; STAMPDUMP 0 8")
A("L_END:")
A("s_endpgm")

def lanes():
    A(f"v_mov_b32 v5, {0xffffffff ^ TM:#x}")
    A("v_lshrrev_b32 v3, 4, v2")
    A("v_and_b32 v4, 15, v2")
    A("v_bfe_u32 v6, v2, 2, 2")
    A("v_and_b32 v7, 3, v2")
    masks()
    logid()
A("L_SYNC:")
A("s_setprio 3")
A("v_mov_b32 v17, 1")
lanes()
flagline()
A("v_lshrrev_b32 v14, 2, v2")
A("v_mul_u32_u24 v15, 576, v7")
A("v_add_lshl_u32 v15, v15, v14, 4")
A("s_mul_i32 s17, s4, 72*16")
A(f"s_add_u32 s17, s17, {XP_OFF}")
A(f"s_add_u32 s16, s17, {XPB}")
A("v_lshl_add_u32 v16, v6, 2, v7")
A("v_mul_u32_u24 v16, 48, v16")
A("v_lshl_add_u32 v16, v3, 1, v16")
A("s_lshl_b32 s68, s5, 7")
A(f"s_add_u32 s68, s68, {AG_OFF}")
A(f"s_add_u32 s68, s{sWS}, s68")
A(f"s_addc_u32 s69, s{sWS+1}, 0")
A("s_mov_b32 s44, s66")
A("s_getreg_b32 s66, hwreg(HW_REG_XCC_ID, 0, 4)")
A("s_mov_b64 exec, 1")
A(f"s_waitcnt vmcnt({2+NPT})")
A(f"ds_add_u32 v13, v17 offset:{C_U}")
A("s_mov_b64 exec, -1")
A("s_waitcnt lgkmcnt(0)")
make_tags()
A("v_mov_b32 v18, s7")
A(f"ds_write_b32 v13, v18 offset:{R_E}")
A("s_xor_b32 s67, s7, 0x5bd1e995")
A("s_lshl_b32 s67, s67, 4")
A("s_or_b32 s66, s66, s67")
A("s_lshl_b32 s67, s4, 2")
A("s_mov_b32 s20, s7")
A("s_not_b32 s21, s7")
A("v_mov_b32 v18, 2")
A(f"s_waitcnt vmcnt({NPT})")
A(f"ds_write_b32 v13, v18 offset:{R_U}")
if HI == 1: ldspin("L_CI", C_I, 9)
if HI == 2 and not EI:
    A("s_mul_i32 s8, s3, 2304")
    A(f"s_add_u32 s8, s8, {HP_OFF}")
    A("v_lshlrev_b32 v24, 4, v2")
    for r in range(20, 24): A(f"v_mov_b32 v{r}, 0")
    A(f"buffer_store_dwordx4 v[20:23], v24, s[{sWS}:{sWS+3}], s8 offen")
    A(f"buffer_store_dwordx4 v[20:23], v24, s[{sWS}:{sWS+3}], s8 offen offset:1024")
    A("s_mov_b64 exec, 0xffff")
    A(f"buffer_store_dwordx4 v[20:23], v24, s[{sWS}:{sWS+3}], s8 offen offset:2048")
    A("s_mov_b64 exec, -1")
    A("s_waitcnt vmcnt(0)")
if HI == 2 and EI: A("s_waitcnt vmcnt(0)")
A("s_atomic_swap s66, s[68:69], s67")
ST(1)
def spoll(nm, off, pr=18):
    A(f"s_mov_b32 s22, {SPIN}")
    A(f"L_SP{nm}:")
    A(f"s_load_dwordx8 s[8:15], s[{pr}:{pr+1}], {off} glc")
    A("s_waitcnt lgkmcnt(0)")
    for i in range(8): A(f"s_xor_b32 s{8+i}, s{8+i}, s7")
    A("s_or_b64 s[8:9], s[8:9], s[10:11]")
    A("s_or_b64 s[12:13], s[12:13], s[14:15]")
    A("s_or_b64 s[8:9], s[8:9], s[12:13]")
    A(f"s_cbranch_scc0 L_SP{nm}D")
    A("s_sub_u32 s22, s22, 1")
    A(f"s_cbranch_scc0 L_SP{nm}")
    A(f"L_SP{nm}D:")
if XS:
    A("s_lshr_b32 s24, s5, 2")
    A("s_lshl_b32 s24, s24, 3")
    A("s_add_u32 s24, s24, s4")
    A("s_lshl_b32 s24, s24, 7")
    A(f"s_add_u32 s24, s24, {XF_OFF}")
    A(f"s_add_u32 s24, s{sWS}, s24")
    A(f"s_addc_u32 s25, s{sWS+1}, 0")
    if not GT: spoll("X", 0, 24)
    else:
        A("s_mov_b64 s[46:47], s[24:25]")
        A(f"s_mov_b32 s22, {SPIN}")
        A("L_SPX:")
        A("s_load_dwordx16 s[24:39], s[46:47], 0 glc")
        A("s_waitcnt lgkmcnt(0)")
        for i in range(8): A(f"s_xor_b32 s{8+i}, s{24+2*i}, s7")
        A("s_or_b64 s[8:9], s[8:9], s[10:11]")
        A("s_or_b64 s[12:13], s[12:13], s[14:15]")
        A("s_or_b64 s[8:9], s[8:9], s[12:13]")
        A("s_cbranch_scc0 L_SPXD")
        A("s_sub_u32 s22, s22, 1")
        A("s_cbranch_scc0 L_SPX")
        A("L_SPXD:")
else: spoll("X", 0)
ST(2)
G = 20
A(f"s_mov_b32 s22, {SPIN}")
A("L_XPOLL:")
for u in range(5):
    if u == 4: A("s_mov_b32 exec_hi, 0")
    A(f"buffer_load_dwordx4 v[{G+8*u}:{G+8*u+3}], v15, s[{sWS}:{sWS+3}], s17 offen offset:{256*u} sc1")
    A(f"buffer_load_dwordx4 v[{G+8*u+4}:{G+8*u+7}], v15, s[{sWS}:{sWS+3}], s16 offen offset:{256*u} sc1")
if GT:
    A(f"s_cmp_lg_u32 s22, {SPIN}")
    A("s_cbranch_scc1 L_NOADJ")
    A("s_sub_u32 s45, s25, s44")
    for i in range(1, 8):
        A(f"s_sub_u32 s23, s{25+2*i}, s44")
        A(("s_add_i32" if GT == 1 else "s_min_i32") + " s45, s45, s23")
    if GT == 1: A("s_ashr_i32 s45, s45, 3")
    A("s_max_i32 s45, s45, -300")
    A("s_min_i32 s45, s45, 300")
    if GB: A(f"s_sub_u32 s45, s45, {GB}")
    A("v_mov_b32 v18, s45")
    A(f"ds_write_b32 v13, v18 offset:{T_ADJ}")
    A("L_NOADJ:")
A(f"s_mov_b32 s23, {SPIN}")
A("L_AGP:")
A("s_load_dwordx8 s[8:15], s[68:69], 0 glc")
A("s_waitcnt lgkmcnt(0)")
for i in range(8): A(f"s_xor_b32 s{8+i}, s{8+i}, s66")
A("s_or_b64 s[8:9], s[8:9], s[10:11]")
A("s_or_b64 s[12:13], s[12:13], s[14:15]")
A("s_or_b64 s[8:9], s[8:9], s[12:13]")
A("s_or_b32 s8, s8, s9")
A("s_cmp_lt_u32 s8, 16")
A("s_cbranch_scc1 L_AGD")
A("s_sub_u32 s23, s23, 1")
A("s_cbranch_scc0 L_AGP")
A("L_AGD:")
A("s_cmp_eq_u32 s8, 0")
A("s_cselect_b32 s67, 2, 1")
A("v_mov_b32 v19, s67")
A("s_waitcnt vmcnt(0)")
for k, u in enumerate((4, 0, 1, 2, 3)):
    d = 24+4*k if k < 4 else 8
    A(f"v_cmp_ne_u64 s[{d}:{d+1}], s[20:21], v[{G+8*u}:{G+8*u+1}]")
    A(f"v_cmp_ne_u64 s[{26+4*k}:{27+4*k}], s[20:21], v[{G+8*u+6}:{G+8*u+7}]") if k < 4 else A(f"v_cmp_ne_u64 vcc, s[20:21], v[{G+8*u+6}:{G+8*u+7}]")
    if k == 0: A("s_mov_b32 exec_hi, -1")
for r in (24, 26, 28, 30, 32, 34, 36, 38): A(f"s_or_b64 vcc, vcc, s[{r}:{r+1}]")
A("s_or_b64 vcc, vcc, s[8:9]")
A("s_cbranch_scc0 L_XDONE")
A("s_sub_u32 s22, s22, 1")
A("s_cbranch_scc0 L_XPOLL")
A("L_XDONE:")
ST(3)
for qp in ("[1,0,3,2]", "[2,3,0,1]"):
    for u in range(5):
        for i in range(4):
            r = G+8*u+2+i
            A(f"v_add_f32_dpp v{r}, v{r}, v{r} quad_perm:{qp} row_mask:0xf bank_mask:0xf")
for u in range(5): sel4(G+8*u+2)
A(f"v_cvt_pk_bf16_f32 v{G}, v{G+2}, v{G+10}")
A(f"v_cvt_pk_bf16_f32 v{G+8}, v{G+18}, v{G+26}")
A(f"v_cvt_pk_bf16_f32 v{G+16}, v{G+34}, v{G+34}")
A(f"ds_write_b16 v16, v{G} offset:{XR}")
A(f"ds_write_b16_d16_hi v16, v{G} offset:{XR+8}")
A(f"ds_write_b16 v16, v{G+8} offset:{XR+16}")
A(f"ds_write_b16_d16_hi v16, v{G+8} offset:{XR+24}")
A("s_mov_b32 exec_hi, 0")
A(f"ds_write_b16 v16, v{G+16} offset:{XR+32}")
A(f"ds_write_b32 v13, v19 offset:{R_X}")
ST(4)
A("s_cmp_eq_u32 s67, 1")
A("s_cbranch_scc1 L_GLOBH")
ldspin("L_PHL", PROG, PH)
A("s_branch L_SEND")
A("L_GLOBH:")
spoll("H", 32)
A("L_SEND:")
A(f"ds_write_b32 v13, v17 offset:{R_H}")
ST(5)
if STAMPS:
    A("s_waitcnt vmcnt(0) lgkmcnt(0)")
    A("; STAMPDUMP 0 6")
A("s_endpgm")

A("L_COMP:")
setsrd(sWS, WS_BYTES); setsrd(sV, 4608*9216); setsrd(sOUT, 4*9216)
lanes()
vaddr()
A("s_sub_u32 s6, s6, 2")
A("v_and_b32 v89, 1, v3")
A("v_lshl_add_u32 v89, v89, 2, v6")
A("v_lshlrev_b32 v88, 7, v89")
A("v_lshl_add_u32 v88, v7, 3, v88")
A("v_lshrrev_b32 v89, 1, v89")
A("v_lshrrev_b32 v90, 1, v3")
A("v_mov_b32 v60, 1")
A("v_lshlrev_b32 v55, 4, v2")
SZ = 64
if GT: A("v_mov_b32 v59, s66")
A("s_mul_i32 s66, s3, 2304")
A("s_lshl_b32 s19, s6, 8")
A("s_add_u32 s66, s66, s19")
A(f"s_add_u32 s66, s66, {HP_OFF}")
if HI == 1:
    for r in range(48, 52): A(f"v_mov_b32 v{r}, 0")
    A("s_mov_b64 exec, 0xffff")
    A(f"buffer_store_dwordx4 v[48:51], v55, s[{sWS}:{sWS+3}], s66 offen")
    A("s_mov_b64 exec, -1")
ST(1)
A("s_cmp_ge_u32 s2, 36")
A("s_cbranch_scc1 L_NOX")
A("s_cmp_lt_u32 s6, 4")
A("s_cbranch_scc1 L_XJOB")
A("s_mov_b64 exec, 1")
A(f"s_waitcnt vmcnt({1 if HI == 1 else 0})")
A(f"ds_add_u32 v13, v60 offset:{C_U}")
A("s_mov_b64 exec, -1")
A("s_branch L_NOX")
A("L_XJOB:")
A("s_setprio 2")
XA = 16
XB = 100
A("v_mul_u32_u24 v15, 288, v7")
A("v_lshl_add_u32 v15, v3, 3, v15")
A(f"v_add_u32 v15, {XL}, v15")
A(f"v_mov_b32 v{XA+18}, 0"); A(f"v_mov_b32 v{XA+19}, 0")
A("v_xor_b32 v56, s6, v89")
A("v_lshl_add_u32 v56, v56, 5, v88")
A("v_lshl_add_u32 v56, v90, 10, v56")
A(f"v_add_u32 v56, {UL}, v56")
A(f"v_mov_b32 v{XB+18}, 0"); A(f"v_mov_b32 v{XB+19}, 0")
A("s_mul_i32 s17, s10, 576*16")
A("s_lshl_b32 s18, s11, 10")
A("s_add_u32 s17, s17, s18")
A("s_lshl_b32 s18, s6, 8")
A("s_add_u32 s17, s17, s18")
A(f"s_add_u32 s17, s17, {XP_OFF}")
A(f"v_and_b32 v57, {7 if XS else 31}, v2")
A("v_lshlrev_b32 v57, 10, v57")
A("v_lshrrev_b32 v58, 5, v2")
A(f"v_mul_u32_u24 v58, {120 if GT else 124}, v58")
A("v_sub_u32 v57, v57, v58")
A("v_add_u32 v57, 128, v57")
A("s_lshl_b32 s18, s11, 7")
A(f"s_lshl_b32 s19, s10, {4 if GT else 3}")
A("s_add_u32 s18, s18, s19")
A(f"s_add_u32 s18, s18, {(XF_OFF if XS else FL_OFF) - 128}")
A("s_cmp_eq_u32 s11, 8")
A("s_cselect_b32 s8, 0, " + ("0xff" if XS else "-1"))
A("s_cmp_eq_u32 s11, 0")
A("s_cselect_b32 s9, 0, " + ("0xff" if XS else "-1"))
A("s_waitcnt lgkmcnt(0)")
make_tags()
A("v_mov_b32 v58, s7")
A("v_mov_b32 v38, s7"); A("v_not_b32 v39, s7"); A("v_mov_b32 v44, s7"); A("v_not_b32 v45, s7")
A(f"s_add_u32 s16, s17, {XPB}")
A("s_mov_b64 exec, 1")
A(f"s_waitcnt vmcnt({1 if HI == 1 else 0})")
A(f"ds_add_u32 v13, v60 offset:{C_U}")
A("s_mov_b64 exec, -1")
ldspin("L_RU", C_U, 10)
if GK:
    A("s_memrealtime s[12:13]")
    A("s_waitcnt lgkmcnt(0)")
    A(f"s_sub_u32 s12, s12, {GK}")
    A("v_mov_b32 v59, s12")
for t in range(5):
    if t < 4: A(f"ds_read2_b64 v[{XA+4*t}:{XA+4*t+3}], v15 offset0:{8*t} offset1:{8*t+4}")
    else: A(f"ds_read_b64 v[{XA+4*t}:{XA+4*t+1}], v15 offset:{64*t}")
    A(f"ds_read_b64_tr_b16 v[{XB+4*t}:{XB+4*t+1}], v56 offset:{4*t*1024}")
    if t < 4: A(f"ds_read_b64_tr_b16 v[{XB+4*t+2}:{XB+4*t+3}], v56 offset:{(4*t+2)*1024}")
for t in range(5):
    A(f"s_waitcnt lgkmcnt({max(0, 11-3*t)})")
    c = "0" if t == 0 else "v[40:43]"
    A(f"v_mfma_f32_16x16x32_bf16 v[40:43], v[{XA+4*t}:{XA+4*t+3}], v[{XB+4*t}:{XB+4*t+3}], {c}")
A("s_mov_b64 exec, 0xffff")
A("s_nop 6")
A(f"buffer_store_dwordx4 v[38:41], v55, s[{sWS}:{sWS+3}], s17 offen sc1")
A(f"buffer_store_dwordx4 v[42:45], v55, s[{sWS}:{sWS+3}], s16 offen sc1")
A("s_mov_b64 exec, 1")
A(f"ds_add_rtn_u32 v14, v13, v60 offset:{C_XW}")
A("s_waitcnt lgkmcnt(0)")
A("v_readfirstlane_b32 s23, v14")
A("s_cmp_lg_u32 s23, 3")
A("s_cbranch_scc1 L_XNF")
A("s_mov_b64 exec, s[8:9]")
A(f"buffer_store_dwordx2 v[58:59], v57, s[{sWS}:{sWS+3}], s18 offen sc1" if GT else f"buffer_store_dword v58, v57, s[{sWS}:{sWS+3}], s18 offen sc1")
if HI == 1:
    A("s_waitcnt vmcnt(3)")
    A("s_branch L_XEND")
A("L_XNF:")
if HI == 1: A("s_waitcnt vmcnt(2)")
A("s_branch L_XEND")
A("L_NOX:")
A("s_waitcnt lgkmcnt(0)")
make_tags()
if HI == 1: A("s_waitcnt vmcnt(0)")
A("L_XEND:")
A("s_setprio 0")
if HI == 1:
    A("s_mov_b64 exec, 1")
    A(f"ds_add_u32 v13, v60 offset:{C_I}")
A("s_mov_b64 exec, -1")
ST(2)
A("v_mul_u32_u24 v15, 576, v3")
A("v_lshl_add_u32 v15, v4, 2, v15")
A("s_lshl_b32 s12, s6, 6")
A(f"s_add_u32 s12, s12, {QL}")
A("v_add_u32 v15, s12, v15")
A("v_lshl_add_u32 v56, v3, 2, v7")
A("v_mul_u32_u24 v56, 48, v56")
A("s_and_b32 s12, s4, 3")
for k in (1, 2, 3):
    A(f"s_cmp_ge_u32 s12, {k}")
    A(f"s_cselect_b64 s[{12+2*k}:{13+2*k}], -1, 0")
A("v_lshlrev_b32 v57, 1, v4")
A("s_lshl_b32 s12, s6, 5")
A("v_add_u32 v57, s12, v57")
ldspin("L_RU2", R_U, 2)
for g in range(3):
    A(f"ds_read_u16 v{SZ+g}, v57 offset:{SCL + 288*g}")
    A(f"ds_read_u16 v{SZ+3+g}, v57 offset:{ZL + 288*g}")
A("s_waitcnt lgkmcnt(0)")
for g in range(6): A(f"v_lshlrev_b32 v{SZ+g}, 16, v{SZ+g}")
SP, ZP = 70, 79
def pairsz(p):
    base = p >> 2
    r = p & 3
    if r == 0: return SZ+base, SZ+3+base
    return SP+p, ZP+p
for p in range(9):
    base, r = p >> 2, p & 3
    if r:
        k = 4 - r
        A(f"v_cndmask_b32 v{SP+p}, v{SZ+base}, v{SZ+base+1}, s[{12+2*k}:{13+2*k}]")
        A(f"v_cndmask_b32 v{ZP+p}, v{SZ+3+base}, v{SZ+3+base+1}, s[{12+2*k}:{13+2*k}]")
QW = 16
B = 36
AX = 100
for r in (B+9, B+10, B+11, AX+9, AX+10, AX+11): A(f"v_mov_b32 v{r}, 0")
A("s_lshl_b32 s19, s6, 8")
A("s_mov_b32 s18, s66")
A("s_mul_i32 s17, s5, 8*2304")
A("s_add_u32 s17, s17, s19")
A(f"s_add_u32 s17, s17, {HP_OFF}")
A("v_lshlrev_b32 v61, 7, v2")
A("v_mov_b32 v62, s7")
A("s_lshl_b32 s16, s5, 10")
A("s_lshl_b32 s19, s4, 2")
A("s_add_u32 s16, s16, s19")
A(f"s_add_u32 s16, s16, {FL_OFF + 32}")
ldspin("L_RQ", R_Q, 1)
ST(3)
for p in range(9):
    A(f"ds_read2st64_b32 v[{QW+2*p}:{QW+2*p+1}], v15 offset0:{18*p} offset1:{18*p+9}")
for p in range(9):
    A(f"s_waitcnt lgkmcnt({8-p})")
    if p == 8:
        A("s_mov_b64 exec, 1")
        A(f"ds_add_u32 v13, v60 offset:{C_Q}")
        A("s_mov_b64 exec, -1")
    r0, r1 = QW+2*p, QW+2*p+1
    sr, zr = pairsz(p)
    A(f"v_cvt_f32_i32 v{r0}, v{r0}")
    A(f"v_cvt_f32_i32 v{r1}, v{r1}")
    A(f"v_sub_f32 v{r0}, v{r0}, v{zr}")
    A(f"v_sub_f32 v{r1}, v{r1}, v{zr}")
    A(f"v_cvt_pk_bf16_f32 v{r1}, v{r0}, v{r1}")
    A(f"v_lshlrev_b32 v{r0}, 16, v{r1}")
    A(f"v_and_b32 v{r1}, 0xffff0000, v{r1}")
    A(f"v_mul_f32 v{r0}, v{r0}, v{sr}")
    A(f"v_mul_f32 v{r1}, v{r1}, v{sr}")
    A(f"v_cvt_pk_bf16_f32 v{B+p}, v{r0}, v{r1}")
if RM == 2:
    A("s_lshl_b32 s21, s6, 7")
    A("s_add_u32 s21, s20, s21")
    A(f"s_add_u32 s21, s21, {136*9216}")
    ldspin("L_RX", R_X, 1)
    A(f"buffer_load_dwordx4 v[112:115], v11, s[{sV}:{sV+3}], s21 offen nt")
else:
    ldspin("L_RX", R_X, 1)
A(f"ds_read_b128 v[{AX}:{AX+3}], v56 offset:{XR}")
A(f"ds_read_b128 v[{AX+4}:{AX+7}], v56 offset:{XR+16}")
A(f"ds_read_b32 v{AX+8}, v56 offset:{XR+32}")
for t in range(3):
    A(f"s_waitcnt lgkmcnt({2-t})")
    c = "0" if t == 0 else "v[48:51]"
    A(f"v_mfma_f32_16x16x32_bf16 v[48:51], v[{AX+4*t}:{AX+4*t+3}], v[{B+4*t}:{B+4*t+3}], {c}")
A("s_mov_b64 exec, 0xffff")
A("s_cmp_eq_u32 s23, 2")
A("s_nop 5")
if HI:
    for i in range(4): A(f"v_or_b32 v{48+i}, 1, v{48+i}")
else: tag(48)
A("s_cbranch_scc0 L_HGL")
A(f"buffer_store_dwordx4 v[48:51], v55, s[{sWS}:{sWS+3}], s18 offen")
A("s_branch L_HNF")
A("L_HGL:")
A(f"buffer_store_dwordx4 v[48:51], v55, s[{sWS}:{sWS+3}], s18 offen sc1")
A("s_mov_b64 exec, 1")
A("s_waitcnt vmcnt(0)")
A(f"ds_add_rtn_u32 v14, v13, v60 offset:{C_H}")
A("s_waitcnt lgkmcnt(0)")
A("v_readfirstlane_b32 s23, v14")
A("s_cmp_lg_u32 s23, 8")
A("s_cbranch_scc1 L_HNF")
A("s_mov_b64 exec, 0xff")
A(f"buffer_store_dword v62, v61, s[{sWS}:{sWS+3}], s16 offen sc1")
A("L_HNF:")
A("s_mov_b64 exec, -1")
REM = 112
A("s_lshl_b32 s21, s6, 7")
A("s_add_u32 s20, s20, s21")
A(f"s_add_u32 s20, s20, {136*9216}")
if not RM: A(f"buffer_load_dwordx4 v[{REM}:{REM+3}], v11, s[{sV}:{sV+3}], s20 offen nt")
else: A("v_mov_b32 v118, v11")
ST(4)
A("v_mul_u32_u24 v96, 2304, v10")
A("v_lshl_add_u32 v96, v8, 4, v96")
A("v_lshrrev_b32 v58, 2, v8")
A("v_lshlrev_b32 v58, 6, v58")
A("v_lshl_add_u32 v58, v7, 4, v58")
A("v_and_b32 v59, 3, v8")
A("v_lshl_add_u32 v58, v59, 1, v58")
A("s_lshr_b32 s18, s6, 1")
A("s_lshl_b32 s18, s18, 8")
A("s_and_b32 s19, s6, 1")
A("s_lshl_b32 s19, s19, 3")
A("s_add_u32 s18, s18, s19")
A("v_add_u32 v97, s18, v58")
A("v_mov_b32 v9, v55")
A("v_mov_b32 v15, v60")
AV = 16
def areg(t, i=0): return AV + 4*t
A("v_mul_u32_u24 v98, 9216, v90")
A("v_add_u32 v98, v98, v88")
A("s_lshl_b32 s18, s6, 10")
A(f"s_add_u32 s18, s18, {VL}")
A("v_add_u32 v98, s18, v98")
TRA, TRB = 100, 104
for i in range(4):
    A(f"v_xor_b32 v99, {i}, v89")
    A(f"v_lshl_add_u32 v{TRA+i}, v99, 5, v98")
    A(f"v_add_u32 v{TRB+i}, 73728, v{TRA+i}")
A("v_add_u32 v99, s18, v9")
A("v_lshlrev_b32 v98, 6, v3")
A("v_lshl_add_u32 v98, v7, 4, v98")
A("v_mov_b32 v34, 0"); A("v_mov_b32 v35, 0")
A(f"v_mov_b32 v117, {1 << (TB-1):#x}")
A("s_lshl_b32 s16, s4, 5")
A("s_add_u32 s14, s16, s5")
A("s_mul_i32 s14, s14, 9216")
A("s_lshl_b32 s19, s6, 10")
A("s_add_u32 s14, s14, s19")
A(f"s_add_u32 s14, s14, {YP_OFF}")
A("v_subrev_u32 v8, 128, v0")
A("v_mul_u32_u24 v10, 3641, v8")
A("v_lshrrev_b32 v10, 16, v10")
A("v_mul_u32_u24 v10, 8928, v10")
A("v_lshlrev_b32 v11, 4, v8")
A("v_add_u32 v10, v10, v11")
if OW:
    A("s_and_b32 s12, s2, 7")
    A("s_lshr_b32 s13, s2, 3")
else:
    A("s_mov_b32 s12, s4"); A("s_mov_b32 s13, s5")
A("s_mul_i32 s16, s12, 32*9216")
A("s_mul_i32 s19, s13, 288")
A("s_add_u32 s16, s16, s19")
A(f"s_add_u32 s16, s16, {YP_OFF}")
A("v_and_b32 v1, 7, v8")
A("v_mul_u32_u24 v1, 288, v1")
A("v_lshrrev_b32 v8, 3, v8")
A("v_lshl_add_u32 v1, v8, 2, v1")
A(f"v_add_u32 v1, {VL}, v1")
A("v_and_b32 v12, 3, v8")
A("v_mul_u32_u24 v12, 9216, v12")
A("v_lshrrev_b32 v8, 2, v8")
A("v_lshl_add_u32 v12, v8, 1, v12")
A("s_mul_i32 s15, s12, 1152")
A("s_mul_i32 s19, s13, 36")
A("s_add_u32 s15, s15, s19")
if os.environ.get("FAKEOUT"):
    A("v_subrev_u32 v12, 128, v0")
    A("v_lshrrev_b32 v12, 3, v12")
    A("v_lshlrev_b32 v12, 1, v12")
    A("s_mul_i32 s15, s3, 144")
BT = 48
ldspin("L_RH", R_H, 1)
H0, H1 = 48, 52
A(f"s_mov_b32 s22, {SPIN}")
A("L_HPOLL:")
A(f"buffer_load_dwordx4 v[{H0}:{H0+3}], v96, s[{sWS}:{sWS+3}], s17 offen sc1")
A(f"buffer_load_dwordx4 v[{H1}:{H1+3}], v96, s[{sWS}:{sWS+3}], s17 offen offset:128 sc1")
A("s_waitcnt vmcnt(0)")
if HI:
    for i in range(4): A(f"v_and_b32 v{56+i}, v{H0+i}, v{H1+i}")
    A("v_and_b32 v56, v56, v57")
    A("v_and_b32 v58, v58, v59")
    A("v_and_b32 v56, v56, v58")
    A("v_and_b32 v56, 1, v56")
    A("v_cmp_eq_u32 vcc, 0, v56")
else:
    check(H0, 56)
    check(H1, 57)
    A("v_or_b32 v56, v56, v57")
    A(f"v_and_b32 v56, {TM:#x}, v56")
    A("v_cmp_ne_u32 vcc, 0, v56")
A("s_and_b64 exec, vcc, vcc")
A("s_cbranch_scc0 L_HDONE")
A("s_sub_u32 s22, s22, 1")
A("s_cbranch_scc0 L_HPOLL")
A("L_HDONE:")
A("s_mov_b64 exec, -1")
if RM in (1, 3): A(f"buffer_load_dwordx4 v[{REM}:{REM+3}], v118, s[{sV}:{sV+3}], s20 offen nt")
ST(5)
for dp in ("quad_perm:[1,0,3,2]", "quad_perm:[2,3,0,1]", "row_half_mirror"):
    for i in range(8):
        A(f"v_add_f32_dpp v{H0+i}, v{H0+i}, v{H0+i} {dp} row_mask:0xf bank_mask:0xf")
sel4(H0); sel4(H1)
A(f"v_cvt_pk_bf16_f32 v{H0}, v{H0}, v{H1}")
A(f"ds_write_b16 v97, v{H0} offset:{HA}")
A(f"ds_write_b16_d16_hi v97, v{H0} offset:{HA+128}")
A("s_mov_b64 exec, 1")
A(f"ds_add_u32 v13, v15 offset:{C_A}")
A("s_mov_b64 exec, -1")
ldspin("L_CA", C_A, 9)
for t in range(4):
    a = areg(t)
    A(f"ds_read_b128 v[{a}:{a+3}], v98 offset:{HA + 256*t}")
A(f"ds_read_b64 v[32:33], v98 offset:{HA + 1024}")
Y = 108
YD = [36, 40, 44, 120]
def trreads(t, base):
    tr = TRA if t < 2 else TRB
    o = (1 + 4*(t % 2))*9216
    for i in range(4):
        A(f"ds_read_b64_tr_b16 v[{base+4*i}:{base+4*i+1}], v{tr+i} offset:{o}")
        A(f"ds_read_b64_tr_b16 v[{base+4*i+2}:{base+4*i+3}], v{tr+i} offset:{o + 2*9216}")
def mf(t, i, base, first=False):
    a = areg(t); d = YD[i]
    c = "0" if first else f"v[{d}:{d+3}]"
    A(f"v_mfma_f32_16x16x32_bf16 v[{d}:{d+3}], v[{a}:{a+3}], v[{base+4*i}:{base+4*i+3}], {c}")
def mfmas(t, base, first=False):
    for i in range(4): mf(t, i, base, first)
def kstep(t, base):
    trreads(t, base)
    for i in range(4):
        A(f"s_waitcnt lgkmcnt({6-2*i})")
        mf(t, i, base)
LG = (max(D1, D3) + 8)//9
ST(6)
if RM != 3:
    ldspin("L_EB", PROG, 9 + LG)
    trreads(0, BT)
    if RM: A("s_waitcnt vmcnt(0)")
    A(f"ds_write_b128 v99, v[{REM}:{REM+3}] offset:9216")
    trreads(1, BT+16)
    for i in range(4):
        A(f"v_mov_b32 v{BT+32+4*i+2}, 0"); A(f"v_mov_b32 v{BT+32+4*i+3}, 0")
    A("s_waitcnt lgkmcnt(9)")
    mfmas(0, BT, True)
    for i in range(4):
        A(f"ds_read_b64_tr_b16 v[{BT+32+4*i}:{BT+32+4*i+1}], v{TRA+i}")
    A("s_waitcnt lgkmcnt(4)")
    mfmas(1, BT+16)
    A("s_waitcnt lgkmcnt(0)")
    mfmas(4, BT+32)
    A(f"s_mov_b32 s22, {SPIN}")
    A("s_barrier")
    ST(7)
    kstep(2, BT)
else:
    ldspin("L_EB", PROG, 9 + LG)
    trreads(0, BT)
    trreads(1, BT+16)
    for i in range(4):
        A(f"v_mov_b32 v{BT+32+4*i+2}, 0"); A(f"v_mov_b32 v{BT+32+4*i+3}, 0")
    A("s_waitcnt lgkmcnt(8)")
    mfmas(0, BT, True)
    A("s_waitcnt lgkmcnt(0)")
    mfmas(1, BT+16)
    A(f"s_mov_b32 s22, {SPIN}")
    A("s_barrier")
    ST(7)
    trreads(2, BT)
    A("s_waitcnt vmcnt(0)")
    A(f"ds_write_b128 v99, v[{REM}:{REM+3}] offset:9216")
    for i in range(4):
        A(f"ds_read_b64_tr_b16 v[{BT+32+4*i}:{BT+32+4*i+1}], v{TRA+i}")
    A("s_waitcnt lgkmcnt(5)")
    mfmas(2, BT)
    A("s_waitcnt lgkmcnt(0)")
    mfmas(4, BT+32)
ST(8)
A("s_barrier")
ST(9)
kstep(3, BT+16)
A("s_nop 1")
for g in range(4):
    for r in range(4):
        A(f"v_add_u32_dpp v{Y+r}, v{YD[g]+r}, v117 quad_perm:[0,1,2,3] row_mask:{1 << g:#x} bank_mask:0xf")
for i in range(4): A(f"v_and_or_b32 v{Y+i}, v{Y+i}, v5, s{60+i}")
A(f"buffer_store_dwordx4 v[{Y}:{Y+3}], v9, s[{sWS}:{sWS+3}], s14 offen sc1")
ST(10)
A("s_barrier")
YG = 112
A(f"buffer_load_dwordx4 v[{YG}:{YG+3}], v10, s[{sWS}:{sWS+3}], s16 offen {YF1}")
A("L_YCHK:")
A("s_waitcnt vmcnt(0)")
check(YG, 116)
A(f"v_and_b32 v116, {TM:#x}, v116")
A("v_cmp_ne_u32 vcc, 0, v116")
A("s_cbranch_vccnz L_YRETRY")
A("L_YDONE:")
A("s_mov_b64 exec, -1")
ST(11)
A(f"ds_write_b128 v11, v[{YG}:{YG+3}] offset:{VL}")
A("s_waitcnt lgkmcnt(0)")
A("s_barrier")
A(f"ds_read2st64_b32 v[{YG}:{YG+1}], v1 offset0:0 offset1:9")
A(f"ds_read2st64_b32 v[{YG+2}:{YG+3}], v1 offset0:18 offset1:27")
A("s_waitcnt lgkmcnt(0)")
A(f"v_add_f32 v{YG}, v{YG}, v{YG+1}")
A(f"v_add_f32 v{YG+2}, v{YG+2}, v{YG+3}")
A(f"v_add_f32 v{YG}, v{YG}, v{YG+2}")
for dp in ("quad_perm:[1,0,3,2]", "quad_perm:[2,3,0,1]", "row_half_mirror"):
    A("s_nop 1")
    A(f"v_add_f32_dpp v{YG}, v{YG}, v{YG} {dp} row_mask:0xf bank_mask:0xf")
A(f"v_cvt_pk_bf16_f32 v{YG}, v{YG}, v{YG}")
A("s_mov_b32 exec_lo, 0x01010101")
A("s_mov_b32 exec_hi, 0x01010101")
A(f"buffer_store_short v{YG}, v12, s[{sOUT}:{sOUT+3}], s15 offen")
A("s_or_b32 s19, s2, s6")
A("s_cbranch_scc1 L_CEND")
A("s_mov_b64 exec, 1")
A("v_mov_b32 v14, s7")
A(f"buffer_store_dword v14, v13, s[{sWS}:{sWS+3}], 0 offen offset:{EP_OFF}")
A("L_CEND:")
if STAMPS:
    A("s_waitcnt vmcnt(0)")
    A("; STAMPDUMP 0 12")
A("s_endpgm")
A("L_YRETRY:")
A("s_sub_u32 s22, s22, 1")
A("s_cbranch_scc1 L_YDONE")
A("s_mov_b64 exec, vcc")
A("s_sleep 2")
A(f"buffer_load_dwordx4 v[{YG}:{YG+3}], v10, s[{sWS}:{sWS+3}], s16 offen " + ("sc1" if YF1 == "sc1" else "sc0 sc1"))
A("s_branch L_YCHK")
A("L_CODE_END:")

VG = 124
A('.section .rodata,"a"')
A(".p2align 6")
A(f""".amdhsa_kernel {KN}
  .amdhsa_next_free_vgpr {VG}
  .amdhsa_next_free_sgpr 70
  .amdhsa_accum_offset {(VG+3)//4*4}
  .amdhsa_group_segment_fixed_size 0
  .amdhsa_kernarg_size 72
  .amdhsa_user_sgpr_count 2
  .amdhsa_user_sgpr_kernarg_segment_ptr 1
  .amdhsa_system_sgpr_workgroup_id_x 1
  .amdhsa_float_denorm_mode_32 3
.end_amdhsa_kernel""")
dst = sys.argv[1]
if STAMPS:
    open(dst + ".pre", "w").write("\n".join(out) + "\n")
    import subprocess
    subprocess.check_call([sys.executable, "stamp.py", dst + ".pre", dst])
else:
    open(dst, "w").write("\n".join(out) + "\n")
```

```python
import sys, os
NAME = "standalone__weight_only_int_quip__decode"
KN = NAME + "_kernel"
E = lambda k, d: int(os.environ.get(k, str(d)))
D1 = E("D1", 18); D3 = E("D3", 36); TK = E("TK", 8); PH = E("PH", 8)
D2 = E("D2", 0)
HY = E("HY", 0)
PP = E("PP", 0)
PT = os.environ.get("PT", "vwoq")
RM = E("RM", 3)
OW = E("OW", 1)
HI = E("HI", 2)
DX = E("DX", 30)
GT = E("GT", 1)
GK = E("GK", 145)
GB = E("GB", 0)
DG = os.environ.get("DG", ""); DK = E("DK", 4)
BV = E("BV", 2)
PD = E("PD", 0)
WB = E("WB", 0)
DQ = E("DQ", D1)
FD = E("FD", 99)
FM = E("FM", 0)
DM = E("DM", 0); LT = E("LT", 30)
EI = E("EI", 1)
XS = E("XS", 1)
YS = E("YS", 128)
YF1 = os.environ.get("YF1", "sc1").replace("none", "").replace("+", " ")
TA = E("TA", 205); TBk = E("TBK", 32)
TB = E("TB", 8)
STAMPS = bool(os.environ.get("STAMPS"))
SPIN = 1 << 21
RND = (D1 + 8)//9
out = []
def A(s): out.append(s)
ROLE = ["E"]
def ST(k):
    if STAMPS: A(f"; STAMP {k}")
    if os.environ.get("DG", "") == f"{ROLE[0]}{k}":
        A("s_memrealtime s[98:99]")
        A("s_waitcnt lgkmcnt(0)")
        A("v_mov_b32 v125, s98")
        A(f"ds_max_u32 v13, v125 offset:{2048 + 64 + 12}")
TM = (1 << TB) - 1

XR, HA, CNT, SCL, ZL, XL, VL = 0, 768, 2048, 2304, 3328, 4352, 7168
R_U, R_Q, R_X, R_H, C_A, C_Q, C_XW, C_H, R_E, PROG, C_U, C_I, T_ADJ = [CNT + 4*i for i in range(13)]
LDS_BYTES = VL + 17*9216
QL = LDS_BYTES - 41472
UL = QL - 18432
assert LDS_BYTES == 163840 and UL >= VL + 10*9216
EP_OFF, YC_OFF, AG_OFF, FL_OFF, XP_OFF, HP_OFF, YP_OFF, WS_BYTES = 0, 1024, 4096, 8192, 65536, 196608, 1 << 20, 4 << 20
XPB = 36864
XF_OFF = 49152
if YS != 128: YC_OFF = 819200

A(f"""; Kernarg layout for this problem (72 bytes, ptrs only, base s[0:1]):
; @launch grid=(256,1,1) block=(704,1,1) lds={LDS_BYTES}
.amdgcn_target "amdgcn-amd-amdhsa--gfx950"
.text
.globl {KN}
.p2align 8
.type {KN},@function
{KN}:""")

sQW, sSC, sZ, sV, sWS, sOUT, sU, sX = 24, 28, 32, 36, 40, 44, 48, 52
def kl(r, off): A(f"s_load_dwordx2 s[{r}:{r+1}], s[0:1], {off}")
def setsrd(r, nb):
    A(f"s_mov_b32 s{r+2}, {nb}")
    A(f"s_mov_b32 s{r+3}, 0x00020000")
def load_tags(): A(f"s_load_dword s7, s[{sWS}:{sWS+1}], {EP_OFF}")
def make_tags():
    step = (1 << TB) * 31 // 100
    for i in range(4):
        A(f"s_add_u32 s{60+i}, s7, {1 + i*step}")
        A(f"s_and_b32 s{60+i}, s{60+i}, {TM:#x}")
    A("s_add_u32 s7, s7, 1")
def tag(r):
    for i in range(4): A(f"v_add_u32 v{r+i}, {1 << (TB-1):#x}, v{r+i}")
    for i in range(4): A(f"v_and_or_b32 v{r+i}, v{r+i}, v5, s{60+i}")
def check(r, t):
    for i in range(4): A(f"v_xor_b32 v{r+i}, s{60+i}, v{r+i}")
    A(f"v_or3_b32 v{t}, v{r}, v{r+1}, v{r+2}")
    A(f"v_or_b32 v{t}, v{t}, v{r+3}")
def masks():
    A("s_mov_b32 s56, 0x22222222"); A("s_mov_b32 s57, 0x22222222")
    A("s_mov_b32 s58, 0x44444444"); A("s_mov_b32 s59, 0x44444444")
    A("s_mov_b32 s64, 0x88888888"); A("s_mov_b32 s65, 0x88888888")
def sel4(h):
    A(f"v_cndmask_b32 v{h}, v{h}, v{h+1}, s[56:57]")
    A(f"v_cndmask_b32 v{h}, v{h}, v{h+2}, s[58:59]")
    A(f"v_cndmask_b32 v{h}, v{h}, v{h+3}, s[64:65]")
def ldspin(label, addr, target, tmp=14):
    A(f"s_mov_b32 s22, {SPIN*16}")
    A(f"{label}:")
    A(f"ds_read_b32 v{tmp}, v13 offset:{addr}")
    A("s_waitcnt lgkmcnt(0)")
    A(f"v_readfirstlane_b32 s23, v{tmp}")
    A(f"s_cmp_ge_u32 s23, {target}")
    A(f"s_cbranch_scc1 {label}_D")
    A("s_sleep 1")
    A("s_sub_u32 s22, s22, 1")
    A(f"s_cbranch_scc0 {label}")
    A(f"{label}_D:")
def swz():
    A("v_lshrrev_b32 v8, 3, v2")
    A("v_and_b32 v9, 6, v8")
    A("v_and_b32 v10, 7, v2")
    A("v_xor_b32 v9, v9, v10")
def vaddr():
    A("v_mul_u32_u24 v11, 9216, v8")
    A("v_lshl_add_u32 v11, v9, 4, v11")
    A("s_mul_i32 s20, s5, 144*9216")
    A("s_mul_i32 s21, s4, 1152")
    A("s_add_u32 s20, s20, s21")
def xids():
    A("s_mul_i32 s10, s2, 57")
    A("s_lshr_b32 s10, s10, 9")
    A("s_mul_i32 s11, s10, 9")
    A("s_sub_u32 s11, s2, s11")
def logid():
    A("s_lshl_b32 s3, s5, 3")
    A("s_add_u32 s3, s3, s4")
def flagline(r=3):
    A(f"s_lshl_b32 s18, s{r}, 7")
    A(f"s_add_u32 s18, s18, {FL_OFF}")
    A(f"s_add_u32 s18, s{sWS}, s18")
    A(f"s_addc_u32 s19, s{sWS+1}, 0")

A("s_cmp_ge_u32 s2, 256")
A("s_cbranch_scc1 L_END")
kl(sQW, 8)
A("s_getpc_b64 s[8:9]")
A("L_PC:")
A("v_lshlrev_b32 v14, 4, v0")
A("v_min_u32 v14, L_CODE_END-L_PC-4, v14")
A("global_load_dword v124, v14, s[8:9]")
kl(sU, 32); kl(sX, 0); kl(sWS, 64)
if GT: A("s_memrealtime s[66:67]")
A("v_readfirstlane_b32 s6, v0")
ST(0)
A("s_bfe_u32 s4, s2, 0x30003")
A("s_and_b32 s5, s2, 7")
A("s_lshl_b32 s5, s5, 2")
A("s_lshr_b32 s3, s2, 6")
A("s_add_u32 s5, s5, s3")
A("v_and_b32 v2, 63, v0")
A("v_mov_b32 v13, 0")
A("s_lshr_b32 s6, s6, 6")
A("s_cbranch_scc1 L_NOTL")
if not GT: A("s_memrealtime s[66:67]")
setsrd(sQW, 576*4608*4)
A("v_mul_u32_u24 v14, 1821, v2")
A("v_lshlrev_b32 v15, 4, v2")
A("s_movk_i32 s13, 17856")
A("s_mul_i32 s12, s4, 72*18432")
A("s_mul_i32 s14, s5, 576")
A("s_add_u32 s12, s12, s14")
A(f"s_mov_b32 m0, {QL}")
QO = 16
A(f"v_lshrrev_b32 v{QO}, 16, v14")
A(f"v_mad_u32_u24 v{QO}, v{QO}, s13, v15")
A("s_cmp_ge_u32 s2, 36")
A("s_cbranch_scc1 L_QGO")
A("s_barrier")
A("L_QGO:")
A("s_waitcnt lgkmcnt(0)")
kl(sV, 40)
for i in range(9):
    if i:
        A(f"v_add_u32 v14, {64*1821}, v14")
        if i % 4 == 0:
            A("s_add_u32 m0, m0, 4096")
            A("s_add_u32 s12, s12, 4096")
        A(f"v_lshrrev_b32 v{QO+i}, 16, v14")
        A(f"v_mad_u32_u24 v{QO+i}, v{QO+i}, s13, v15")
    A(f"buffer_load_dwordx4 v{QO+i}, s[{sQW}:{sQW+3}], s12 offen offset:{1024*(i%4)} nt lds")
A("s_mov_b32 s16, 1")
if DX:
    A("s_cmp_lt_u32 s2, 36")
    A("s_cbranch_scc1 L_QLOOPX")
if BV == 1: A("s_barrier")
A("L_QLOOP:")
for i in range(9):
    if i % 4 == 0:
        A(f"s_add_u32 m0, m0, {4096 if i else 1024}")
        A(f"s_add_u32 s12, s12, {4096 if i else 16*18432 - 8192}")
    if i == 4:
        A("s_cmp_eq_u32 s16, 4")
        A("s_cselect_b32 exec_hi, 0, -1")
    if i == 8 and BV == 2:
        A("s_cmp_lg_u32 s16, 1")
        A("s_cbranch_scc1 L_QNB")
        A("s_barrier")
        A("L_QNB:")
    A(f"s_waitcnt vmcnt({DQ-1})")
    A(f"buffer_load_dwordx4 v{QO+i}, s[{sQW}:{sQW+3}], s12 offen offset:{1024*(i%4)} nt lds")
    if i == 4: A("s_cbranch_scc1 L_QDONE")
A("s_add_u32 s16, s16, 1")
if BV == 0:
    A("s_cmp_lg_u32 s16, 2")
    A("s_cbranch_scc1 L_QLOOP")
    A("s_barrier")
A("s_branch L_QLOOP")

A("L_NOTL:")
A("s_cmp_eq_u32 s6, 1")
A("s_cbranch_scc1 L_AUX")
A("v_lshlrev_b32 v14, 2, v2")
A(f"ds_write_b32 v14, v13 offset:{CNT}")
swz()
A("s_cmp_ge_u32 s2, 36")
A("s_cbranch_scc1 L_NOU")
xids()
setsrd(sU, 576*1152)
A("v_mul_u32_u24 v12, 1152, v8")
A("v_lshl_add_u32 v12, v9, 4, v12")
A("s_mul_i32 s14, s10, 144*1152")
A("s_lshl_b32 s13, s11, 7")
A("s_add_u32 s14, s14, s13")
A("s_mul_i32 s13, s6, 16*1152")
A("s_add_u32 s14, s14, s13")
A(f"s_sub_u32 s14, s14, {32*1152}")
A("s_lshl_b32 s13, s6, 11")
A(f"s_add_u32 m0, s13, {UL - 4096}")
A(f"s_add_u32 s15, s14, {8*1152 - 1024}")
A("s_waitcnt lgkmcnt(0)")
A(f"buffer_load_dwordx4 v12, s[{sU}:{sU+3}], s14 offen nt lds")
A(f"buffer_load_dwordx4 v12, s[{sU}:{sU+3}], s15 offen offset:1024 nt lds")
A("L_NOU:")
A("s_waitcnt lgkmcnt(0)")
kl(sV, 40); kl(sOUT, 48)
load_tags()
A("s_barrier")
A("s_branch L_COMP")
A("L_AUX:")
A("v_mul_u32_u24 v27, 3641, v2")
A("v_lshrrev_b32 v27, 16, v27")
A("v_lshlrev_b32 v29, 4, v2")
A("v_lshlrev_b32 v14, 7, v2")
A("s_cmp_ge_u32 s2, 36")
A("s_cbranch_scc1 L_NOXL")
setsrd(sX, 4*1152)
A("s_mul_i32 s10, s2, 57")
A("s_lshr_b32 s10, s10, 9")
A("v_mul_u32_u24 v28, 864, v27")
A("v_add_u32 v28, v28, v29")
A("s_mul_i32 s17, s10, 288")
A(f"s_mov_b32 m0, {XL}")
A("s_add_u32 s18, s17, 3*864")
A("s_waitcnt lgkmcnt(0)")
A(f"buffer_load_dwordx4 v28, s[{sX}:{sX+3}], s17 offen lds")
A("s_mov_b64 exec, 0xff")
A(f"buffer_load_dwordx4 v29, s[{sX}:{sX+3}], s18 offen offset:1024 lds")
A("s_cmp_lg_u32 s2, 0")
A("s_cbranch_scc1 L_NOZ")
if YS == 128: A(f"global_store_dword v14, v13, s[{sWS}:{sWS+1}] offset:{YC_OFF} sc1")
else:
    A(f"v_mul_u32_u24 v14, {YS}, v2")
    A(f"v_add_u32 v14, {YC_OFF}, v14")
    A(f"global_store_dword v14, v13, s[{sWS}:{sWS+1}] sc1")
A("L_NOZ:")
A("s_mov_b64 exec, -1")
A("L_NOXL:")
kl(sSC, 16); kl(sZ, 24)
if PT: kl(sV, 40); kl(sOUT, 48)
A("s_barrier")
setsrd(sSC, 18*9216); setsrd(sZ, 18*9216); setsrd(sWS, WS_BYTES)
A("v_mul_u32_u24 v27, 8928, v27")
A("v_add_u32 v27, v27, v29")
A("s_mul_i32 s16, s4, 9")
A("s_lshr_b32 s16, s16, 2")
A("s_mul_i32 s16, s16, 9216")
A("s_mul_i32 s17, s5, 288")
A("s_add_u32 s16, s16, s17")
A(f"s_mov_b32 m0, {SCL}")
A("s_mov_b32 exec_hi, 0x3fffff")
A("s_waitcnt lgkmcnt(0)")
load_tags()
A(f"buffer_load_dwordx4 v27, s[{sSC}:{sSC+3}], s16 offen lds")
A(f"s_mov_b32 m0, {ZL}")
A("s_nop 0")
A(f"buffer_load_dwordx4 v27, s[{sZ}:{sZ+3}], s16 offen lds")
NPT = 0
if PT:
    A("s_mov_b64 exec, 3")
    if "v" in PT:
        A("s_mul_i32 s20, s5, 144*9216")
        A(f"v_mul_u32_u24 v30, {144*9216-4}, v2")
        A("v_add_u32 v30, s20, v30")
        A(f"global_load_dword v31, v30, s[{sV}:{sV+1}]"); NPT += 1
    if "w" in PT:
        A(f"v_mul_u32_u24 v30, {(4<<20)-1024}, v2")
        A(f"global_load_dword v32, v30, s[{sWS}:{sWS+1}] offset:512"); NPT += 1
    if "o" in PT:
        A(f"global_load_dword v33, v13, s[{sOUT}:{sOUT+1}]"); NPT += 1
    if "q" in PT:
        A("s_mul_i32 s20, s4, 72*18432")
        A(f"s_add_u32 s20, s20, {72*18432-4}")
        A("v_mov_b32 v30, s20")
        A(f"global_load_dword v34, v30, s[{sQW}:{sQW+1}]"); NPT += 1
A("s_mov_b64 exec, -1")
if HI == 2 and EI:
    logid()
    A("s_mul_i32 s8, s3, 2304")
    A(f"s_add_u32 s8, s8, {HP_OFF}")
    for r in range(20, 24): A(f"v_mov_b32 v{r}, 0")
    A(f"buffer_store_dwordx4 v[20:23], v29, s[{sWS}:{sWS+3}], s8 offen")
    A(f"buffer_store_dwordx4 v[20:23], v29, s[{sWS}:{sWS+3}], s8 offen offset:1024")
    A("s_mov_b64 exec, 0xffff")
    A(f"buffer_store_dwordx4 v[20:23], v29, s[{sWS}:{sWS+3}], s8 offen offset:2048")
    A("s_mov_b64 exec, -1")
    NPT += 3
A("s_branch L_SYNC")

if DX:
    A("L_QLOOPX:")
    for i in range(9):
        if i % 4 == 0:
            A(f"s_add_u32 m0, m0, {4096 if i else 1024}")
            A(f"s_add_u32 s12, s12, {4096 if i else 16*18432 - 8192}")
        if i == 4:
            A("s_cmp_eq_u32 s16, 4")
            A("s_cselect_b32 exec_hi, 0, -1")
        A(f"s_waitcnt vmcnt({DX-1})")
        A(f"buffer_load_dwordx4 v{QO+i}, s[{sQW}:{sQW+3}], s12 offen offset:{1024*(i%4)} nt lds")
        if i == 4: A("s_cbranch_scc1 L_QDONE")
    A("s_add_u32 s16, s16, 1")
    A("s_branch L_QLOOPX")
ROLE[0] = "L"
A("L_QDONE:")
A("s_mov_b32 exec_hi, -1")
ST(1)
setsrd(sV, 4608*9216); setsrd(sWS, WS_BYTES)
swz(); vaddr(); logid()
A("v_mov_b32 v26, 1")
A(f"s_add_u32 s12, s20, {128*9216}")
A(f"s_mov_b32 s15, {VL}")
A("s_mov_b32 s16, 0")
A("s_mov_b32 s14, 0")
A("s_waitcnt lgkmcnt(0)")
if DG:
    A("s_lshl_b32 s13, s2, 2")
    A("v_mov_b32 v40, s13")
    A("v_mov_b32 v41, s66")
    A("s_mov_b64 exec, 1")
    A(f"buffer_store_dword v41, v40, s[{sWS}:{sWS+3}], 0 offen offset:2048 sc1")
    A("s_mov_b64 exec, -1")
A(f"s_add_u32 s66, s66, {TA + GB}")
def vround(depth):
    for cg in range(9):
        A(f"s_add_u32 m0, s15, {cg*1024 - cg*128}")
        A(f"s_waitcnt vmcnt({depth-1})")
        A(f"buffer_load_dwordx4 v11, s[{sV}:{sV+3}], s12 offen offset:{cg*128} nt lds")
A("L_V1:")
vround(D1)
if HY: A("s_mov_b32 s13, 0")
A("L_VT:")
A(f"s_add_u32 s12, s12, {8*9216}")
A("s_cmp_eq_u32 s16, 0")
A("s_cselect_b32 s12, s20, s12")
A("s_add_u32 s15, s15, 9216")
A("s_memrealtime s[68:69]")
if GT: A(f"ds_read_b32 v36, v13 offset:{T_ADJ}")
if D2: A(f"ds_read_b32 v35, v13 offset:{C_A}")
A("s_add_u32 s16, s16, 1")
A("v_mov_b32 v34, s16")
A(f"ds_write_b32 v13, v34 offset:{PROG}")
A(f"s_cmp_eq_u32 s16, {RND}")
A("s_cbranch_scc0 L_VNQ")
A(f"s_waitcnt vmcnt({9*RND})")
A(f"ds_write_b32 v13, v26 offset:{R_Q}")
ST(2)
A("L_VNQ:")
A("s_cmp_eq_u32 s16, 10")
A("s_cbranch_scc0 L_VNW")
ldspin("L_WQ", C_Q, 9)
A("L_VNW:")
A("s_cmp_eq_u32 s16, 17")
A("s_cbranch_scc1 L_VEND")
A("s_waitcnt lgkmcnt(0)")
A("s_sub_u32 s67, s68, s66")
if GT:
    A("v_readfirstlane_b32 s13, v36")
    A("s_sub_u32 s67, s67, s13")
if HY: A("s_add_u32 s67, s67, s13")
A(f"s_add_u32 s66, s66, {TBk}")
if FD < 17:
    if FM:
        A(f"s_cmp_ge_u32 s16, {FD}")
        A("s_cselect_b32 s13, s14, 0")
        A("s_cmp_lg_u32 s13, 0")
    else:
        A(f"s_cmp_ge_u32 s16, {FD}")
    A("s_cselect_b32 s67, 0, s67")
A("s_cmp_lt_i32 s67, 0")
if FM: A("s_cselect_b32 s14, 0, 1")
A("s_cbranch_scc1 L_V1")
if D2:
    A("v_readfirstlane_b32 s23, v35")
    A("s_cmp_ge_u32 s23, 9")
    A("s_cbranch_scc1 L_V3")
    vround(D2)
    A("s_branch L_VT")
    A("L_V3:")
if DM:
    A(f"s_cmp_ge_i32 s67, {LT}")
    A("s_cbranch_scc1 L_V4")
    vround(DM)
    A("s_branch L_VT")
    A("L_V4:")
vround(D3)
if HY:
    A(f"s_add_u32 s13, s13, {TBk*HY//100}")
    A(f"s_min_u32 s13, s13, {(D3-D1)*TBk*HY//900}")
A("s_branch L_VT")
A("L_VEND:")
A("v_lshlrev_b32 v12, 10, v2")
A("s_lshl_b32 s16, s4, 7")
A(f"s_mul_i32 s21, s4, {YS}")
A(f"s_add_u32 s20, s{sWS}, s21")
A(f"s_addc_u32 s21, s{sWS+1}, 0")
A(f"s_add_u32 s16, s16, {FL_OFF + 64}")
flagline(2 if OW else 3)
A("s_mov_b32 s17, 1")
ST(3)
A("s_waitcnt vmcnt(36)")
ST(4)
A("s_barrier")
ST(5)
A(f"ds_read_b32 v14, v13 offset:{R_E}")
A(f"s_waitcnt vmcnt({TK})")
A(f"s_atomic_add s17, s[20:21], {YC_OFF} glc")
A("s_waitcnt vmcnt(0)")
ST(6)
A("s_barrier")
A("s_waitcnt lgkmcnt(0)")
A("v_readfirstlane_b32 s7, v14")
A("s_cmp_lg_u32 s17, 31")
A("s_cbranch_scc1 L_NOTLAST")
A("s_mov_b32 exec_hi, 0")
A(f"buffer_store_dword v14, v12, s[{sWS}:{sWS+3}], s16 offen sc1")
A("L_NOTLAST:")
if WB == 1:
    A("s_cmp_ge_u32 s2, 8")
    A("s_cbranch_scc1 L_NOWB")
    A("buffer_wbl2 sc1")
    A("L_NOWB:")
ST(7)
A(f"s_mov_b32 s22, {SPIN}")
if PP: A("s_not_b32 s23, s7")
A("L_YFL:")
A("s_load_dword s23, s[18:19], 64 glc")
if PP: A(f"s_sleep {PP}")
else: A("s_waitcnt lgkmcnt(0)")
A("s_cmp_eq_u32 s23, s7")
A("s_cbranch_scc1 L_YFLD")
A("s_sub_u32 s22, s22, 1")
A("s_cbranch_scc0 L_YFL")
A("L_YFLD:")
A("s_barrier")
if WB == 2:
    A("s_cmp_ge_u32 s2, 8")
    A("s_cbranch_scc1 L_NOWB")
    A("buffer_wbl2 sc1")
    A("L_NOWB:")
if STAMPS:
    A("; STAMPDUMP 0 8")
A("L_END:")
A("s_endpgm")

def lanes():
    A(f"v_mov_b32 v5, {0xffffffff ^ TM:#x}")
    A("v_lshrrev_b32 v3, 4, v2")
    A("v_and_b32 v4, 15, v2")
    A("v_bfe_u32 v6, v2, 2, 2")
    A("v_and_b32 v7, 3, v2")
    masks()
    logid()
ROLE[0] = "S"
A("L_SYNC:")
A("s_setprio 3")
A("v_mov_b32 v17, 1")
lanes()
flagline()
A("v_lshrrev_b32 v14, 2, v2")
A("v_mul_u32_u24 v15, 576, v7")
A("v_add_lshl_u32 v15, v15, v14, 4")
A("s_mul_i32 s17, s4, 72*16")
A(f"s_add_u32 s17, s17, {XP_OFF}")
A(f"s_add_u32 s16, s17, {XPB}")
A("v_lshl_add_u32 v16, v6, 2, v7")
A("v_mul_u32_u24 v16, 48, v16")
A("v_lshl_add_u32 v16, v3, 1, v16")
A("s_lshl_b32 s68, s5, 7")
A(f"s_add_u32 s68, s68, {AG_OFF}")
A(f"s_add_u32 s68, s{sWS}, s68")
A(f"s_addc_u32 s69, s{sWS+1}, 0")
A("s_mov_b32 s44, s66")
A("s_getreg_b32 s66, hwreg(HW_REG_XCC_ID, 0, 4)")
A("s_mov_b64 exec, 1")
A(f"s_waitcnt vmcnt({2+NPT})")
A(f"ds_add_u32 v13, v17 offset:{C_U}")
A("s_mov_b64 exec, -1")
A("s_waitcnt lgkmcnt(0)")
make_tags()
A("v_mov_b32 v18, s7")
A(f"ds_write_b32 v13, v18 offset:{R_E}")
A("s_xor_b32 s67, s7, 0x5bd1e995")
A("s_lshl_b32 s67, s67, 4")
A("s_or_b32 s66, s66, s67")
A("s_lshl_b32 s67, s4, 2")
A("s_mov_b32 s20, s7")
A("s_not_b32 s21, s7")
A("v_mov_b32 v18, 2")
A(f"s_waitcnt vmcnt({NPT})")
A(f"ds_write_b32 v13, v18 offset:{R_U}")
if HI == 1: ldspin("L_CI", C_I, 9)
if HI == 2 and not EI:
    A("s_mul_i32 s8, s3, 2304")
    A(f"s_add_u32 s8, s8, {HP_OFF}")
    A("v_lshlrev_b32 v24, 4, v2")
    for r in range(20, 24): A(f"v_mov_b32 v{r}, 0")
    A(f"buffer_store_dwordx4 v[20:23], v24, s[{sWS}:{sWS+3}], s8 offen")
    A(f"buffer_store_dwordx4 v[20:23], v24, s[{sWS}:{sWS+3}], s8 offen offset:1024")
    A("s_mov_b64 exec, 0xffff")
    A(f"buffer_store_dwordx4 v[20:23], v24, s[{sWS}:{sWS+3}], s8 offen offset:2048")
    A("s_mov_b64 exec, -1")
    A("s_waitcnt vmcnt(0)")
if HI == 2 and EI: A("s_waitcnt vmcnt(0)")
A("s_atomic_swap s66, s[68:69], s67")
ST(1)
def spoll(nm, off, pr=18):
    A(f"s_mov_b32 s22, {SPIN}")
    A(f"L_SP{nm}:")
    A(f"s_load_dwordx8 s[8:15], s[{pr}:{pr+1}], {off} glc")
    A("s_waitcnt lgkmcnt(0)")
    for i in range(8): A(f"s_xor_b32 s{8+i}, s{8+i}, s7")
    A("s_or_b64 s[8:9], s[8:9], s[10:11]")
    A("s_or_b64 s[12:13], s[12:13], s[14:15]")
    A("s_or_b64 s[8:9], s[8:9], s[12:13]")
    A(f"s_cbranch_scc0 L_SP{nm}D")
    A("s_sub_u32 s22, s22, 1")
    A(f"s_cbranch_scc0 L_SP{nm}")
    A(f"L_SP{nm}D:")
if XS:
    A("s_lshr_b32 s24, s5, 2")
    A("s_lshl_b32 s24, s24, 3")
    A("s_add_u32 s24, s24, s4")
    A("s_lshl_b32 s24, s24, 7")
    A(f"s_add_u32 s24, s24, {XF_OFF}")
    A(f"s_add_u32 s24, s{sWS}, s24")
    A(f"s_addc_u32 s25, s{sWS+1}, 0")
    if not GT: spoll("X", 0, 24)
    else:
        A("s_mov_b64 s[46:47], s[24:25]")
        A(f"s_mov_b32 s22, {SPIN}")
        A("L_SPX:")
        A("s_load_dwordx16 s[24:39], s[46:47], 0 glc")
        A("s_waitcnt lgkmcnt(0)")
        for i in range(8): A(f"s_xor_b32 s{8+i}, s{24+2*i}, s7")
        A("s_or_b64 s[8:9], s[8:9], s[10:11]")
        A("s_or_b64 s[12:13], s[12:13], s[14:15]")
        A("s_or_b64 s[8:9], s[8:9], s[12:13]")
        A("s_cbranch_scc0 L_SPXD")
        A("s_sub_u32 s22, s22, 1")
        A("s_cbranch_scc0 L_SPX")
        A("L_SPXD:")
else: spoll("X", 0)
ST(2)
G = 20
A(f"s_mov_b32 s22, {SPIN}")
A("L_XPOLL:")
for u in range(5):
    if u == 4: A("s_mov_b32 exec_hi, 0")
    A(f"buffer_load_dwordx4 v[{G+8*u}:{G+8*u+3}], v15, s[{sWS}:{sWS+3}], s17 offen offset:{256*u} sc1")
    A(f"buffer_load_dwordx4 v[{G+8*u+4}:{G+8*u+7}], v15, s[{sWS}:{sWS+3}], s16 offen offset:{256*u} sc1")
if GT:
    A(f"s_cmp_lg_u32 s22, {SPIN}")
    A("s_cbranch_scc1 L_NOADJ")
    A("s_sub_u32 s45, s25, s44")
    for i in range(1, 8):
        A(f"s_sub_u32 s23, s{25+2*i}, s44")
        A(("s_add_i32" if GT == 1 else "s_min_i32") + " s45, s45, s23")
    if GT == 1: A("s_ashr_i32 s45, s45, 3")
    A("s_max_i32 s45, s45, -300")
    A("s_min_i32 s45, s45, 300")
    if GB: A(f"s_sub_u32 s45, s45, {GB}")
    A("v_mov_b32 v18, s45")
    A(f"ds_write_b32 v13, v18 offset:{T_ADJ}")
    A("L_NOADJ:")
A(f"s_mov_b32 s23, {SPIN}")
A("L_AGP:")
A("s_load_dwordx8 s[8:15], s[68:69], 0 glc")
A("s_waitcnt lgkmcnt(0)")
for i in range(8): A(f"s_xor_b32 s{8+i}, s{8+i}, s66")
A("s_or_b64 s[8:9], s[8:9], s[10:11]")
A("s_or_b64 s[12:13], s[12:13], s[14:15]")
A("s_or_b64 s[8:9], s[8:9], s[12:13]")
A("s_or_b32 s8, s8, s9")
A("s_cmp_lt_u32 s8, 16")
A("s_cbranch_scc1 L_AGD")
A("s_sub_u32 s23, s23, 1")
A("s_cbranch_scc0 L_AGP")
A("L_AGD:")
A("s_cmp_eq_u32 s8, 0")
A("s_cselect_b32 s67, 2, 1")
A("v_mov_b32 v19, s67")
A("s_waitcnt vmcnt(0)")
for k, u in enumerate((4, 0, 1, 2, 3)):
    d = 24+4*k if k < 4 else 8
    A(f"v_cmp_ne_u64 s[{d}:{d+1}], s[20:21], v[{G+8*u}:{G+8*u+1}]")
    A(f"v_cmp_ne_u64 s[{26+4*k}:{27+4*k}], s[20:21], v[{G+8*u+6}:{G+8*u+7}]") if k < 4 else A(f"v_cmp_ne_u64 vcc, s[20:21], v[{G+8*u+6}:{G+8*u+7}]")
    if k == 0: A("s_mov_b32 exec_hi, -1")
for r in (24, 26, 28, 30, 32, 34, 36, 38): A(f"s_or_b64 vcc, vcc, s[{r}:{r+1}]")
A("s_or_b64 vcc, vcc, s[8:9]")
A("s_cbranch_scc0 L_XDONE")
A("s_sub_u32 s22, s22, 1")
A("s_cbranch_scc0 L_XPOLL")
A("L_XDONE:")
ST(3)
for qp in ("[1,0,3,2]", "[2,3,0,1]"):
    for u in range(5):
        for i in range(4):
            r = G+8*u+2+i
            A(f"v_add_f32_dpp v{r}, v{r}, v{r} quad_perm:{qp} row_mask:0xf bank_mask:0xf")
for u in range(5): sel4(G+8*u+2)
A(f"v_cvt_pk_bf16_f32 v{G}, v{G+2}, v{G+10}")
A(f"v_cvt_pk_bf16_f32 v{G+8}, v{G+18}, v{G+26}")
A(f"v_cvt_pk_bf16_f32 v{G+16}, v{G+34}, v{G+34}")
A(f"ds_write_b16 v16, v{G} offset:{XR}")
A(f"ds_write_b16_d16_hi v16, v{G} offset:{XR+8}")
A(f"ds_write_b16 v16, v{G+8} offset:{XR+16}")
A(f"ds_write_b16_d16_hi v16, v{G+8} offset:{XR+24}")
A("s_mov_b32 exec_hi, 0")
A(f"ds_write_b16 v16, v{G+16} offset:{XR+32}")
A(f"ds_write_b32 v13, v19 offset:{R_X}")
ST(4)
A("s_cmp_eq_u32 s67, 1")
A("s_cbranch_scc1 L_GLOBH")
if PD:
    A(f"ds_read_b32 v14, v13 offset:{PROG}")
    A("s_waitcnt lgkmcnt(0)")
    A("v_readfirstlane_b32 s8, v14")
    A(f"s_add_u32 s8, s8, {PD}")
    A(f"s_max_u32 s8, s8, {PH}")
    A("s_min_u32 s8, s8, 17")
    ldspin("L_PHL", PROG, "s8")
else: ldspin("L_PHL", PROG, PH)
A("s_branch L_SEND")
A("L_GLOBH:")
spoll("H", 32)
A("L_SEND:")
A(f"ds_write_b32 v13, v17 offset:{R_H}")
ST(5)
if STAMPS:
    A("s_waitcnt vmcnt(0) lgkmcnt(0)")
    A("; STAMPDUMP 0 6")
A("s_endpgm")

ROLE[0] = "C"
A("L_COMP:")
setsrd(sWS, WS_BYTES); setsrd(sV, 4608*9216); setsrd(sOUT, 4*9216)
lanes()
vaddr()
A("s_sub_u32 s6, s6, 2")
A("v_and_b32 v89, 1, v3")
A("v_lshl_add_u32 v89, v89, 2, v6")
A("v_lshlrev_b32 v88, 7, v89")
A("v_lshl_add_u32 v88, v7, 3, v88")
A("v_lshrrev_b32 v89, 1, v89")
A("v_lshrrev_b32 v90, 1, v3")
A("v_mov_b32 v60, 1")
A("v_lshlrev_b32 v55, 4, v2")
SZ = 64
if GT: A("v_mov_b32 v59, s66")
A("s_mul_i32 s66, s3, 2304")
A("s_lshl_b32 s19, s6, 8")
A("s_add_u32 s66, s66, s19")
A(f"s_add_u32 s66, s66, {HP_OFF}")
if HI == 1:
    for r in range(48, 52): A(f"v_mov_b32 v{r}, 0")
    A("s_mov_b64 exec, 0xffff")
    A(f"buffer_store_dwordx4 v[48:51], v55, s[{sWS}:{sWS+3}], s66 offen")
    A("s_mov_b64 exec, -1")
ST(1)
A("s_cmp_ge_u32 s2, 36")
A("s_cbranch_scc1 L_NOX")
A("s_cmp_lt_u32 s6, 4")
A("s_cbranch_scc1 L_XJOB")
A("s_mov_b64 exec, 1")
A(f"s_waitcnt vmcnt({1 if HI == 1 else 0})")
A(f"ds_add_u32 v13, v60 offset:{C_U}")
A("s_mov_b64 exec, -1")
A("s_branch L_NOX")
A("L_XJOB:")
A("s_setprio 2")
XA = 16
XB = 100
A("v_mul_u32_u24 v15, 288, v7")
A("v_lshl_add_u32 v15, v3, 3, v15")
A(f"v_add_u32 v15, {XL}, v15")
A(f"v_mov_b32 v{XA+18}, 0"); A(f"v_mov_b32 v{XA+19}, 0")
A("v_xor_b32 v56, s6, v89")
A("v_lshl_add_u32 v56, v56, 5, v88")
A("v_lshl_add_u32 v56, v90, 10, v56")
A(f"v_add_u32 v56, {UL}, v56")
A(f"v_mov_b32 v{XB+18}, 0"); A(f"v_mov_b32 v{XB+19}, 0")
A("s_mul_i32 s17, s10, 576*16")
A("s_lshl_b32 s18, s11, 10")
A("s_add_u32 s17, s17, s18")
A("s_lshl_b32 s18, s6, 8")
A("s_add_u32 s17, s17, s18")
A(f"s_add_u32 s17, s17, {XP_OFF}")
A(f"v_and_b32 v57, {7 if XS else 31}, v2")
A("v_lshlrev_b32 v57, 10, v57")
A("v_lshrrev_b32 v58, 5, v2")
A(f"v_mul_u32_u24 v58, {120 if GT else 124}, v58")
A("v_sub_u32 v57, v57, v58")
A("v_add_u32 v57, 128, v57")
A("s_lshl_b32 s18, s11, 7")
A(f"s_lshl_b32 s19, s10, {4 if GT else 3}")
A("s_add_u32 s18, s18, s19")
A(f"s_add_u32 s18, s18, {(XF_OFF if XS else FL_OFF) - 128}")
A("s_cmp_eq_u32 s11, 8")
A("s_cselect_b32 s8, 0, " + ("0xff" if XS else "-1"))
A("s_cmp_eq_u32 s11, 0")
A("s_cselect_b32 s9, 0, " + ("0xff" if XS else "-1"))
A("s_waitcnt lgkmcnt(0)")
make_tags()
A("v_mov_b32 v58, s7")
A("v_mov_b32 v38, s7"); A("v_not_b32 v39, s7"); A("v_mov_b32 v44, s7"); A("v_not_b32 v45, s7")
A(f"s_add_u32 s16, s17, {XPB}")
A("s_mov_b64 exec, 1")
A(f"s_waitcnt vmcnt({1 if HI == 1 else 0})")
A(f"ds_add_u32 v13, v60 offset:{C_U}")
A("s_mov_b64 exec, -1")
ldspin("L_RU", C_U, 10)
if GK:
    A("s_memrealtime s[12:13]")
    A("s_waitcnt lgkmcnt(0)")
    A(f"s_sub_u32 s12, s12, {GK}")
    A("v_mov_b32 v59, s12")
for t in range(5):
    if t < 4: A(f"ds_read2_b64 v[{XA+4*t}:{XA+4*t+3}], v15 offset0:{8*t} offset1:{8*t+4}")
    else: A(f"ds_read_b64 v[{XA+4*t}:{XA+4*t+1}], v15 offset:{64*t}")
    A(f"ds_read_b64_tr_b16 v[{XB+4*t}:{XB+4*t+1}], v56 offset:{4*t*1024}")
    if t < 4: A(f"ds_read_b64_tr_b16 v[{XB+4*t+2}:{XB+4*t+3}], v56 offset:{(4*t+2)*1024}")
for t in range(5):
    A(f"s_waitcnt lgkmcnt({max(0, 11-3*t)})")
    c = "0" if t == 0 else "v[40:43]"
    A(f"v_mfma_f32_16x16x32_bf16 v[40:43], v[{XA+4*t}:{XA+4*t+3}], v[{XB+4*t}:{XB+4*t+3}], {c}")
A("s_mov_b64 exec, 0xffff")
A("s_nop 6")
A(f"buffer_store_dwordx4 v[38:41], v55, s[{sWS}:{sWS+3}], s17 offen sc1")
A(f"buffer_store_dwordx4 v[42:45], v55, s[{sWS}:{sWS+3}], s16 offen sc1")
A("s_mov_b64 exec, 1")
A(f"ds_add_rtn_u32 v14, v13, v60 offset:{C_XW}")
A("s_waitcnt lgkmcnt(0)")
A("v_readfirstlane_b32 s23, v14")
A("s_cmp_lg_u32 s23, 3")
A("s_cbranch_scc1 L_XNF")
A("s_mov_b64 exec, s[8:9]")
A(f"buffer_store_dwordx2 v[58:59], v57, s[{sWS}:{sWS+3}], s18 offen sc1" if GT else f"buffer_store_dword v58, v57, s[{sWS}:{sWS+3}], s18 offen sc1")
if HI == 1:
    A("s_waitcnt vmcnt(3)")
    A("s_branch L_XEND")
A("L_XNF:")
if HI == 1: A("s_waitcnt vmcnt(2)")
A("s_branch L_XEND")
A("L_NOX:")
A("s_waitcnt lgkmcnt(0)")
make_tags()
if HI == 1: A("s_waitcnt vmcnt(0)")
A("L_XEND:")
A("s_setprio 0")
if HI == 1:
    A("s_mov_b64 exec, 1")
    A(f"ds_add_u32 v13, v60 offset:{C_I}")
A("s_mov_b64 exec, -1")
ST(2)
A("v_mul_u32_u24 v15, 576, v3")
A("v_lshl_add_u32 v15, v4, 2, v15")
A("s_lshl_b32 s12, s6, 6")
A(f"s_add_u32 s12, s12, {QL}")
A("v_add_u32 v15, s12, v15")
A("v_lshl_add_u32 v56, v3, 2, v7")
A("v_mul_u32_u24 v56, 48, v56")
A("s_and_b32 s12, s4, 3")
for k in (1, 2, 3):
    A(f"s_cmp_ge_u32 s12, {k}")
    A(f"s_cselect_b64 s[{12+2*k}:{13+2*k}], -1, 0")
A("v_lshlrev_b32 v57, 1, v4")
A("s_lshl_b32 s12, s6, 5")
A("v_add_u32 v57, s12, v57")
ldspin("L_RU2", R_U, 2)
for g in range(3):
    A(f"ds_read_u16 v{SZ+g}, v57 offset:{SCL + 288*g}")
    A(f"ds_read_u16 v{SZ+3+g}, v57 offset:{ZL + 288*g}")
A("s_waitcnt lgkmcnt(0)")
for g in range(6): A(f"v_lshlrev_b32 v{SZ+g}, 16, v{SZ+g}")
SP, ZP = 70, 79
def pairsz(p):
    base = p >> 2
    r = p & 3
    if r == 0: return SZ+base, SZ+3+base
    return SP+p, ZP+p
for p in range(9):
    base, r = p >> 2, p & 3
    if r:
        k = 4 - r
        A(f"v_cndmask_b32 v{SP+p}, v{SZ+base}, v{SZ+base+1}, s[{12+2*k}:{13+2*k}]")
        A(f"v_cndmask_b32 v{ZP+p}, v{SZ+3+base}, v{SZ+3+base+1}, s[{12+2*k}:{13+2*k}]")
QW = 16
B = 36
AX = 100
for r in (B+9, B+10, B+11, AX+9, AX+10, AX+11): A(f"v_mov_b32 v{r}, 0")
A("s_lshl_b32 s19, s6, 8")
A("s_mov_b32 s18, s66")
A("s_mul_i32 s17, s5, 8*2304")
A("s_add_u32 s17, s17, s19")
A(f"s_add_u32 s17, s17, {HP_OFF}")
A("v_lshlrev_b32 v61, 7, v2")
A("v_mov_b32 v62, s7")
A("s_lshl_b32 s16, s5, 10")
A("s_lshl_b32 s19, s4, 2")
A("s_add_u32 s16, s16, s19")
A(f"s_add_u32 s16, s16, {FL_OFF + 32}")
ldspin("L_RQ", R_Q, 1)
ST(3)
for p in range(9):
    A(f"ds_read2st64_b32 v[{QW+2*p}:{QW+2*p+1}], v15 offset0:{18*p} offset1:{18*p+9}")
for p in range(9):
    A(f"s_waitcnt lgkmcnt({8-p})")
    if p == 8:
        A("s_mov_b64 exec, 1")
        A(f"ds_add_u32 v13, v60 offset:{C_Q}")
        A("s_mov_b64 exec, -1")
    r0, r1 = QW+2*p, QW+2*p+1
    sr, zr = pairsz(p)
    A(f"v_cvt_f32_i32 v{r0}, v{r0}")
    A(f"v_cvt_f32_i32 v{r1}, v{r1}")
    A(f"v_sub_f32 v{r0}, v{r0}, v{zr}")
    A(f"v_sub_f32 v{r1}, v{r1}, v{zr}")
    A(f"v_cvt_pk_bf16_f32 v{r1}, v{r0}, v{r1}")
    A(f"v_lshlrev_b32 v{r0}, 16, v{r1}")
    A(f"v_and_b32 v{r1}, 0xffff0000, v{r1}")
    A(f"v_mul_f32 v{r0}, v{r0}, v{sr}")
    A(f"v_mul_f32 v{r1}, v{r1}, v{sr}")
    A(f"v_cvt_pk_bf16_f32 v{B+p}, v{r0}, v{r1}")
if RM == 2:
    A("s_lshl_b32 s21, s6, 7")
    A("s_add_u32 s21, s20, s21")
    A(f"s_add_u32 s21, s21, {136*9216}")
    ldspin("L_RX", R_X, 1)
    A(f"buffer_load_dwordx4 v[112:115], v11, s[{sV}:{sV+3}], s21 offen nt")
else:
    ldspin("L_RX", R_X, 1)
A(f"ds_read_b128 v[{AX}:{AX+3}], v56 offset:{XR}")
A(f"ds_read_b128 v[{AX+4}:{AX+7}], v56 offset:{XR+16}")
A(f"ds_read_b32 v{AX+8}, v56 offset:{XR+32}")
for t in range(3):
    A(f"s_waitcnt lgkmcnt({2-t})")
    c = "0" if t == 0 else "v[48:51]"
    A(f"v_mfma_f32_16x16x32_bf16 v[48:51], v[{AX+4*t}:{AX+4*t+3}], v[{B+4*t}:{B+4*t+3}], {c}")
A("s_mov_b64 exec, 0xffff")
A("s_cmp_eq_u32 s23, 2")
A("s_nop 5")
if HI:
    for i in range(4): A(f"v_or_b32 v{48+i}, 1, v{48+i}")
else: tag(48)
A("s_cbranch_scc0 L_HGL")
A(f"buffer_store_dwordx4 v[48:51], v55, s[{sWS}:{sWS+3}], s18 offen")
A("s_branch L_HNF")
A("L_HGL:")
A(f"buffer_store_dwordx4 v[48:51], v55, s[{sWS}:{sWS+3}], s18 offen sc1")
A("s_mov_b64 exec, 1")
A("s_waitcnt vmcnt(0)")
A(f"ds_add_rtn_u32 v14, v13, v60 offset:{C_H}")
A("s_waitcnt lgkmcnt(0)")
A("v_readfirstlane_b32 s23, v14")
A("s_cmp_lg_u32 s23, 8")
A("s_cbranch_scc1 L_HNF")
A("s_mov_b64 exec, 0xff")
A(f"buffer_store_dword v62, v61, s[{sWS}:{sWS+3}], s16 offen sc1")
A("L_HNF:")
A("s_mov_b64 exec, -1")
REM = 112
A("s_lshl_b32 s21, s6, 7")
A("s_add_u32 s20, s20, s21")
A(f"s_add_u32 s20, s20, {136*9216}")
if not RM: A(f"buffer_load_dwordx4 v[{REM}:{REM+3}], v11, s[{sV}:{sV+3}], s20 offen nt")
else: A("v_mov_b32 v118, v11")
ST(4)
A("v_mul_u32_u24 v96, 2304, v10")
A("v_lshl_add_u32 v96, v8, 4, v96")
A("v_lshrrev_b32 v58, 2, v8")
A("v_lshlrev_b32 v58, 6, v58")
A("v_lshl_add_u32 v58, v7, 4, v58")
A("v_and_b32 v59, 3, v8")
A("v_lshl_add_u32 v58, v59, 1, v58")
A("s_lshr_b32 s18, s6, 1")
A("s_lshl_b32 s18, s18, 8")
A("s_and_b32 s19, s6, 1")
A("s_lshl_b32 s19, s19, 3")
A("s_add_u32 s18, s18, s19")
A("v_add_u32 v97, s18, v58")
A("v_mov_b32 v9, v55")
A("v_mov_b32 v15, v60")
AV = 16
def areg(t, i=0): return AV + 4*t
A("v_mul_u32_u24 v98, 9216, v90")
A("v_add_u32 v98, v98, v88")
A("s_lshl_b32 s18, s6, 10")
A(f"s_add_u32 s18, s18, {VL}")
A("v_add_u32 v98, s18, v98")
TRA, TRB = 100, 104
for i in range(4):
    A(f"v_xor_b32 v99, {i}, v89")
    A(f"v_lshl_add_u32 v{TRA+i}, v99, 5, v98")
    A(f"v_add_u32 v{TRB+i}, 73728, v{TRA+i}")
A("v_add_u32 v99, s18, v9")
A("v_lshlrev_b32 v98, 6, v3")
A("v_lshl_add_u32 v98, v7, 4, v98")
A("v_mov_b32 v34, 0"); A("v_mov_b32 v35, 0")
A(f"v_mov_b32 v117, {1 << (TB-1):#x}")
A("s_lshl_b32 s16, s4, 5")
A("s_add_u32 s14, s16, s5")
A("s_mul_i32 s14, s14, 9216")
A("s_lshl_b32 s19, s6, 10")
A("s_add_u32 s14, s14, s19")
A(f"s_add_u32 s14, s14, {YP_OFF}")
A("v_subrev_u32 v8, 128, v0")
A("v_mul_u32_u24 v10, 3641, v8")
A("v_lshrrev_b32 v10, 16, v10")
A("v_mul_u32_u24 v10, 8928, v10")
A("v_lshlrev_b32 v11, 4, v8")
A("v_add_u32 v10, v10, v11")
if OW:
    A("s_and_b32 s12, s2, 7")
    A("s_lshr_b32 s13, s2, 3")
else:
    A("s_mov_b32 s12, s4"); A("s_mov_b32 s13, s5")
A("s_mul_i32 s16, s12, 32*9216")
A("s_mul_i32 s19, s13, 288")
A("s_add_u32 s16, s16, s19")
A(f"s_add_u32 s16, s16, {YP_OFF}")
A("v_and_b32 v1, 7, v8")
A("v_mul_u32_u24 v1, 288, v1")
A("v_lshrrev_b32 v8, 3, v8")
A("v_lshl_add_u32 v1, v8, 2, v1")
A(f"v_add_u32 v1, {VL}, v1")
A("v_and_b32 v12, 3, v8")
A("v_mul_u32_u24 v12, 9216, v12")
A("v_lshrrev_b32 v8, 2, v8")
A("v_lshl_add_u32 v12, v8, 1, v12")
A("s_mul_i32 s15, s12, 1152")
A("s_mul_i32 s19, s13, 36")
A("s_add_u32 s15, s15, s19")
if os.environ.get("FAKEOUT"):
    A("v_subrev_u32 v12, 128, v0")
    A("v_lshrrev_b32 v12, 3, v12")
    A("v_lshlrev_b32 v12, 1, v12")
    A("s_mul_i32 s15, s3, 144")
BT = 48
ldspin("L_RH", R_H, 1)
H0, H1 = 48, 52
A(f"s_mov_b32 s22, {SPIN}")
A("L_HPOLL:")
A(f"buffer_load_dwordx4 v[{H0}:{H0+3}], v96, s[{sWS}:{sWS+3}], s17 offen sc1")
A(f"buffer_load_dwordx4 v[{H1}:{H1+3}], v96, s[{sWS}:{sWS+3}], s17 offen offset:128 sc1")
A("s_waitcnt vmcnt(0)")
if HI:
    for i in range(4): A(f"v_and_b32 v{56+i}, v{H0+i}, v{H1+i}")
    A("v_and_b32 v56, v56, v57")
    A("v_and_b32 v58, v58, v59")
    A("v_and_b32 v56, v56, v58")
    A("v_and_b32 v56, 1, v56")
    A("v_cmp_eq_u32 vcc, 0, v56")
else:
    check(H0, 56)
    check(H1, 57)
    A("v_or_b32 v56, v56, v57")
    A(f"v_and_b32 v56, {TM:#x}, v56")
    A("v_cmp_ne_u32 vcc, 0, v56")
A("s_and_b64 exec, vcc, vcc")
A("s_cbranch_scc0 L_HDONE")
A("s_sub_u32 s22, s22, 1")
A("s_cbranch_scc0 L_HPOLL")
A("L_HDONE:")
A("s_mov_b64 exec, -1")
if RM in (1, 3): A(f"buffer_load_dwordx4 v[{REM}:{REM+3}], v118, s[{sV}:{sV+3}], s20 offen nt")
ST(5)
for dp in ("quad_perm:[1,0,3,2]", "quad_perm:[2,3,0,1]", "row_half_mirror"):
    for i in range(8):
        A(f"v_add_f32_dpp v{H0+i}, v{H0+i}, v{H0+i} {dp} row_mask:0xf bank_mask:0xf")
sel4(H0); sel4(H1)
A(f"v_cvt_pk_bf16_f32 v{H0}, v{H0}, v{H1}")
A(f"ds_write_b16 v97, v{H0} offset:{HA}")
A(f"ds_write_b16_d16_hi v97, v{H0} offset:{HA+128}")
A("s_mov_b64 exec, 1")
A(f"ds_add_u32 v13, v15 offset:{C_A}")
A("s_mov_b64 exec, -1")
ldspin("L_CA", C_A, 9)
for t in range(4):
    a = areg(t)
    A(f"ds_read_b128 v[{a}:{a+3}], v98 offset:{HA + 256*t}")
A(f"ds_read_b64 v[32:33], v98 offset:{HA + 1024}")
Y = 108
YD = [36, 40, 44, 120]
def trreads(t, base):
    tr = TRA if t < 2 else TRB
    o = (1 + 4*(t % 2))*9216
    for i in range(4):
        A(f"ds_read_b64_tr_b16 v[{base+4*i}:{base+4*i+1}], v{tr+i} offset:{o}")
        A(f"ds_read_b64_tr_b16 v[{base+4*i+2}:{base+4*i+3}], v{tr+i} offset:{o + 2*9216}")
def mf(t, i, base, first=False):
    a = areg(t); d = YD[i]
    c = "0" if first else f"v[{d}:{d+3}]"
    A(f"v_mfma_f32_16x16x32_bf16 v[{d}:{d+3}], v[{a}:{a+3}], v[{base+4*i}:{base+4*i+3}], {c}")
def mfmas(t, base, first=False):
    for i in range(4): mf(t, i, base, first)
def kstep(t, base):
    trreads(t, base)
    for i in range(4):
        A(f"s_waitcnt lgkmcnt({6-2*i})")
        mf(t, i, base)
LG = (max(D1, D3) + 8)//9
ST(6)
if RM != 3:
    ldspin("L_EB", PROG, 9 + LG)
    trreads(0, BT)
    if RM: A("s_waitcnt vmcnt(0)")
    A(f"ds_write_b128 v99, v[{REM}:{REM+3}] offset:9216")
    trreads(1, BT+16)
    for i in range(4):
        A(f"v_mov_b32 v{BT+32+4*i+2}, 0"); A(f"v_mov_b32 v{BT+32+4*i+3}, 0")
    A("s_waitcnt lgkmcnt(9)")
    mfmas(0, BT, True)
    for i in range(4):
        A(f"ds_read_b64_tr_b16 v[{BT+32+4*i}:{BT+32+4*i+1}], v{TRA+i}")
    A("s_waitcnt lgkmcnt(4)")
    mfmas(1, BT+16)
    A("s_waitcnt lgkmcnt(0)")
    mfmas(4, BT+32)
    A(f"s_mov_b32 s22, {SPIN}")
    A("s_barrier")
    ST(7)
    kstep(2, BT)
else:
    ldspin("L_EB", PROG, 9 + LG)
    trreads(0, BT)
    trreads(1, BT+16)
    for i in range(4):
        A(f"v_mov_b32 v{BT+32+4*i+2}, 0"); A(f"v_mov_b32 v{BT+32+4*i+3}, 0")
    A("s_waitcnt lgkmcnt(8)")
    mfmas(0, BT, True)
    A("s_waitcnt lgkmcnt(0)")
    mfmas(1, BT+16)
    A(f"s_mov_b32 s22, {SPIN}")
    A("s_barrier")
    ST(7)
    trreads(2, BT)
    A("s_waitcnt vmcnt(0)")
    A(f"ds_write_b128 v99, v[{REM}:{REM+3}] offset:9216")
    for i in range(4):
        A(f"ds_read_b64_tr_b16 v[{BT+32+4*i}:{BT+32+4*i+1}], v{TRA+i}")
    A("s_waitcnt lgkmcnt(5)")
    mfmas(2, BT)
    A("s_waitcnt lgkmcnt(0)")
    mfmas(4, BT+32)
ST(8)
A("s_barrier")
ST(9)
kstep(3, BT+16)
A("s_nop 1")
for g in range(4):
    for r in range(4):
        A(f"v_add_u32_dpp v{Y+r}, v{YD[g]+r}, v117 quad_perm:[0,1,2,3] row_mask:{1 << g:#x} bank_mask:0xf")
for i in range(4): A(f"v_and_or_b32 v{Y+i}, v{Y+i}, v5, s{60+i}")
A(f"buffer_store_dwordx4 v[{Y}:{Y+3}], v9, s[{sWS}:{sWS+3}], s14 offen sc1")
ST(10)
A("s_barrier")
YG = 112
A(f"buffer_load_dwordx4 v[{YG}:{YG+3}], v10, s[{sWS}:{sWS+3}], s16 offen {YF1}")
A("L_YCHK:")
A("s_waitcnt vmcnt(0)")
check(YG, 116)
A(f"v_and_b32 v116, {TM:#x}, v116")
A("v_cmp_ne_u32 vcc, 0, v116")
A("s_cbranch_vccnz L_YRETRY")
A("L_YDONE:")
A("s_mov_b64 exec, -1")
ST(11)
A(f"ds_write_b128 v11, v[{YG}:{YG+3}] offset:{VL}")
A("s_waitcnt lgkmcnt(0)")
A("s_barrier")
A(f"ds_read2st64_b32 v[{YG}:{YG+1}], v1 offset0:0 offset1:9")
A(f"ds_read2st64_b32 v[{YG+2}:{YG+3}], v1 offset0:18 offset1:27")
A("s_waitcnt lgkmcnt(0)")
A(f"v_add_f32 v{YG}, v{YG}, v{YG+1}")
A(f"v_add_f32 v{YG+2}, v{YG+2}, v{YG+3}")
A(f"v_add_f32 v{YG}, v{YG}, v{YG+2}")
for dp in ("quad_perm:[1,0,3,2]", "quad_perm:[2,3,0,1]", "row_half_mirror"):
    A("s_nop 1")
    A(f"v_add_f32_dpp v{YG}, v{YG}, v{YG} {dp} row_mask:0xf bank_mask:0xf")
A(f"v_cvt_pk_bf16_f32 v{YG}, v{YG}, v{YG}")
A("s_mov_b32 exec_lo, 0x01010101")
A("s_mov_b32 exec_hi, 0x01010101")
A(f"buffer_store_short v{YG}, v12, s[{sOUT}:{sOUT+3}], s15 offen")
A("s_or_b32 s19, s2, s6")
A("s_cbranch_scc1 L_CEND")
A("s_mov_b64 exec, 1")
A("v_mov_b32 v14, s7")
A(f"buffer_store_dword v14, v13, s[{sWS}:{sWS+3}], 0 offen offset:{EP_OFF}")
A("L_CEND:")
if DG:
    A("s_cmp_lg_u32 s2, 100")
    A("s_cbranch_scc1 L_DGE")
    A("s_cmp_lg_u32 s6, 0")
    A("s_cbranch_scc1 L_DGE")
    A("s_mov_b64 exec, -1")
    A("s_memrealtime s[64:65]")
    A(f"buffer_load_dwordx4 v[20:23], v9, s[{sWS}:{sWS+3}], 0 offen offset:2048 sc1")
    A(f"ds_read_b128 v[24:27], v13 offset:{CNT + 64}")
    A("s_waitcnt vmcnt(0) lgkmcnt(0)")
    for r in range(20, 28): A(f"v_sub_u32 v{r}, s64, v{r}")
    A("v_max_u32 v28, v20, v21"); A("v_max3_u32 v28, v28, v22, v23")
    A("v_min_u32 v29, v20, v21"); A("v_min3_u32 v29, v29, v22, v23")
    A("s_mov_b32 s8, 0"); A("s_mov_b32 s9, -1")
    A("s_nop 1")
    for l in range(64):
        A(f"v_readlane_b32 s10, v28, {l}"); A(f"v_readlane_b32 s11, v29, {l}")
        A("s_max_u32 s8, s8, s10"); A("s_min_u32 s9, s9, s11")
    if DG == "span": A("s_mov_b32 s10, s8")
    elif DG == "skew": A("s_sub_u32 s10, s8, s9")
    elif DG == "fix":
        A("s_sub_u32 s10, 2000, s8")
    elif DG[0] in "SCL":
        A("v_readfirstlane_b32 s14, v27")
        A("s_sub_u32 s10, s8, s14")
    else: A("s_mov_b32 s10, 0")
    A("s_min_u32 s10, s10, 3000")
    if DG != "fix":
        A(f"s_mul_i32 s10, s10, {DK}")
        A("s_add_u32 s10, s10, 300")
    A("s_add_u32 s10, s10, s64")
    A("L_DGW:")
    A("s_memrealtime s[12:13]")
    A("s_waitcnt lgkmcnt(0)")
    A("s_sub_u32 s11, s12, s10")
    A("s_cmp_lt_i32 s11, 0")
    A("s_cbranch_scc1 L_DGW")
    A("L_DGE:")
if STAMPS:
    A("s_waitcnt vmcnt(0)")
    A("; STAMPDUMP 0 12")
A("s_endpgm")
A("L_YRETRY:")
A("s_sub_u32 s22, s22, 1")
A("s_cbranch_scc1 L_YDONE")
A("s_mov_b64 exec, vcc")
A("s_sleep 2")
A(f"buffer_load_dwordx4 v[{YG}:{YG+3}], v10, s[{sWS}:{sWS+3}], s16 offen " + ("sc1" if YF1 == "sc1" else "sc0 sc1"))
A("s_branch L_YCHK")
A("L_CODE_END:")

VG = 128
A('.section .rodata,"a"')
A(".p2align 6")
A(f""".amdhsa_kernel {KN}
  .amdhsa_next_free_vgpr {VG}
  .amdhsa_next_free_sgpr 102
  .amdhsa_accum_offset {(VG+3)//4*4}
  .amdhsa_group_segment_fixed_size 0
  .amdhsa_kernarg_size 72
  .amdhsa_user_sgpr_count 2
  .amdhsa_user_sgpr_kernarg_segment_ptr 1
  .amdhsa_system_sgpr_workgroup_id_x 1
  .amdhsa_float_denorm_mode_32 3
.end_amdhsa_kernel""")
dst = sys.argv[1]
if STAMPS:
    open(dst + ".pre", "w").write("\n".join(out) + "\n")
    import subprocess
    subprocess.check_call([sys.executable, "stamp.py", dst + ".pre", dst])
else:
    open(dst, "w").write("\n".join(out) + "\n")
```

```python
import sys, os
NAME = "standalone__weight_only_int_quip__decode"
KN = NAME + "_kernel"
E = lambda k, d: int(os.environ.get(k, str(d)))
D1 = E("D1", 18); D3 = E("D3", 36); TK = E("TK", 8); PH = E("PH", 8)
D2 = E("D2", 0)
HY = E("HY", 0)
PP = E("PP", 0)
PT = os.environ.get("PT", "vwoq")
RM = E("RM", 3)
OW = E("OW", 1)
HI = E("HI", 2)
DX = E("DX", 30)
GT = E("GT", 1)
GK = E("GK", 145)
GB = E("GB", 0)
BV = E("BV", 2)
PD = E("PD", 0)
WB = E("WB", 0)
DQ = E("DQ", D1)
FD = E("FD", 99)
FM = E("FM", 0)
DM = E("DM", 0); LT = E("LT", 30)
EI = E("EI", 1)
XS = E("XS", 1)
YS = E("YS", 128)
YF1 = os.environ.get("YF1", "sc1").replace("none", "").replace("+", " ")
TA = E("TA", 205); TBk = E("TBK", 32)
TB = E("TB", 8)
STAMPS = bool(os.environ.get("STAMPS"))
SPIN = 1 << 21
RND = (D1 + 8)//9
out = []
def A(s): out.append(s)
def ST(k):
    if STAMPS: A(f"; STAMP {k}")
TM = (1 << TB) - 1

XR, HA, CNT, SCL, ZL, XL, VL = 0, 768, 2048, 2304, 3328, 4352, 7168
R_U, R_Q, R_X, R_H, C_A, C_Q, C_XW, C_H, R_E, PROG, C_U, C_I, T_ADJ = [CNT + 4*i for i in range(13)]
LDS_BYTES = VL + 17*9216
QL = LDS_BYTES - 41472
UL = QL - 18432
assert LDS_BYTES == 163840 and UL >= VL + 10*9216
EP_OFF, YC_OFF, AG_OFF, FL_OFF, XP_OFF, HP_OFF, YP_OFF, WS_BYTES = 0, 1024, 4096, 8192, 65536, 196608, 1 << 20, 4 << 20
XPB = 36864
XF_OFF = 49152
if YS != 128: YC_OFF = 819200

A(f"""; Kernarg layout for this problem (72 bytes, ptrs only, base s[0:1]):
; @launch grid=(256,1,1) block=(704,1,1) lds={LDS_BYTES}
.amdgcn_target "amdgcn-amd-amdhsa--gfx950"
.text
.globl {KN}
.p2align 8
.type {KN},@function
{KN}:""")

sQW, sSC, sZ, sV, sWS, sOUT, sU, sX = 24, 28, 32, 36, 40, 44, 48, 52
def kl(r, off): A(f"s_load_dwordx2 s[{r}:{r+1}], s[0:1], {off}")
def setsrd(r, nb):
    A(f"s_mov_b32 s{r+2}, {nb}")
    A(f"s_mov_b32 s{r+3}, 0x00020000")
def load_tags(): A(f"s_load_dword s7, s[{sWS}:{sWS+1}], {EP_OFF}")
def make_tags():
    step = (1 << TB) * 31 // 100
    for i in range(4):
        A(f"s_add_u32 s{60+i}, s7, {1 + i*step}")
        A(f"s_and_b32 s{60+i}, s{60+i}, {TM:#x}")
    A("s_add_u32 s7, s7, 1")
def tag(r):
    for i in range(4): A(f"v_add_u32 v{r+i}, {1 << (TB-1):#x}, v{r+i}")
    for i in range(4): A(f"v_and_or_b32 v{r+i}, v{r+i}, v5, s{60+i}")
def check(r, t):
    for i in range(4): A(f"v_xor_b32 v{r+i}, s{60+i}, v{r+i}")
    A(f"v_or3_b32 v{t}, v{r}, v{r+1}, v{r+2}")
    A(f"v_or_b32 v{t}, v{t}, v{r+3}")
def masks():
    A("s_mov_b32 s56, 0x22222222"); A("s_mov_b32 s57, 0x22222222")
    A("s_mov_b32 s58, 0x44444444"); A("s_mov_b32 s59, 0x44444444")
    A("s_mov_b32 s64, 0x88888888"); A("s_mov_b32 s65, 0x88888888")
def sel4(h):
    A(f"v_cndmask_b32 v{h}, v{h}, v{h+1}, s[56:57]")
    A(f"v_cndmask_b32 v{h}, v{h}, v{h+2}, s[58:59]")
    A(f"v_cndmask_b32 v{h}, v{h}, v{h+3}, s[64:65]")
def ldspin(label, addr, target, tmp=14):
    A(f"s_mov_b32 s22, {SPIN*16}")
    A(f"{label}:")
    A(f"ds_read_b32 v{tmp}, v13 offset:{addr}")
    A("s_waitcnt lgkmcnt(0)")
    A(f"v_readfirstlane_b32 s23, v{tmp}")
    A(f"s_cmp_ge_u32 s23, {target}")
    A(f"s_cbranch_scc1 {label}_D")
    A("s_sleep 1")
    A("s_sub_u32 s22, s22, 1")
    A(f"s_cbranch_scc0 {label}")
    A(f"{label}_D:")
def swz():
    A("v_lshrrev_b32 v8, 3, v2")
    A("v_and_b32 v9, 6, v8")
    A("v_and_b32 v10, 7, v2")
    A("v_xor_b32 v9, v9, v10")
def vaddr():
    A("v_mul_u32_u24 v11, 9216, v8")
    A("v_lshl_add_u32 v11, v9, 4, v11")
    A("s_mul_i32 s20, s5, 144*9216")
    A("s_mul_i32 s21, s4, 1152")
    A("s_add_u32 s20, s20, s21")
def xids():
    A("s_mul_i32 s10, s2, 57")
    A("s_lshr_b32 s10, s10, 9")
    A("s_mul_i32 s11, s10, 9")
    A("s_sub_u32 s11, s2, s11")
def logid():
    A("s_lshl_b32 s3, s5, 3")
    A("s_add_u32 s3, s3, s4")
def flagline(r=3):
    A(f"s_lshl_b32 s18, s{r}, 7")
    A(f"s_add_u32 s18, s18, {FL_OFF}")
    A(f"s_add_u32 s18, s{sWS}, s18")
    A(f"s_addc_u32 s19, s{sWS+1}, 0")

A("s_cmp_ge_u32 s2, 256")
A("s_cbranch_scc1 L_END")
kl(sQW, 8)
A("s_getpc_b64 s[8:9]")
A("L_PC:")
A("v_lshlrev_b32 v14, 4, v0")
A("v_min_u32 v14, L_CODE_END-L_PC-4, v14")
A("global_load_dword v124, v14, s[8:9]")
kl(sU, 32); kl(sX, 0); kl(sWS, 64)
if GT: A("s_memrealtime s[66:67]")
A("v_readfirstlane_b32 s6, v0")
ST(0)
A("s_bfe_u32 s4, s2, 0x30003")
A("s_and_b32 s5, s2, 7")
A("s_lshl_b32 s5, s5, 2")
A("s_lshr_b32 s3, s2, 6")
A("s_add_u32 s5, s5, s3")
A("v_and_b32 v2, 63, v0")
A("v_mov_b32 v13, 0")
A("s_lshr_b32 s6, s6, 6")
A("s_cbranch_scc1 L_NOTL")
if not GT: A("s_memrealtime s[66:67]")
setsrd(sQW, 576*4608*4)
A("v_mul_u32_u24 v14, 1821, v2")
A("v_lshlrev_b32 v15, 4, v2")
A("s_movk_i32 s13, 17856")
A("s_mul_i32 s12, s4, 72*18432")
A("s_mul_i32 s14, s5, 576")
A("s_add_u32 s12, s12, s14")
A(f"s_mov_b32 m0, {QL}")
QO = 16
A(f"v_lshrrev_b32 v{QO}, 16, v14")
A(f"v_mad_u32_u24 v{QO}, v{QO}, s13, v15")
A("s_cmp_ge_u32 s2, 36")
A("s_cbranch_scc1 L_QGO")
A("s_barrier")
A("L_QGO:")
A("s_waitcnt lgkmcnt(0)")
kl(sV, 40)
for i in range(9):
    if i:
        A(f"v_add_u32 v14, {64*1821}, v14")
        if i % 4 == 0:
            A("s_add_u32 m0, m0, 4096")
            A("s_add_u32 s12, s12, 4096")
        A(f"v_lshrrev_b32 v{QO+i}, 16, v14")
        A(f"v_mad_u32_u24 v{QO+i}, v{QO+i}, s13, v15")
    A(f"buffer_load_dwordx4 v{QO+i}, s[{sQW}:{sQW+3}], s12 offen offset:{1024*(i%4)} nt lds")
A("s_mov_b32 s16, 1")
if DX:
    A("s_cmp_lt_u32 s2, 36")
    A("s_cbranch_scc1 L_QLOOPX")
if BV == 1: A("s_barrier")
A("L_QLOOP:")
for i in range(9):
    if i % 4 == 0:
        A(f"s_add_u32 m0, m0, {4096 if i else 1024}")
        A(f"s_add_u32 s12, s12, {4096 if i else 16*18432 - 8192}")
    if i == 4:
        A("s_cmp_eq_u32 s16, 4")
        A("s_cselect_b32 exec_hi, 0, -1")
    if i == 8 and BV == 2:
        A("s_cmp_lg_u32 s16, 1")
        A("s_cbranch_scc1 L_QNB")
        A("s_barrier")
        A("L_QNB:")
    A(f"s_waitcnt vmcnt({DQ-1})")
    A(f"buffer_load_dwordx4 v{QO+i}, s[{sQW}:{sQW+3}], s12 offen offset:{1024*(i%4)} nt lds")
    if i == 4: A("s_cbranch_scc1 L_QDONE")
A("s_add_u32 s16, s16, 1")
if BV == 0:
    A("s_cmp_lg_u32 s16, 2")
    A("s_cbranch_scc1 L_QLOOP")
    A("s_barrier")
A("s_branch L_QLOOP")

A("L_NOTL:")
A("s_cmp_eq_u32 s6, 1")
A("s_cbranch_scc1 L_AUX")
A("v_lshlrev_b32 v14, 2, v2")
A(f"ds_write_b32 v14, v13 offset:{CNT}")
swz()
A("s_cmp_ge_u32 s2, 36")
A("s_cbranch_scc1 L_NOU")
xids()
setsrd(sU, 576*1152)
A("v_mul_u32_u24 v12, 1152, v8")
A("v_lshl_add_u32 v12, v9, 4, v12")
A("s_mul_i32 s14, s10, 144*1152")
A("s_lshl_b32 s13, s11, 7")
A("s_add_u32 s14, s14, s13")
A("s_mul_i32 s13, s6, 16*1152")
A("s_add_u32 s14, s14, s13")
A(f"s_sub_u32 s14, s14, {32*1152}")
A("s_lshl_b32 s13, s6, 11")
A(f"s_add_u32 m0, s13, {UL - 4096}")
A(f"s_add_u32 s15, s14, {8*1152 - 1024}")
A("s_waitcnt lgkmcnt(0)")
A(f"buffer_load_dwordx4 v12, s[{sU}:{sU+3}], s14 offen nt lds")
A(f"buffer_load_dwordx4 v12, s[{sU}:{sU+3}], s15 offen offset:1024 nt lds")
A("L_NOU:")
A("s_waitcnt lgkmcnt(0)")
kl(sV, 40); kl(sOUT, 48)
load_tags()
A("s_barrier")
A("s_branch L_COMP")
A("L_AUX:")
A("v_mul_u32_u24 v27, 3641, v2")
A("v_lshrrev_b32 v27, 16, v27")
A("v_lshlrev_b32 v29, 4, v2")
A("v_lshlrev_b32 v14, 7, v2")
A("s_cmp_ge_u32 s2, 36")
A("s_cbranch_scc1 L_NOXL")
setsrd(sX, 4*1152)
A("s_mul_i32 s10, s2, 57")
A("s_lshr_b32 s10, s10, 9")
A("v_mul_u32_u24 v28, 864, v27")
A("v_add_u32 v28, v28, v29")
A("s_mul_i32 s17, s10, 288")
A(f"s_mov_b32 m0, {XL}")
A("s_add_u32 s18, s17, 3*864")
A("s_waitcnt lgkmcnt(0)")
A(f"buffer_load_dwordx4 v28, s[{sX}:{sX+3}], s17 offen lds")
A("s_mov_b64 exec, 0xff")
A(f"buffer_load_dwordx4 v29, s[{sX}:{sX+3}], s18 offen offset:1024 lds")
A("s_cmp_lg_u32 s2, 0")
A("s_cbranch_scc1 L_NOZ")
if YS == 128: A(f"global_store_dword v14, v13, s[{sWS}:{sWS+1}] offset:{YC_OFF} sc1")
else:
    A(f"v_mul_u32_u24 v14, {YS}, v2")
    A(f"v_add_u32 v14, {YC_OFF}, v14")
    A(f"global_store_dword v14, v13, s[{sWS}:{sWS+1}] sc1")
A("L_NOZ:")
A("s_mov_b64 exec, -1")
A("L_NOXL:")
kl(sSC, 16); kl(sZ, 24)
if PT: kl(sV, 40); kl(sOUT, 48)
A("s_barrier")
setsrd(sSC, 18*9216); setsrd(sZ, 18*9216); setsrd(sWS, WS_BYTES)
A("v_mul_u32_u24 v27, 8928, v27")
A("v_add_u32 v27, v27, v29")
A("s_mul_i32 s16, s4, 9")
A("s_lshr_b32 s16, s16, 2")
A("s_mul_i32 s16, s16, 9216")
A("s_mul_i32 s17, s5, 288")
A("s_add_u32 s16, s16, s17")
A(f"s_mov_b32 m0, {SCL}")
A("s_mov_b32 exec_hi, 0x3fffff")
A("s_waitcnt lgkmcnt(0)")
load_tags()
A(f"buffer_load_dwordx4 v27, s[{sSC}:{sSC+3}], s16 offen lds")
A(f"s_mov_b32 m0, {ZL}")
A("s_nop 0")
A(f"buffer_load_dwordx4 v27, s[{sZ}:{sZ+3}], s16 offen lds")
NPT = 0
if PT:
    A("s_mov_b64 exec, 3")
    if "v" in PT:
        A("s_mul_i32 s20, s5, 144*9216")
        A(f"v_mul_u32_u24 v30, {144*9216-4}, v2")
        A("v_add_u32 v30, s20, v30")
        A(f"global_load_dword v31, v30, s[{sV}:{sV+1}]"); NPT += 1
    if "w" in PT:
        A(f"v_mul_u32_u24 v30, {(4<<20)-1024}, v2")
        A(f"global_load_dword v32, v30, s[{sWS}:{sWS+1}] offset:512"); NPT += 1
    if "o" in PT:
        A(f"global_load_dword v33, v13, s[{sOUT}:{sOUT+1}]"); NPT += 1
    if "q" in PT:
        A("s_mul_i32 s20, s4, 72*18432")
        A(f"s_add_u32 s20, s20, {72*18432-4}")
        A("v_mov_b32 v30, s20")
        A(f"global_load_dword v34, v30, s[{sQW}:{sQW+1}]"); NPT += 1
A("s_mov_b64 exec, -1")
if HI == 2 and EI:
    logid()
    A("s_mul_i32 s8, s3, 2304")
    A(f"s_add_u32 s8, s8, {HP_OFF}")
    for r in range(20, 24): A(f"v_mov_b32 v{r}, 0")
    A(f"buffer_store_dwordx4 v[20:23], v29, s[{sWS}:{sWS+3}], s8 offen")
    A(f"buffer_store_dwordx4 v[20:23], v29, s[{sWS}:{sWS+3}], s8 offen offset:1024")
    A("s_mov_b64 exec, 0xffff")
    A(f"buffer_store_dwordx4 v[20:23], v29, s[{sWS}:{sWS+3}], s8 offen offset:2048")
    A("s_mov_b64 exec, -1")
    NPT += 3
A("s_branch L_SYNC")

if DX:
    A("L_QLOOPX:")
    for i in range(9):
        if i % 4 == 0:
            A(f"s_add_u32 m0, m0, {4096 if i else 1024}")
            A(f"s_add_u32 s12, s12, {4096 if i else 16*18432 - 8192}")
        if i == 4:
            A("s_cmp_eq_u32 s16, 4")
            A("s_cselect_b32 exec_hi, 0, -1")
        A(f"s_waitcnt vmcnt({DX-1})")
        A(f"buffer_load_dwordx4 v{QO+i}, s[{sQW}:{sQW+3}], s12 offen offset:{1024*(i%4)} nt lds")
        if i == 4: A("s_cbranch_scc1 L_QDONE")
    A("s_add_u32 s16, s16, 1")
    A("s_branch L_QLOOPX")
A("L_QDONE:")
A("s_mov_b32 exec_hi, -1")
ST(1)
setsrd(sV, 4608*9216); setsrd(sWS, WS_BYTES)
swz(); vaddr(); logid()
A("v_mov_b32 v26, 1")
A(f"s_add_u32 s12, s20, {128*9216}")
A(f"s_mov_b32 s15, {VL}")
A("s_mov_b32 s16, 0")
A("s_mov_b32 s14, 0")
A("s_waitcnt lgkmcnt(0)")
A(f"s_add_u32 s66, s66, {TA + GB}")
def vround(depth):
    for cg in range(9):
        A(f"s_add_u32 m0, s15, {cg*1024 - cg*128}")
        A(f"s_waitcnt vmcnt({depth-1})")
        A(f"buffer_load_dwordx4 v11, s[{sV}:{sV+3}], s12 offen offset:{cg*128} nt lds")
A("L_V1:")
vround(D1)
if HY: A("s_mov_b32 s13, 0")
A("L_VT:")
A(f"s_add_u32 s12, s12, {8*9216}")
A("s_cmp_eq_u32 s16, 0")
A("s_cselect_b32 s12, s20, s12")
A("s_add_u32 s15, s15, 9216")
A("s_memrealtime s[68:69]")
if GT: A(f"ds_read_b32 v36, v13 offset:{T_ADJ}")
if D2: A(f"ds_read_b32 v35, v13 offset:{C_A}")
A("s_add_u32 s16, s16, 1")
A("v_mov_b32 v34, s16")
A(f"ds_write_b32 v13, v34 offset:{PROG}")
A(f"s_cmp_eq_u32 s16, {RND}")
A("s_cbranch_scc0 L_VNQ")
A(f"s_waitcnt vmcnt({9*RND})")
A(f"ds_write_b32 v13, v26 offset:{R_Q}")
ST(2)
A("L_VNQ:")
A("s_cmp_eq_u32 s16, 10")
A("s_cbranch_scc0 L_VNW")
ldspin("L_WQ", C_Q, 9)
A("L_VNW:")
A("s_cmp_eq_u32 s16, 17")
A("s_cbranch_scc1 L_VEND")
A("s_waitcnt lgkmcnt(0)")
A("s_sub_u32 s67, s68, s66")
if GT:
    A("v_readfirstlane_b32 s13, v36")
    A("s_sub_u32 s67, s67, s13")
if HY: A("s_add_u32 s67, s67, s13")
A(f"s_add_u32 s66, s66, {TBk}")
if FD < 17:
    if FM:
        A(f"s_cmp_ge_u32 s16, {FD}")
        A("s_cselect_b32 s13, s14, 0")
        A("s_cmp_lg_u32 s13, 0")
    else:
        A(f"s_cmp_ge_u32 s16, {FD}")
    A("s_cselect_b32 s67, 0, s67")
A("s_cmp_lt_i32 s67, 0")
if FM: A("s_cselect_b32 s14, 0, 1")
A("s_cbranch_scc1 L_V1")
if D2:
    A("v_readfirstlane_b32 s23, v35")
    A("s_cmp_ge_u32 s23, 9")
    A("s_cbranch_scc1 L_V3")
    vround(D2)
    A("s_branch L_VT")
    A("L_V3:")
if DM:
    A(f"s_cmp_ge_i32 s67, {LT}")
    A("s_cbranch_scc1 L_V4")
    vround(DM)
    A("s_branch L_VT")
    A("L_V4:")
vround(D3)
if HY:
    A(f"s_add_u32 s13, s13, {TBk*HY//100}")
    A(f"s_min_u32 s13, s13, {(D3-D1)*TBk*HY//900}")
A("s_branch L_VT")
A("L_VEND:")
A("v_lshlrev_b32 v12, 10, v2")
A("s_lshl_b32 s16, s4, 7")
A(f"s_mul_i32 s21, s4, {YS}")
A(f"s_add_u32 s20, s{sWS}, s21")
A(f"s_addc_u32 s21, s{sWS+1}, 0")
A(f"s_add_u32 s16, s16, {FL_OFF + 64}")
flagline(2 if OW else 3)
A("s_mov_b32 s17, 1")
ST(3)
A("s_waitcnt vmcnt(36)")
ST(4)
A("s_barrier")
ST(5)
A(f"ds_read_b32 v14, v13 offset:{R_E}")
A(f"s_waitcnt vmcnt({TK})")
A(f"s_atomic_add s17, s[20:21], {YC_OFF} glc")
A("s_waitcnt vmcnt(0)")
ST(6)
A("s_barrier")
A("s_waitcnt lgkmcnt(0)")
A("v_readfirstlane_b32 s7, v14")
A("s_cmp_lg_u32 s17, 31")
A("s_cbranch_scc1 L_NOTLAST")
A("s_mov_b32 exec_hi, 0")
A(f"buffer_store_dword v14, v12, s[{sWS}:{sWS+3}], s16 offen sc1")
A("L_NOTLAST:")
if WB == 1:
    A("s_cmp_ge_u32 s2, 8")
    A("s_cbranch_scc1 L_NOWB")
    A("buffer_wbl2 sc1")
    A("L_NOWB:")
ST(7)
A(f"s_mov_b32 s22, {SPIN}")
if PP: A("s_not_b32 s23, s7")
A("L_YFL:")
A("s_load_dword s23, s[18:19], 64 glc")
if PP: A(f"s_sleep {PP}")
else: A("s_waitcnt lgkmcnt(0)")
A("s_cmp_eq_u32 s23, s7")
A("s_cbranch_scc1 L_YFLD")
A("s_sub_u32 s22, s22, 1")
A("s_cbranch_scc0 L_YFL")
A("L_YFLD:")
A("s_barrier")
if WB == 2:
    A("s_cmp_ge_u32 s2, 8")
    A("s_cbranch_scc1 L_NOWB")
    A("buffer_wbl2 sc1")
    A("L_NOWB:")
if STAMPS:
    A("; STAMPDUMP 0 8")
A("L_END:")
A("s_endpgm")

def lanes():
    A(f"v_mov_b32 v5, {0xffffffff ^ TM:#x}")
    A("v_lshrrev_b32 v3, 4, v2")
    A("v_and_b32 v4, 15, v2")
    A("v_bfe_u32 v6, v2, 2, 2")
    A("v_and_b32 v7, 3, v2")
    masks()
    logid()
A("L_SYNC:")
A("s_setprio 3")
A("v_mov_b32 v17, 1")
lanes()
flagline()
A("v_lshrrev_b32 v14, 2, v2")
A("v_mul_u32_u24 v15, 576, v7")
A("v_add_lshl_u32 v15, v15, v14, 4")
A("s_mul_i32 s17, s4, 72*16")
A(f"s_add_u32 s17, s17, {XP_OFF}")
A(f"s_add_u32 s16, s17, {XPB}")
A("v_lshl_add_u32 v16, v6, 2, v7")
A("v_mul_u32_u24 v16, 48, v16")
A("v_lshl_add_u32 v16, v3, 1, v16")
A("s_lshl_b32 s68, s5, 7")
A(f"s_add_u32 s68, s68, {AG_OFF}")
A(f"s_add_u32 s68, s{sWS}, s68")
A(f"s_addc_u32 s69, s{sWS+1}, 0")
A("s_mov_b32 s44, s66")
A("s_getreg_b32 s66, hwreg(HW_REG_XCC_ID, 0, 4)")
A("s_mov_b64 exec, 1")
A(f"s_waitcnt vmcnt({2+NPT})")
A(f"ds_add_u32 v13, v17 offset:{C_U}")
A("s_mov_b64 exec, -1")
A("s_waitcnt lgkmcnt(0)")
make_tags()
A("v_mov_b32 v18, s7")
A(f"ds_write_b32 v13, v18 offset:{R_E}")
A("s_xor_b32 s67, s7, 0x5bd1e995")
A("s_lshl_b32 s67, s67, 4")
A("s_or_b32 s66, s66, s67")
A("s_lshl_b32 s67, s4, 2")
A("s_mov_b32 s20, s7")
A("s_not_b32 s21, s7")
A("v_mov_b32 v18, 2")
A(f"s_waitcnt vmcnt({NPT})")
A(f"ds_write_b32 v13, v18 offset:{R_U}")
if HI == 1: ldspin("L_CI", C_I, 9)
if HI == 2 and not EI:
    A("s_mul_i32 s8, s3, 2304")
    A(f"s_add_u32 s8, s8, {HP_OFF}")
    A("v_lshlrev_b32 v24, 4, v2")
    for r in range(20, 24): A(f"v_mov_b32 v{r}, 0")
    A(f"buffer_store_dwordx4 v[20:23], v24, s[{sWS}:{sWS+3}], s8 offen")
    A(f"buffer_store_dwordx4 v[20:23], v24, s[{sWS}:{sWS+3}], s8 offen offset:1024")
    A("s_mov_b64 exec, 0xffff")
    A(f"buffer_store_dwordx4 v[20:23], v24, s[{sWS}:{sWS+3}], s8 offen offset:2048")
    A("s_mov_b64 exec, -1")
    A("s_waitcnt vmcnt(0)")
if HI == 2 and EI: A("s_waitcnt vmcnt(0)")
A("s_atomic_swap s66, s[68:69], s67")
ST(1)
def spoll(nm, off, pr=18):
    A(f"s_mov_b32 s22, {SPIN}")
    A(f"L_SP{nm}:")
    A(f"s_load_dwordx8 s[8:15], s[{pr}:{pr+1}], {off} glc")
    A("s_waitcnt lgkmcnt(0)")
    for i in range(8): A(f"s_xor_b32 s{8+i}, s{8+i}, s7")
    A("s_or_b64 s[8:9], s[8:9], s[10:11]")
    A("s_or_b64 s[12:13], s[12:13], s[14:15]")
    A("s_or_b64 s[8:9], s[8:9], s[12:13]")
    A(f"s_cbranch_scc0 L_SP{nm}D")
    A("s_sub_u32 s22, s22, 1")
    A(f"s_cbranch_scc0 L_SP{nm}")
    A(f"L_SP{nm}D:")
if XS:
    A("s_lshr_b32 s24, s5, 2")
    A("s_lshl_b32 s24, s24, 3")
    A("s_add_u32 s24, s24, s4")
    A("s_lshl_b32 s24, s24, 7")
    A(f"s_add_u32 s24, s24, {XF_OFF}")
    A(f"s_add_u32 s24, s{sWS}, s24")
    A(f"s_addc_u32 s25, s{sWS+1}, 0")
    if not GT: spoll("X", 0, 24)
    else:
        A("s_mov_b64 s[46:47], s[24:25]")
        A(f"s_mov_b32 s22, {SPIN}")
        A("L_SPX:")
        A("s_load_dwordx16 s[24:39], s[46:47], 0 glc")
        A("s_waitcnt lgkmcnt(0)")
        for i in range(8): A(f"s_xor_b32 s{8+i}, s{24+2*i}, s7")
        A("s_or_b64 s[8:9], s[8:9], s[10:11]")
        A("s_or_b64 s[12:13], s[12:13], s[14:15]")
        A("s_or_b64 s[8:9], s[8:9], s[12:13]")
        A("s_cbranch_scc0 L_SPXD")
        A("s_sub_u32 s22, s22, 1")
        A("s_cbranch_scc0 L_SPX")
        A("L_SPXD:")
else: spoll("X", 0)
ST(2)
G = 20
A(f"s_mov_b32 s22, {SPIN}")
A("L_XPOLL:")
for u in range(5):
    if u == 4: A("s_mov_b32 exec_hi, 0")
    A(f"buffer_load_dwordx4 v[{G+8*u}:{G+8*u+3}], v15, s[{sWS}:{sWS+3}], s17 offen offset:{256*u} sc1")
    A(f"buffer_load_dwordx4 v[{G+8*u+4}:{G+8*u+7}], v15, s[{sWS}:{sWS+3}], s16 offen offset:{256*u} sc1")
if GT:
    A(f"s_cmp_lg_u32 s22, {SPIN}")
    A("s_cbranch_scc1 L_NOADJ")
    A("s_sub_u32 s45, s25, s44")
    for i in range(1, 8):
        A(f"s_sub_u32 s23, s{25+2*i}, s44")
        A(("s_add_i32" if GT == 1 else "s_min_i32") + " s45, s45, s23")
    if GT == 1: A("s_ashr_i32 s45, s45, 3")
    A("s_max_i32 s45, s45, -300")
    A("s_min_i32 s45, s45, 300")
    if GB: A(f"s_sub_u32 s45, s45, {GB}")
    A("v_mov_b32 v18, s45")
    A(f"ds_write_b32 v13, v18 offset:{T_ADJ}")
    A("L_NOADJ:")
A(f"s_mov_b32 s23, {SPIN}")
A("L_AGP:")
A("s_load_dwordx8 s[8:15], s[68:69], 0 glc")
A("s_waitcnt lgkmcnt(0)")
for i in range(8): A(f"s_xor_b32 s{8+i}, s{8+i}, s66")
A("s_or_b64 s[8:9], s[8:9], s[10:11]")
A("s_or_b64 s[12:13], s[12:13], s[14:15]")
A("s_or_b64 s[8:9], s[8:9], s[12:13]")
A("s_or_b32 s8, s8, s9")
A("s_cmp_lt_u32 s8, 16")
A("s_cbranch_scc1 L_AGD")
A("s_sub_u32 s23, s23, 1")
A("s_cbranch_scc0 L_AGP")
A("L_AGD:")
A("s_cmp_eq_u32 s8, 0")
A("s_cselect_b32 s67, 2, 1")
A("v_mov_b32 v19, s67")
A("s_waitcnt vmcnt(0)")
for k, u in enumerate((4, 0, 1, 2, 3)):
    d = 24+4*k if k < 4 else 8
    A(f"v_cmp_ne_u64 s[{d}:{d+1}], s[20:21], v[{G+8*u}:{G+8*u+1}]")
    A(f"v_cmp_ne_u64 s[{26+4*k}:{27+4*k}], s[20:21], v[{G+8*u+6}:{G+8*u+7}]") if k < 4 else A(f"v_cmp_ne_u64 vcc, s[20:21], v[{G+8*u+6}:{G+8*u+7}]")
    if k == 0: A("s_mov_b32 exec_hi, -1")
for r in (24, 26, 28, 30, 32, 34, 36, 38): A(f"s_or_b64 vcc, vcc, s[{r}:{r+1}]")
A("s_or_b64 vcc, vcc, s[8:9]")
A("s_cbranch_scc0 L_XDONE")
A("s_sub_u32 s22, s22, 1")
A("s_cbranch_scc0 L_XPOLL")
A("L_XDONE:")
ST(3)
for qp in ("[1,0,3,2]", "[2,3,0,1]"):
    for u in range(5):
        for i in range(4):
            r = G+8*u+2+i
            A(f"v_add_f32_dpp v{r}, v{r}, v{r} quad_perm:{qp} row_mask:0xf bank_mask:0xf")
for u in range(5): sel4(G+8*u+2)
A(f"v_cvt_pk_bf16_f32 v{G}, v{G+2}, v{G+10}")
A(f"v_cvt_pk_bf16_f32 v{G+8}, v{G+18}, v{G+26}")
A(f"v_cvt_pk_bf16_f32 v{G+16}, v{G+34}, v{G+34}")
A(f"ds_write_b16 v16, v{G} offset:{XR}")
A(f"ds_write_b16_d16_hi v16, v{G} offset:{XR+8}")
A(f"ds_write_b16 v16, v{G+8} offset:{XR+16}")
A(f"ds_write_b16_d16_hi v16, v{G+8} offset:{XR+24}")
A("s_mov_b32 exec_hi, 0")
A(f"ds_write_b16 v16, v{G+16} offset:{XR+32}")
A(f"ds_write_b32 v13, v19 offset:{R_X}")
ST(4)
A("s_cmp_eq_u32 s67, 1")
A("s_cbranch_scc1 L_GLOBH")
if PD:
    A(f"ds_read_b32 v14, v13 offset:{PROG}")
    A("s_waitcnt lgkmcnt(0)")
    A("v_readfirstlane_b32 s8, v14")
    A(f"s_add_u32 s8, s8, {PD}")
    A(f"s_max_u32 s8, s8, {PH}")
    A("s_min_u32 s8, s8, 17")
    ldspin("L_PHL", PROG, "s8")
else: ldspin("L_PHL", PROG, PH)
A("s_branch L_SEND")
A("L_GLOBH:")
spoll("H", 32)
A("L_SEND:")
A(f"ds_write_b32 v13, v17 offset:{R_H}")
ST(5)
if STAMPS:
    A("s_waitcnt vmcnt(0) lgkmcnt(0)")
    A("; STAMPDUMP 0 6")
A("s_endpgm")

A("L_COMP:")
setsrd(sWS, WS_BYTES); setsrd(sV, 4608*9216); setsrd(sOUT, 4*9216)
lanes()
vaddr()
A("s_sub_u32 s6, s6, 2")
A("v_and_b32 v89, 1, v3")
A("v_lshl_add_u32 v89, v89, 2, v6")
A("v_lshlrev_b32 v88, 7, v89")
A("v_lshl_add_u32 v88, v7, 3, v88")
A("v_lshrrev_b32 v89, 1, v89")
A("v_lshrrev_b32 v90, 1, v3")
A("v_mov_b32 v60, 1")
A("v_lshlrev_b32 v55, 4, v2")
SZ = 64
if GT: A("v_mov_b32 v59, s66")
A("s_mul_i32 s66, s3, 2304")
A("s_lshl_b32 s19, s6, 8")
A("s_add_u32 s66, s66, s19")
A(f"s_add_u32 s66, s66, {HP_OFF}")
if HI == 1:
    for r in range(48, 52): A(f"v_mov_b32 v{r}, 0")
    A("s_mov_b64 exec, 0xffff")
    A(f"buffer_store_dwordx4 v[48:51], v55, s[{sWS}:{sWS+3}], s66 offen")
    A("s_mov_b64 exec, -1")
ST(1)
A("s_cmp_ge_u32 s2, 36")
A("s_cbranch_scc1 L_NOX")
A("s_cmp_lt_u32 s6, 4")
A("s_cbranch_scc1 L_XJOB")
A("s_mov_b64 exec, 1")
A(f"s_waitcnt vmcnt({1 if HI == 1 else 0})")
A(f"ds_add_u32 v13, v60 offset:{C_U}")
A("s_mov_b64 exec, -1")
A("s_branch L_NOX")
A("L_XJOB:")
A("s_setprio 2")
XA = 16
XB = 100
A("v_mul_u32_u24 v15, 288, v7")
A("v_lshl_add_u32 v15, v3, 3, v15")
A(f"v_add_u32 v15, {XL}, v15")
A(f"v_mov_b32 v{XA+18}, 0"); A(f"v_mov_b32 v{XA+19}, 0")
A("v_xor_b32 v56, s6, v89")
A("v_lshl_add_u32 v56, v56, 5, v88")
A("v_lshl_add_u32 v56, v90, 10, v56")
A(f"v_add_u32 v56, {UL}, v56")
A(f"v_mov_b32 v{XB+18}, 0"); A(f"v_mov_b32 v{XB+19}, 0")
A("s_mul_i32 s17, s10, 576*16")
A("s_lshl_b32 s18, s11, 10")
A("s_add_u32 s17, s17, s18")
A("s_lshl_b32 s18, s6, 8")
A("s_add_u32 s17, s17, s18")
A(f"s_add_u32 s17, s17, {XP_OFF}")
A(f"v_and_b32 v57, {7 if XS else 31}, v2")
A("v_lshlrev_b32 v57, 10, v57")
A("v_lshrrev_b32 v58, 5, v2")
A(f"v_mul_u32_u24 v58, {120 if GT else 124}, v58")
A("v_sub_u32 v57, v57, v58")
A("v_add_u32 v57, 128, v57")
A("s_lshl_b32 s18, s11, 7")
A(f"s_lshl_b32 s19, s10, {4 if GT else 3}")
A("s_add_u32 s18, s18, s19")
A(f"s_add_u32 s18, s18, {(XF_OFF if XS else FL_OFF) - 128}")
A("s_cmp_eq_u32 s11, 8")
A("s_cselect_b32 s8, 0, " + ("0xff" if XS else "-1"))
A("s_cmp_eq_u32 s11, 0")
A("s_cselect_b32 s9, 0, " + ("0xff" if XS else "-1"))
A("s_waitcnt lgkmcnt(0)")
make_tags()
A("v_mov_b32 v58, s7")
A("v_mov_b32 v38, s7"); A("v_not_b32 v39, s7"); A("v_mov_b32 v44, s7"); A("v_not_b32 v45, s7")
A(f"s_add_u32 s16, s17, {XPB}")
A("s_mov_b64 exec, 1")
A(f"s_waitcnt vmcnt({1 if HI == 1 else 0})")
A(f"ds_add_u32 v13, v60 offset:{C_U}")
A("s_mov_b64 exec, -1")
ldspin("L_RU", C_U, 10)
if GK:
    A("s_memrealtime s[12:13]")
    A("s_waitcnt lgkmcnt(0)")
    A(f"s_sub_u32 s12, s12, {GK}")
    A("v_mov_b32 v59, s12")
for t in range(5):
    if t < 4: A(f"ds_read2_b64 v[{XA+4*t}:{XA+4*t+3}], v15 offset0:{8*t} offset1:{8*t+4}")
    else: A(f"ds_read_b64 v[{XA+4*t}:{XA+4*t+1}], v15 offset:{64*t}")
    A(f"ds_read_b64_tr_b16 v[{XB+4*t}:{XB+4*t+1}], v56 offset:{4*t*1024}")
    if t < 4: A(f"ds_read_b64_tr_b16 v[{XB+4*t+2}:{XB+4*t+3}], v56 offset:{(4*t+2)*1024}")
for t in range(5):
    A(f"s_waitcnt lgkmcnt({max(0, 11-3*t)})")
    c = "0" if t == 0 else "v[40:43]"
    A(f"v_mfma_f32_16x16x32_bf16 v[40:43], v[{XA+4*t}:{XA+4*t+3}], v[{XB+4*t}:{XB+4*t+3}], {c}")
A("s_mov_b64 exec, 0xffff")
A("s_nop 6")
A(f"buffer_store_dwordx4 v[38:41], v55, s[{sWS}:{sWS+3}], s17 offen sc1")
A(f"buffer_store_dwordx4 v[42:45], v55, s[{sWS}:{sWS+3}], s16 offen sc1")
A("s_mov_b64 exec, 1")
A(f"ds_add_rtn_u32 v14, v13, v60 offset:{C_XW}")
A("s_waitcnt lgkmcnt(0)")
A("v_readfirstlane_b32 s23, v14")
A("s_cmp_lg_u32 s23, 3")
A("s_cbranch_scc1 L_XNF")
A("s_mov_b64 exec, s[8:9]")
A(f"buffer_store_dwordx2 v[58:59], v57, s[{sWS}:{sWS+3}], s18 offen sc1" if GT else f"buffer_store_dword v58, v57, s[{sWS}:{sWS+3}], s18 offen sc1")
if HI == 1:
    A("s_waitcnt vmcnt(3)")
    A("s_branch L_XEND")
A("L_XNF:")
if HI == 1: A("s_waitcnt vmcnt(2)")
A("s_branch L_XEND")
A("L_NOX:")
A("s_waitcnt lgkmcnt(0)")
make_tags()
if HI == 1: A("s_waitcnt vmcnt(0)")
A("L_XEND:")
A("s_setprio 0")
if HI == 1:
    A("s_mov_b64 exec, 1")
    A(f"ds_add_u32 v13, v60 offset:{C_I}")
A("s_mov_b64 exec, -1")
ST(2)
A("v_mul_u32_u24 v15, 576, v3")
A("v_lshl_add_u32 v15, v4, 2, v15")
A("s_lshl_b32 s12, s6, 6")
A(f"s_add_u32 s12, s12, {QL}")
A("v_add_u32 v15, s12, v15")
A("v_lshl_add_u32 v56, v3, 2, v7")
A("v_mul_u32_u24 v56, 48, v56")
A("s_and_b32 s12, s4, 3")
for k in (1, 2, 3):
    A(f"s_cmp_ge_u32 s12, {k}")
    A(f"s_cselect_b64 s[{12+2*k}:{13+2*k}], -1, 0")
A("v_lshlrev_b32 v57, 1, v4")
A("s_lshl_b32 s12, s6, 5")
A("v_add_u32 v57, s12, v57")
ldspin("L_RU2", R_U, 2)
for g in range(3):
    A(f"ds_read_u16 v{SZ+g}, v57 offset:{SCL + 288*g}")
    A(f"ds_read_u16 v{SZ+3+g}, v57 offset:{ZL + 288*g}")
A("s_waitcnt lgkmcnt(0)")
for g in range(6): A(f"v_lshlrev_b32 v{SZ+g}, 16, v{SZ+g}")
SP, ZP = 70, 79
def pairsz(p):
    base = p >> 2
    r = p & 3
    if r == 0: return SZ+base, SZ+3+base
    return SP+p, ZP+p
for p in range(9):
    base, r = p >> 2, p & 3
    if r:
        k = 4 - r
        A(f"v_cndmask_b32 v{SP+p}, v{SZ+base}, v{SZ+base+1}, s[{12+2*k}:{13+2*k}]")
        A(f"v_cndmask_b32 v{ZP+p}, v{SZ+3+base}, v{SZ+3+base+1}, s[{12+2*k}:{13+2*k}]")
QW = 16
B = 36
AX = 100
for r in (B+9, B+10, B+11, AX+9, AX+10, AX+11): A(f"v_mov_b32 v{r}, 0")
A("s_lshl_b32 s19, s6, 8")
A("s_mov_b32 s18, s66")
A("s_mul_i32 s17, s5, 8*2304")
A("s_add_u32 s17, s17, s19")
A(f"s_add_u32 s17, s17, {HP_OFF}")
A("v_lshlrev_b32 v61, 7, v2")
A("v_mov_b32 v62, s7")
A("s_lshl_b32 s16, s5, 10")
A("s_lshl_b32 s19, s4, 2")
A("s_add_u32 s16, s16, s19")
A(f"s_add_u32 s16, s16, {FL_OFF + 32}")
ldspin("L_RQ", R_Q, 1)
ST(3)
for p in range(9):
    A(f"ds_read2st64_b32 v[{QW+2*p}:{QW+2*p+1}], v15 offset0:{18*p} offset1:{18*p+9}")
for p in range(9):
    A(f"s_waitcnt lgkmcnt({8-p})")
    if p == 8:
        A("s_mov_b64 exec, 1")
        A(f"ds_add_u32 v13, v60 offset:{C_Q}")
        A("s_mov_b64 exec, -1")
    r0, r1 = QW+2*p, QW+2*p+1
    sr, zr = pairsz(p)
    A(f"v_cvt_f32_i32 v{r0}, v{r0}")
    A(f"v_cvt_f32_i32 v{r1}, v{r1}")
    A(f"v_sub_f32 v{r0}, v{r0}, v{zr}")
    A(f"v_sub_f32 v{r1}, v{r1}, v{zr}")
    A(f"v_cvt_pk_bf16_f32 v{r1}, v{r0}, v{r1}")
    A(f"v_lshlrev_b32 v{r0}, 16, v{r1}")
    A(f"v_and_b32 v{r1}, 0xffff0000, v{r1}")
    A(f"v_mul_f32 v{r0}, v{r0}, v{sr}")
    A(f"v_mul_f32 v{r1}, v{r1}, v{sr}")
    A(f"v_cvt_pk_bf16_f32 v{B+p}, v{r0}, v{r1}")
if RM == 2:
    A("s_lshl_b32 s21, s6, 7")
    A("s_add_u32 s21, s20, s21")
    A(f"s_add_u32 s21, s21, {136*9216}")
    ldspin("L_RX", R_X, 1)
    A(f"buffer_load_dwordx4 v[112:115], v11, s[{sV}:{sV+3}], s21 offen nt")
else:
    ldspin("L_RX", R_X, 1)
A(f"ds_read_b128 v[{AX}:{AX+3}], v56 offset:{XR}")
A(f"ds_read_b128 v[{AX+4}:{AX+7}], v56 offset:{XR+16}")
A(f"ds_read_b32 v{AX+8}, v56 offset:{XR+32}")
for t in range(3):
    A(f"s_waitcnt lgkmcnt({2-t})")
    c = "0" if t == 0 else "v[48:51]"
    A(f"v_mfma_f32_16x16x32_bf16 v[48:51], v[{AX+4*t}:{AX+4*t+3}], v[{B+4*t}:{B+4*t+3}], {c}")
A("s_mov_b64 exec, 0xffff")
A("s_cmp_eq_u32 s23, 2")
A("s_nop 5")
if HI:
    for i in range(4): A(f"v_or_b32 v{48+i}, 1, v{48+i}")
else: tag(48)
A("s_cbranch_scc0 L_HGL")
A(f"buffer_store_dwordx4 v[48:51], v55, s[{sWS}:{sWS+3}], s18 offen")
A("s_branch L_HNF")
A("L_HGL:")
A(f"buffer_store_dwordx4 v[48:51], v55, s[{sWS}:{sWS+3}], s18 offen sc1")
A("s_mov_b64 exec, 1")
A("s_waitcnt vmcnt(0)")
A(f"ds_add_rtn_u32 v14, v13, v60 offset:{C_H}")
A("s_waitcnt lgkmcnt(0)")
A("v_readfirstlane_b32 s23, v14")
A("s_cmp_lg_u32 s23, 8")
A("s_cbranch_scc1 L_HNF")
A("s_mov_b64 exec, 0xff")
A(f"buffer_store_dword v62, v61, s[{sWS}:{sWS+3}], s16 offen sc1")
A("L_HNF:")
A("s_mov_b64 exec, -1")
REM = 112
A("s_lshl_b32 s21, s6, 7")
A("s_add_u32 s20, s20, s21")
A(f"s_add_u32 s20, s20, {136*9216}")
if not RM: A(f"buffer_load_dwordx4 v[{REM}:{REM+3}], v11, s[{sV}:{sV+3}], s20 offen nt")
else: A("v_mov_b32 v118, v11")
ST(4)
A("v_mul_u32_u24 v96, 2304, v10")
A("v_lshl_add_u32 v96, v8, 4, v96")
A("v_lshrrev_b32 v58, 2, v8")
A("v_lshlrev_b32 v58, 6, v58")
A("v_lshl_add_u32 v58, v7, 4, v58")
A("v_and_b32 v59, 3, v8")
A("v_lshl_add_u32 v58, v59, 1, v58")
A("s_lshr_b32 s18, s6, 1")
A("s_lshl_b32 s18, s18, 8")
A("s_and_b32 s19, s6, 1")
A("s_lshl_b32 s19, s19, 3")
A("s_add_u32 s18, s18, s19")
A("v_add_u32 v97, s18, v58")
A("v_mov_b32 v9, v55")
A("v_mov_b32 v15, v60")
AV = 16
def areg(t, i=0): return AV + 4*t
A("v_mul_u32_u24 v98, 9216, v90")
A("v_add_u32 v98, v98, v88")
A("s_lshl_b32 s18, s6, 10")
A(f"s_add_u32 s18, s18, {VL}")
A("v_add_u32 v98, s18, v98")
TRA, TRB = 100, 104
for i in range(4):
    A(f"v_xor_b32 v99, {i}, v89")
    A(f"v_lshl_add_u32 v{TRA+i}, v99, 5, v98")
    A(f"v_add_u32 v{TRB+i}, 73728, v{TRA+i}")
A("v_add_u32 v99, s18, v9")
A("v_lshlrev_b32 v98, 6, v3")
A("v_lshl_add_u32 v98, v7, 4, v98")
A("v_mov_b32 v34, 0"); A("v_mov_b32 v35, 0")
A(f"v_mov_b32 v117, {1 << (TB-1):#x}")
A("s_lshl_b32 s16, s4, 5")
A("s_add_u32 s14, s16, s5")
A("s_mul_i32 s14, s14, 9216")
A("s_lshl_b32 s19, s6, 10")
A("s_add_u32 s14, s14, s19")
A(f"s_add_u32 s14, s14, {YP_OFF}")
A("v_subrev_u32 v8, 128, v0")
A("v_mul_u32_u24 v10, 3641, v8")
A("v_lshrrev_b32 v10, 16, v10")
A("v_mul_u32_u24 v10, 8928, v10")
A("v_lshlrev_b32 v11, 4, v8")
A("v_add_u32 v10, v10, v11")
if OW:
    A("s_and_b32 s12, s2, 7")
    A("s_lshr_b32 s13, s2, 3")
else:
    A("s_mov_b32 s12, s4"); A("s_mov_b32 s13, s5")
A("s_mul_i32 s16, s12, 32*9216")
A("s_mul_i32 s19, s13, 288")
A("s_add_u32 s16, s16, s19")
A(f"s_add_u32 s16, s16, {YP_OFF}")
A("v_and_b32 v1, 7, v8")
A("v_mul_u32_u24 v1, 288, v1")
A("v_lshrrev_b32 v8, 3, v8")
A("v_lshl_add_u32 v1, v8, 2, v1")
A(f"v_add_u32 v1, {VL}, v1")
A("v_and_b32 v12, 3, v8")
A("v_mul_u32_u24 v12, 9216, v12")
A("v_lshrrev_b32 v8, 2, v8")
A("v_lshl_add_u32 v12, v8, 1, v12")
A("s_mul_i32 s15, s12, 1152")
A("s_mul_i32 s19, s13, 36")
A("s_add_u32 s15, s15, s19")
if os.environ.get("FAKEOUT"):
    A("v_subrev_u32 v12, 128, v0")
    A("v_lshrrev_b32 v12, 3, v12")
    A("v_lshlrev_b32 v12, 1, v12")
    A("s_mul_i32 s15, s3, 144")
BT = 48
ldspin("L_RH", R_H, 1)
H0, H1 = 48, 52
A(f"s_mov_b32 s22, {SPIN}")
A("L_HPOLL:")
A(f"buffer_load_dwordx4 v[{H0}:{H0+3}], v96, s[{sWS}:{sWS+3}], s17 offen sc1")
A(f"buffer_load_dwordx4 v[{H1}:{H1+3}], v96, s[{sWS}:{sWS+3}], s17 offen offset:128 sc1")
A("s_waitcnt vmcnt(0)")
if HI:
    for i in range(4): A(f"v_and_b32 v{56+i}, v{H0+i}, v{H1+i}")
    A("v_and_b32 v56, v56, v57")
    A("v_and_b32 v58, v58, v59")
    A("v_and_b32 v56, v56, v58")
    A("v_and_b32 v56, 1, v56")
    A("v_cmp_eq_u32 vcc, 0, v56")
else:
    check(H0, 56)
    check(H1, 57)
    A("v_or_b32 v56, v56, v57")
    A(f"v_and_b32 v56, {TM:#x}, v56")
    A("v_cmp_ne_u32 vcc, 0, v56")
A("s_and_b64 exec, vcc, vcc")
A("s_cbranch_scc0 L_HDONE")
A("s_sub_u32 s22, s22, 1")
A("s_cbranch_scc0 L_HPOLL")
A("L_HDONE:")
A("s_mov_b64 exec, -1")
if RM in (1, 3): A(f"buffer_load_dwordx4 v[{REM}:{REM+3}], v118, s[{sV}:{sV+3}], s20 offen nt")
ST(5)
for dp in ("quad_perm:[1,0,3,2]", "quad_perm:[2,3,0,1]", "row_half_mirror"):
    for i in range(8):
        A(f"v_add_f32_dpp v{H0+i}, v{H0+i}, v{H0+i} {dp} row_mask:0xf bank_mask:0xf")
sel4(H0); sel4(H1)
A(f"v_cvt_pk_bf16_f32 v{H0}, v{H0}, v{H1}")
A(f"ds_write_b16 v97, v{H0} offset:{HA}")
A(f"ds_write_b16_d16_hi v97, v{H0} offset:{HA+128}")
A("s_mov_b64 exec, 1")
A(f"ds_add_u32 v13, v15 offset:{C_A}")
A("s_mov_b64 exec, -1")
ldspin("L_CA", C_A, 9)
for t in range(4):
    a = areg(t)
    A(f"ds_read_b128 v[{a}:{a+3}], v98 offset:{HA + 256*t}")
A(f"ds_read_b64 v[32:33], v98 offset:{HA + 1024}")
Y = 108
YD = [36, 40, 44, 120]
def trreads(t, base):
    tr = TRA if t < 2 else TRB
    o = (1 + 4*(t % 2))*9216
    for i in range(4):
        A(f"ds_read_b64_tr_b16 v[{base+4*i}:{base+4*i+1}], v{tr+i} offset:{o}")
        A(f"ds_read_b64_tr_b16 v[{base+4*i+2}:{base+4*i+3}], v{tr+i} offset:{o + 2*9216}")
def mf(t, i, base, first=False):
    a = areg(t); d = YD[i]
    c = "0" if first else f"v[{d}:{d+3}]"
    A(f"v_mfma_f32_16x16x32_bf16 v[{d}:{d+3}], v[{a}:{a+3}], v[{base+4*i}:{base+4*i+3}], {c}")
def mfmas(t, base, first=False):
    for i in range(4): mf(t, i, base, first)
def kstep(t, base):
    trreads(t, base)
    for i in range(4):
        A(f"s_waitcnt lgkmcnt({6-2*i})")
        mf(t, i, base)
LG = (max(D1, D3) + 8)//9
ST(6)
if RM != 3:
    ldspin("L_EB", PROG, 9 + LG)
    trreads(0, BT)
    if RM: A("s_waitcnt vmcnt(0)")
    A(f"ds_write_b128 v99, v[{REM}:{REM+3}] offset:9216")
    trreads(1, BT+16)
    for i in range(4):
        A(f"v_mov_b32 v{BT+32+4*i+2}, 0"); A(f"v_mov_b32 v{BT+32+4*i+3}, 0")
    A("s_waitcnt lgkmcnt(9)")
    mfmas(0, BT, True)
    for i in range(4):
        A(f"ds_read_b64_tr_b16 v[{BT+32+4*i}:{BT+32+4*i+1}], v{TRA+i}")
    A("s_waitcnt lgkmcnt(4)")
    mfmas(1, BT+16)
    A("s_waitcnt lgkmcnt(0)")
    mfmas(4, BT+32)
    A(f"s_mov_b32 s22, {SPIN}")
    A("s_barrier")
    ST(7)
    kstep(2, BT)
else:
    ldspin("L_EB", PROG, 9 + LG)
    trreads(0, BT)
    trreads(1, BT+16)
    for i in range(4):
        A(f"v_mov_b32 v{BT+32+4*i+2}, 0"); A(f"v_mov_b32 v{BT+32+4*i+3}, 0")
    A("s_waitcnt lgkmcnt(8)")
    mfmas(0, BT, True)
    A("s_waitcnt lgkmcnt(0)")
    mfmas(1, BT+16)
    A(f"s_mov_b32 s22, {SPIN}")
    A("s_barrier")
    ST(7)
    trreads(2, BT)
    A("s_waitcnt vmcnt(0)")
    A(f"ds_write_b128 v99, v[{REM}:{REM+3}] offset:9216")
    for i in range(4):
        A(f"ds_read_b64_tr_b16 v[{BT+32+4*i}:{BT+32+4*i+1}], v{TRA+i}")
    A("s_waitcnt lgkmcnt(5)")
    mfmas(2, BT)
    A("s_waitcnt lgkmcnt(0)")
    mfmas(4, BT+32)
ST(8)
A("s_barrier")
ST(9)
kstep(3, BT+16)
A("s_nop 1")
for g in range(4):
    for r in range(4):
        A(f"v_add_u32_dpp v{Y+r}, v{YD[g]+r}, v117 quad_perm:[0,1,2,3] row_mask:{1 << g:#x} bank_mask:0xf")
for i in range(4): A(f"v_and_or_b32 v{Y+i}, v{Y+i}, v5, s{60+i}")
A(f"buffer_store_dwordx4 v[{Y}:{Y+3}], v9, s[{sWS}:{sWS+3}], s14 offen sc1")
ST(10)
A("s_barrier")
YG = 112
A(f"buffer_load_dwordx4 v[{YG}:{YG+3}], v10, s[{sWS}:{sWS+3}], s16 offen {YF1}")
A("L_YCHK:")
A("s_waitcnt vmcnt(0)")
check(YG, 116)
A(f"v_and_b32 v116, {TM:#x}, v116")
A("v_cmp_ne_u32 vcc, 0, v116")
A("s_cbranch_vccnz L_YRETRY")
A("L_YDONE:")
A("s_mov_b64 exec, -1")
ST(11)
A(f"ds_write_b128 v11, v[{YG}:{YG+3}] offset:{VL}")
A("s_waitcnt lgkmcnt(0)")
A("s_barrier")
A(f"ds_read2st64_b32 v[{YG}:{YG+1}], v1 offset0:0 offset1:9")
A(f"ds_read2st64_b32 v[{YG+2}:{YG+3}], v1 offset0:18 offset1:27")
A("s_waitcnt lgkmcnt(0)")
A(f"v_add_f32 v{YG}, v{YG}, v{YG+1}")
A(f"v_add_f32 v{YG+2}, v{YG+2}, v{YG+3}")
A(f"v_add_f32 v{YG}, v{YG}, v{YG+2}")
for dp in ("quad_perm:[1,0,3,2]", "quad_perm:[2,3,0,1]", "row_half_mirror"):
    A("s_nop 1")
    A(f"v_add_f32_dpp v{YG}, v{YG}, v{YG} {dp} row_mask:0xf bank_mask:0xf")
A(f"v_cvt_pk_bf16_f32 v{YG}, v{YG}, v{YG}")
A("s_mov_b32 exec_lo, 0x01010101")
A("s_mov_b32 exec_hi, 0x01010101")
A(f"buffer_store_short v{YG}, v12, s[{sOUT}:{sOUT+3}], s15 offen")
A("s_or_b32 s19, s2, s6")
A("s_cbranch_scc1 L_CEND")
A("s_mov_b64 exec, 1")
A("v_mov_b32 v14, s7")
A(f"buffer_store_dword v14, v13, s[{sWS}:{sWS+3}], 0 offen offset:{EP_OFF}")
A("L_CEND:")
if STAMPS:
    A("s_waitcnt vmcnt(0)")
    A("; STAMPDUMP 0 12")
A("s_endpgm")
A("L_YRETRY:")
A("s_sub_u32 s22, s22, 1")
A("s_cbranch_scc1 L_YDONE")
A("s_mov_b64 exec, vcc")
A("s_sleep 2")
A(f"buffer_load_dwordx4 v[{YG}:{YG+3}], v10, s[{sWS}:{sWS+3}], s16 offen " + ("sc1" if YF1 == "sc1" else "sc0 sc1"))
A("s_branch L_YCHK")
A("L_CODE_END:")

VG = 128
A('.section .rodata,"a"')
A(".p2align 6")
A(f""".amdhsa_kernel {KN}
  .amdhsa_next_free_vgpr {VG}
  .amdhsa_next_free_sgpr 70
  .amdhsa_accum_offset {(VG+3)//4*4}
  .amdhsa_group_segment_fixed_size 0
  .amdhsa_kernarg_size 72
  .amdhsa_user_sgpr_count 2
  .amdhsa_user_sgpr_kernarg_segment_ptr 1
  .amdhsa_system_sgpr_workgroup_id_x 1
  .amdhsa_float_denorm_mode_32 3
.end_amdhsa_kernel""")
dst = sys.argv[1]
if STAMPS:
    open(dst + ".pre", "w").write("\n".join(out) + "\n")
    import subprocess
    subprocess.check_call([sys.executable, "stamp.py", dst + ".pre", dst])
else:
    open(dst, "w").write("\n".join(out) + "\n")
```

```python
import sys, os
NAME = "standalone__weight_only_int_quip__decode"
KN = NAME + "_kernel"
E = lambda k, d: int(os.environ.get(k, str(d)))
D1 = E("D1", 18); D3 = E("D3", 36); TK = E("TK", 18); PH = E("PH", 8)
D2 = E("D2", 0)
HY = E("HY", 0)
PP = E("PP", 0)
PT = os.environ.get("PT", "vwoq")
RM = E("RM", 3)
OW = E("OW", 1)
HI = E("HI", 2)
DX = E("DX", 30)
GT = E("GT", 1)
GK = E("GK", 145)
GB = E("GB", 0)
YSL = E("YSL", 2)
LT2 = E("LT2", 31)
FK = E("FK", 0)
BV = E("BV", 2)
PD = E("PD", 0)
WB = E("WB", 0)
DQ = E("DQ", D1)
FD = E("FD", 99)
FM = E("FM", 0)
DM = E("DM", 0); LT = E("LT", 30)
EI = E("EI", 1)
XS = E("XS", 1)
YS = E("YS", 128)
YF1 = os.environ.get("YF1", "sc1").replace("none", "").replace("+", " ")
TA = E("TA", 205); TBk = E("TBK", 32)
TB = E("TB", 8)
STAMPS = bool(os.environ.get("STAMPS"))
SPIN = 1 << 21
RND = (D1 + 8)//9
out = []
def A(s): out.append(s)
def ST(k):
    if STAMPS: A(f"; STAMP {k}")
TM = (1 << TB) - 1

XR, HA, CNT, SCL, ZL, XL, VL = 0, 768, 2048, 2304, 3328, 4352, 7168
R_U, R_Q, R_X, R_H, C_A, C_Q, C_XW, C_H, R_E, PROG, C_U, C_I, T_ADJ = [CNT + 4*i for i in range(13)]
LDS_BYTES = VL + 17*9216
QL = LDS_BYTES - 41472
UL = QL - 18432
assert LDS_BYTES == 163840 and UL >= VL + 10*9216
EP_OFF, YC_OFF, AG_OFF, FL_OFF, XP_OFF, HP_OFF, YP_OFF, WS_BYTES = 0, 1024, 4096, 8192, 65536, 196608, 1 << 20, 4 << 20
XPB = 36864
XF_OFF = 49152
if YS != 128: YC_OFF = 819200

A(f"""; Kernarg layout for this problem (72 bytes, ptrs only, base s[0:1]):
; @launch grid=(256,1,1) block=(704,1,1) lds={LDS_BYTES}
.amdgcn_target "amdgcn-amd-amdhsa--gfx950"
.text
.globl {KN}
.p2align 8
.type {KN},@function
{KN}:""")

sQW, sSC, sZ, sV, sWS, sOUT, sU, sX = 24, 28, 32, 36, 40, 44, 48, 52
def kl(r, off): A(f"s_load_dwordx2 s[{r}:{r+1}], s[0:1], {off}")
def setsrd(r, nb):
    A(f"s_mov_b32 s{r+2}, {nb}")
    A(f"s_mov_b32 s{r+3}, 0x00020000")
def load_tags(): A(f"s_load_dword s7, s[{sWS}:{sWS+1}], {EP_OFF}")
def make_tags():
    step = (1 << TB) * 31 // 100
    for i in range(4):
        A(f"s_add_u32 s{60+i}, s7, {1 + i*step}")
        A(f"s_and_b32 s{60+i}, s{60+i}, {TM:#x}")
    A("s_mul_i32 s7, s7, 0x9E3779B1")
    A("s_add_u32 s7, s7, 0x7F4A7C15")
def tag(r):
    for i in range(4): A(f"v_add_u32 v{r+i}, {1 << (TB-1):#x}, v{r+i}")
    for i in range(4): A(f"v_and_or_b32 v{r+i}, v{r+i}, v5, s{60+i}")
def check(r, t):
    for i in range(4): A(f"v_xor_b32 v{r+i}, s{60+i}, v{r+i}")
    A(f"v_or3_b32 v{t}, v{r}, v{r+1}, v{r+2}")
    A(f"v_or_b32 v{t}, v{t}, v{r+3}")
def masks():
    A("s_mov_b32 s56, 0x22222222"); A("s_mov_b32 s57, 0x22222222")
    A("s_mov_b32 s58, 0x44444444"); A("s_mov_b32 s59, 0x44444444")
    A("s_mov_b32 s64, 0x88888888"); A("s_mov_b32 s65, 0x88888888")
def sel4(h):
    A(f"v_cndmask_b32 v{h}, v{h}, v{h+1}, s[56:57]")
    A(f"v_cndmask_b32 v{h}, v{h}, v{h+2}, s[58:59]")
    A(f"v_cndmask_b32 v{h}, v{h}, v{h+3}, s[64:65]")
def ldspin(label, addr, target, tmp=14):
    A(f"s_mov_b32 s22, {SPIN*16}")
    A(f"{label}:")
    A(f"ds_read_b32 v{tmp}, v13 offset:{addr}")
    A("s_waitcnt lgkmcnt(0)")
    A(f"v_readfirstlane_b32 s23, v{tmp}")
    A(f"s_cmp_ge_u32 s23, {target}")
    A(f"s_cbranch_scc1 {label}_D")
    A("s_sleep 1")
    A("s_sub_u32 s22, s22, 1")
    A(f"s_cbranch_scc0 {label}")
    A(f"{label}_D:")
def swz():
    A("v_lshrrev_b32 v8, 3, v2")
    A("v_and_b32 v9, 6, v8")
    A("v_and_b32 v10, 7, v2")
    A("v_xor_b32 v9, v9, v10")
def vaddr():
    A("v_mul_u32_u24 v11, 9216, v8")
    A("v_lshl_add_u32 v11, v9, 4, v11")
    A("s_mul_i32 s20, s5, 144*9216")
    A("s_mul_i32 s21, s4, 1152")
    A("s_add_u32 s20, s20, s21")
def xids():
    A("s_mul_i32 s10, s2, 57")
    A("s_lshr_b32 s10, s10, 9")
    A("s_mul_i32 s11, s10, 9")
    A("s_sub_u32 s11, s2, s11")
def logid():
    A("s_lshl_b32 s3, s5, 3")
    A("s_add_u32 s3, s3, s4")
def flagline(r=3):
    A(f"s_lshl_b32 s18, s{r}, 7")
    A(f"s_add_u32 s18, s18, {FL_OFF}")
    A(f"s_add_u32 s18, s{sWS}, s18")
    A(f"s_addc_u32 s19, s{sWS+1}, 0")

A("s_cmp_ge_u32 s2, 256")
A("s_cbranch_scc1 L_END")
kl(sQW, 8)
A("s_getpc_b64 s[8:9]")
A("L_PC:")
A("v_lshlrev_b32 v14, 4, v0")
A("v_min_u32 v14, L_CODE_END-L_PC-4, v14")
A("global_load_dword v124, v14, s[8:9]")
kl(sU, 32); kl(sX, 0); kl(sWS, 64)
if GT: A("s_memrealtime s[66:67]")
A("v_readfirstlane_b32 s6, v0")
ST(0)
A("s_bfe_u32 s4, s2, 0x30003")
A("s_and_b32 s5, s2, 7")
A("s_lshl_b32 s5, s5, 2")
A("s_lshr_b32 s3, s2, 6")
A("s_add_u32 s5, s5, s3")
A("v_and_b32 v2, 63, v0")
A("v_mov_b32 v13, 0")
A("s_lshr_b32 s6, s6, 6")
A("s_cbranch_scc1 L_NOTL")
if not GT: A("s_memrealtime s[66:67]")
setsrd(sQW, 576*4608*4)
A("v_mul_u32_u24 v14, 1821, v2")
A("v_lshlrev_b32 v15, 4, v2")
A("s_movk_i32 s13, 17856")
A("s_mul_i32 s12, s4, 72*18432")
A("s_mul_i32 s14, s5, 576")
A("s_add_u32 s12, s12, s14")
A(f"s_mov_b32 m0, {QL}")
QO = 16
A(f"v_lshrrev_b32 v{QO}, 16, v14")
A(f"v_mad_u32_u24 v{QO}, v{QO}, s13, v15")
A("s_cmp_ge_u32 s2, 36")
A("s_cbranch_scc1 L_QGO")
A("s_barrier")
A("L_QGO:")
A("s_waitcnt lgkmcnt(0)")
kl(sV, 40)
for i in range(9):
    if i:
        A(f"v_add_u32 v14, {64*1821}, v14")
        if i % 4 == 0:
            A("s_add_u32 m0, m0, 4096")
            A("s_add_u32 s12, s12, 4096")
        A(f"v_lshrrev_b32 v{QO+i}, 16, v14")
        A(f"v_mad_u32_u24 v{QO+i}, v{QO+i}, s13, v15")
    A(f"buffer_load_dwordx4 v{QO+i}, s[{sQW}:{sQW+3}], s12 offen offset:{1024*(i%4)} nt lds")
A("s_mov_b32 s16, 1")
if DX:
    A("s_cmp_lt_u32 s2, 36")
    A("s_cbranch_scc1 L_QLOOPX")
if BV == 1: A("s_barrier")
A("L_QLOOP:")
for i in range(9):
    if i % 4 == 0:
        A(f"s_add_u32 m0, m0, {4096 if i else 1024}")
        A(f"s_add_u32 s12, s12, {4096 if i else 16*18432 - 8192}")
    if i == 4:
        A("s_cmp_eq_u32 s16, 4")
        A("s_cselect_b32 exec_hi, 0, -1")
    if i == 8 and BV == 2:
        A("s_cmp_lg_u32 s16, 1")
        A("s_cbranch_scc1 L_QNB")
        A("s_barrier")
        A("L_QNB:")
    A(f"s_waitcnt vmcnt({DQ-1})")
    A(f"buffer_load_dwordx4 v{QO+i}, s[{sQW}:{sQW+3}], s12 offen offset:{1024*(i%4)} nt lds")
    if i == 4: A("s_cbranch_scc1 L_QDONE")
A("s_add_u32 s16, s16, 1")
if BV == 0:
    A("s_cmp_lg_u32 s16, 2")
    A("s_cbranch_scc1 L_QLOOP")
    A("s_barrier")
A("s_branch L_QLOOP")

A("L_NOTL:")
A("s_cmp_eq_u32 s6, 1")
A("s_cbranch_scc1 L_AUX")
A("v_lshlrev_b32 v14, 2, v2")
A(f"ds_write_b32 v14, v13 offset:{CNT}")
swz()
A("s_cmp_ge_u32 s2, 36")
A("s_cbranch_scc1 L_NOU")
xids()
setsrd(sU, 576*1152)
A("v_mul_u32_u24 v12, 1152, v8")
A("v_lshl_add_u32 v12, v9, 4, v12")
A("s_mul_i32 s14, s10, 144*1152")
A("s_lshl_b32 s13, s11, 7")
A("s_add_u32 s14, s14, s13")
A("s_mul_i32 s13, s6, 16*1152")
A("s_add_u32 s14, s14, s13")
A(f"s_sub_u32 s14, s14, {32*1152}")
A("s_lshl_b32 s13, s6, 11")
A(f"s_add_u32 m0, s13, {UL - 4096}")
A(f"s_add_u32 s15, s14, {8*1152 - 1024}")
A("s_waitcnt lgkmcnt(0)")
A(f"buffer_load_dwordx4 v12, s[{sU}:{sU+3}], s14 offen nt lds")
A(f"buffer_load_dwordx4 v12, s[{sU}:{sU+3}], s15 offen offset:1024 nt lds")
A("L_NOU:")
A("s_waitcnt lgkmcnt(0)")
kl(sV, 40); kl(sOUT, 48)
load_tags()
A("s_barrier")
A("s_branch L_COMP")
A("L_AUX:")
A("v_mul_u32_u24 v27, 3641, v2")
A("v_lshrrev_b32 v27, 16, v27")
A("v_lshlrev_b32 v29, 4, v2")
A("v_lshlrev_b32 v14, 7, v2")
A("s_cmp_ge_u32 s2, 36")
A("s_cbranch_scc1 L_NOXL")
setsrd(sX, 4*1152)
A("s_mul_i32 s10, s2, 57")
A("s_lshr_b32 s10, s10, 9")
A("v_mul_u32_u24 v28, 864, v27")
A("v_add_u32 v28, v28, v29")
A("s_mul_i32 s17, s10, 288")
A(f"s_mov_b32 m0, {XL}")
A("s_add_u32 s18, s17, 3*864")
A("s_waitcnt lgkmcnt(0)")
A(f"buffer_load_dwordx4 v28, s[{sX}:{sX+3}], s17 offen lds")
A("s_mov_b64 exec, 0xff")
A(f"buffer_load_dwordx4 v29, s[{sX}:{sX+3}], s18 offen offset:1024 lds")
A("s_cmp_lg_u32 s2, 0")
A("s_cbranch_scc1 L_NOZ")
if YS == 128: A(f"global_store_dword v14, v13, s[{sWS}:{sWS+1}] offset:{YC_OFF} sc1")
else:
    A(f"v_mul_u32_u24 v14, {YS}, v2")
    A(f"v_add_u32 v14, {YC_OFF}, v14")
    A(f"global_store_dword v14, v13, s[{sWS}:{sWS+1}] sc1")
A("L_NOZ:")
A("s_mov_b64 exec, -1")
A("L_NOXL:")
kl(sSC, 16); kl(sZ, 24)
if PT: kl(sV, 40); kl(sOUT, 48)
A("s_barrier")
setsrd(sSC, 18*9216); setsrd(sZ, 18*9216); setsrd(sWS, WS_BYTES)
A("v_mul_u32_u24 v27, 8928, v27")
A("v_add_u32 v27, v27, v29")
A("s_mul_i32 s16, s4, 9")
A("s_lshr_b32 s16, s16, 2")
A("s_mul_i32 s16, s16, 9216")
A("s_mul_i32 s17, s5, 288")
A("s_add_u32 s16, s16, s17")
A(f"s_mov_b32 m0, {SCL}")
A("s_mov_b32 exec_hi, 0x3fffff")
A("s_waitcnt lgkmcnt(0)")
load_tags()
A(f"buffer_load_dwordx4 v27, s[{sSC}:{sSC+3}], s16 offen lds")
A(f"s_mov_b32 m0, {ZL}")
A("s_nop 0")
A(f"buffer_load_dwordx4 v27, s[{sZ}:{sZ+3}], s16 offen lds")
NPT = 0
if PT:
    A("s_mov_b64 exec, 3")
    if "v" in PT:
        A("s_mul_i32 s20, s5, 144*9216")
        A(f"v_mul_u32_u24 v30, {144*9216-4}, v2")
        A("v_add_u32 v30, s20, v30")
        A(f"global_load_dword v31, v30, s[{sV}:{sV+1}]"); NPT += 1
    if "w" in PT:
        A(f"v_mul_u32_u24 v30, {(4<<20)-1024}, v2")
        A(f"global_load_dword v32, v30, s[{sWS}:{sWS+1}] offset:512"); NPT += 1
    if "o" in PT:
        A(f"global_load_dword v33, v13, s[{sOUT}:{sOUT+1}]"); NPT += 1
    if "q" in PT:
        A("s_mul_i32 s20, s4, 72*18432")
        A(f"s_add_u32 s20, s20, {72*18432-4}")
        A("v_mov_b32 v30, s20")
        A(f"global_load_dword v34, v30, s[{sQW}:{sQW+1}]"); NPT += 1
A("s_mov_b64 exec, -1")
if HI == 2 and EI:
    logid()
    A("s_mul_i32 s8, s3, 2304")
    A(f"s_add_u32 s8, s8, {HP_OFF}")
    for r in range(20, 24): A(f"v_mov_b32 v{r}, 0")
    A(f"buffer_store_dwordx4 v[20:23], v29, s[{sWS}:{sWS+3}], s8 offen")
    A(f"buffer_store_dwordx4 v[20:23], v29, s[{sWS}:{sWS+3}], s8 offen offset:1024")
    A("s_mov_b64 exec, 0xffff")
    A(f"buffer_store_dwordx4 v[20:23], v29, s[{sWS}:{sWS+3}], s8 offen offset:2048")
    A("s_mov_b64 exec, -1")
    NPT += 3
A("s_branch L_SYNC")

if DX:
    A("L_QLOOPX:")
    for i in range(9):
        if i % 4 == 0:
            A(f"s_add_u32 m0, m0, {4096 if i else 1024}")
            A(f"s_add_u32 s12, s12, {4096 if i else 16*18432 - 8192}")
        if i == 4:
            A("s_cmp_eq_u32 s16, 4")
            A("s_cselect_b32 exec_hi, 0, -1")
        A(f"s_waitcnt vmcnt({DX-1})")
        A(f"buffer_load_dwordx4 v{QO+i}, s[{sQW}:{sQW+3}], s12 offen offset:{1024*(i%4)} nt lds")
        if i == 4: A("s_cbranch_scc1 L_QDONE")
    A("s_add_u32 s16, s16, 1")
    A("s_branch L_QLOOPX")
A("L_QDONE:")
A("s_mov_b32 exec_hi, -1")
ST(1)
setsrd(sV, 4608*9216); setsrd(sWS, WS_BYTES)
swz(); vaddr(); logid()
A("v_mov_b32 v26, 1")
A(f"s_add_u32 s12, s20, {128*9216}")
A(f"s_mov_b32 s15, {VL}")
A("s_mov_b32 s16, 0")
A("s_mov_b32 s14, 0")
A("s_waitcnt lgkmcnt(0)")
A(f"s_add_u32 s66, s66, {TA + GB}")
def vround(depth):
    for cg in range(9):
        A(f"s_add_u32 m0, s15, {cg*1024 - cg*128}")
        A(f"s_waitcnt vmcnt({depth-1})")
        A(f"buffer_load_dwordx4 v11, s[{sV}:{sV+3}], s12 offen offset:{cg*128} nt lds")
A("L_V1:")
vround(D1)
if HY: A("s_mov_b32 s13, 0")
A("L_VT:")
A(f"s_add_u32 s12, s12, {8*9216}")
A("s_cmp_eq_u32 s16, 0")
A("s_cselect_b32 s12, s20, s12")
A("s_add_u32 s15, s15, 9216")
A("s_memrealtime s[68:69]")
if GT: A(f"ds_read_b32 v36, v13 offset:{T_ADJ}")
if D2: A(f"ds_read_b32 v35, v13 offset:{C_A}")
A("s_add_u32 s16, s16, 1")
A("v_mov_b32 v34, s16")
A(f"ds_write_b32 v13, v34 offset:{PROG}")
A(f"s_cmp_eq_u32 s16, {RND}")
A("s_cbranch_scc0 L_VNQ")
A(f"s_waitcnt vmcnt({9*RND})")
A(f"ds_write_b32 v13, v26 offset:{R_Q}")
ST(2)
A("L_VNQ:")
A("s_cmp_eq_u32 s16, 10")
A("s_cbranch_scc0 L_VNW")
ldspin("L_WQ", C_Q, 9)
A("L_VNW:")
A("s_cmp_eq_u32 s16, 17")
A("s_cbranch_scc1 L_VEND")
A("s_waitcnt lgkmcnt(0)")
A("s_sub_u32 s67, s68, s66")
if GT:
    A("v_readfirstlane_b32 s13, v36")
    A("s_sub_u32 s67, s67, s13")
if HY: A("s_add_u32 s67, s67, s13")
A(f"s_add_u32 s66, s66, {TBk}")
if FD < 17:
    if FM:
        A(f"s_cmp_ge_u32 s16, {FD}")
        A("s_cselect_b32 s13, s14, 0")
        A("s_cmp_lg_u32 s13, 0")
    else:
        A(f"s_cmp_ge_u32 s16, {FD}")
    A("s_cselect_b32 s67, 0, s67")
A("s_cmp_lt_i32 s67, 0")
if FM: A("s_cselect_b32 s14, 0, 1")
A("s_cbranch_scc1 L_V1")
if D2:
    A("v_readfirstlane_b32 s23, v35")
    A("s_cmp_ge_u32 s23, 9")
    A("s_cbranch_scc1 L_V3")
    vround(D2)
    A("s_branch L_VT")
    A("L_V3:")
if DM:
    A(f"s_cmp_ge_i32 s67, {LT}")
    A("s_cbranch_scc1 L_V4")
    vround(DM)
    A("s_branch L_VT")
    A("L_V4:")
vround(D3)
if HY:
    A(f"s_add_u32 s13, s13, {TBk*HY//100}")
    A(f"s_min_u32 s13, s13, {(D3-D1)*TBk*HY//900}")
A("s_branch L_VT")
A("L_VEND:")
A("v_lshlrev_b32 v12, 10, v2")
A("s_lshl_b32 s16, s4, 7")
A(f"s_mul_i32 s21, s4, {YS}")
A(f"s_add_u32 s20, s{sWS}, s21")
A(f"s_addc_u32 s21, s{sWS+1}, 0")
A(f"s_add_u32 s16, s16, {FL_OFF + 64}")
flagline(2 if OW else 3)
A("s_mov_b32 s17, 1")
ST(3)
A("s_waitcnt vmcnt(36)")
ST(4)
A("s_barrier")
ST(5)
A(f"ds_read_b32 v14, v13 offset:{R_E}")
A(f"s_waitcnt vmcnt({TK})")
if FK < 0:
    A(f"s_atomic_add s17, s[20:21], {YC_OFF} glc")
    A("s_waitcnt vmcnt(0)")
    ST(6)
    A("s_barrier")
    A("s_waitcnt lgkmcnt(0)")
    A("v_readfirstlane_b32 s7, v14")
    A(f"s_cmp_lg_u32 s17, {LT2}")
    A("s_cbranch_scc1 L_NOTLAST")
    A("s_mov_b32 exec_hi, 0")
    A(f"buffer_store_dword v14, v12, s[{sWS}:{sWS+3}], s16 offen sc1")
else:
    A(f"s_atomic_add s17, s[20:21], {YC_OFF} glc")
    A(f"s_waitcnt vmcnt({FK}) lgkmcnt(0)")
    A("v_readfirstlane_b32 s7, v14")
    A(f"s_cmp_lg_u32 s17, {LT2}")
    A("s_cbranch_scc1 L_NL0")
    A("s_mov_b32 exec_hi, 0")
    A(f"buffer_store_dword v14, v12, s[{sWS}:{sWS+3}], s16 offen sc1")
    A("s_waitcnt vmcnt(1)")
    A("s_branch L_NL1")
    A("L_NL0:")
    A("s_waitcnt vmcnt(0)")
    A("L_NL1:")
    ST(6)
    A("s_barrier")
A("L_NOTLAST:")
if WB == 1:
    A("s_cmp_ge_u32 s2, 8")
    A("s_cbranch_scc1 L_NOWB")
    A("buffer_wbl2 sc1")
    A("L_NOWB:")
ST(7)
A(f"s_mov_b32 s22, {SPIN}")
if PP: A("s_not_b32 s23, s7")
A("L_YFL:")
A("s_load_dword s23, s[18:19], 64 glc")
if PP: A(f"s_sleep {PP}")
else: A("s_waitcnt lgkmcnt(0)")
A("s_cmp_eq_u32 s23, s7")
A("s_cbranch_scc1 L_YFLD")
A("s_sub_u32 s22, s22, 1")
A("s_cbranch_scc0 L_YFL")
A("L_YFLD:")
A("s_barrier")
if WB == 2:
    A("s_cmp_ge_u32 s2, 8")
    A("s_cbranch_scc1 L_NOWB")
    A("buffer_wbl2 sc1")
    A("L_NOWB:")
if STAMPS:
    A("; STAMPDUMP 0 8")
A("L_END:")
A("s_endpgm")

def lanes():
    A(f"v_mov_b32 v5, {0xffffffff ^ TM:#x}")
    A("v_lshrrev_b32 v3, 4, v2")
    A("v_and_b32 v4, 15, v2")
    A("v_bfe_u32 v6, v2, 2, 2")
    A("v_and_b32 v7, 3, v2")
    masks()
    logid()
A("L_SYNC:")
A("s_setprio 3")
A("v_mov_b32 v17, 1")
lanes()
flagline()
A("v_lshrrev_b32 v14, 2, v2")
A("v_mul_u32_u24 v15, 576, v7")
A("v_add_lshl_u32 v15, v15, v14, 4")
A("s_mul_i32 s17, s4, 72*16")
A(f"s_add_u32 s17, s17, {XP_OFF}")
A(f"s_add_u32 s16, s17, {XPB}")
A("v_lshl_add_u32 v16, v6, 2, v7")
A("v_mul_u32_u24 v16, 48, v16")
A("v_lshl_add_u32 v16, v3, 1, v16")
A("s_lshl_b32 s68, s5, 7")
A(f"s_add_u32 s68, s68, {AG_OFF}")
A(f"s_add_u32 s68, s{sWS}, s68")
A(f"s_addc_u32 s69, s{sWS+1}, 0")
A("s_mov_b32 s44, s66")
A("s_getreg_b32 s66, hwreg(HW_REG_XCC_ID, 0, 4)")
A("s_mov_b64 exec, 1")
A(f"s_waitcnt vmcnt({2+NPT})")
A(f"ds_add_u32 v13, v17 offset:{C_U}")
A("s_mov_b64 exec, -1")
A("s_waitcnt lgkmcnt(0)")
make_tags()
A("v_mov_b32 v18, s7")
A(f"ds_write_b32 v13, v18 offset:{R_E}")
A("s_xor_b32 s67, s7, 0x5bd1e995")
A("s_lshl_b32 s67, s67, 4")
A("s_or_b32 s66, s66, s67")
A("s_lshl_b32 s67, s4, 2")
A("s_mov_b32 s20, s7")
A("s_not_b32 s21, s7")
A("v_mov_b32 v18, 2")
A(f"s_waitcnt vmcnt({NPT})")
A(f"ds_write_b32 v13, v18 offset:{R_U}")
if HI == 1: ldspin("L_CI", C_I, 9)
if HI == 2 and not EI:
    A("s_mul_i32 s8, s3, 2304")
    A(f"s_add_u32 s8, s8, {HP_OFF}")
    A("v_lshlrev_b32 v24, 4, v2")
    for r in range(20, 24): A(f"v_mov_b32 v{r}, 0")
    A(f"buffer_store_dwordx4 v[20:23], v24, s[{sWS}:{sWS+3}], s8 offen")
    A(f"buffer_store_dwordx4 v[20:23], v24, s[{sWS}:{sWS+3}], s8 offen offset:1024")
    A("s_mov_b64 exec, 0xffff")
    A(f"buffer_store_dwordx4 v[20:23], v24, s[{sWS}:{sWS+3}], s8 offen offset:2048")
    A("s_mov_b64 exec, -1")
    A("s_waitcnt vmcnt(0)")
if HI == 2 and EI: A("s_waitcnt vmcnt(0)")
A("s_atomic_swap s66, s[68:69], s67")
ST(1)
def spoll(nm, off, pr=18):
    A(f"s_mov_b32 s22, {SPIN}")
    A(f"L_SP{nm}:")
    A(f"s_load_dwordx8 s[8:15], s[{pr}:{pr+1}], {off} glc")
    A("s_waitcnt lgkmcnt(0)")
    for i in range(8): A(f"s_xor_b32 s{8+i}, s{8+i}, s7")
    A("s_or_b64 s[8:9], s[8:9], s[10:11]")
    A("s_or_b64 s[12:13], s[12:13], s[14:15]")
    A("s_or_b64 s[8:9], s[8:9], s[12:13]")
    A(f"s_cbranch_scc0 L_SP{nm}D")
    A("s_sub_u32 s22, s22, 1")
    A(f"s_cbranch_scc0 L_SP{nm}")
    A(f"L_SP{nm}D:")
if XS:
    A("s_lshr_b32 s24, s5, 2")
    A("s_lshl_b32 s24, s24, 3")
    A("s_add_u32 s24, s24, s4")
    A("s_lshl_b32 s24, s24, 7")
    A(f"s_add_u32 s24, s24, {XF_OFF}")
    A(f"s_add_u32 s24, s{sWS}, s24")
    A(f"s_addc_u32 s25, s{sWS+1}, 0")
    if not GT: spoll("X", 0, 24)
    else:
        A("s_mov_b64 s[46:47], s[24:25]")
        A(f"s_mov_b32 s22, {SPIN}")
        A("L_SPX:")
        A("s_load_dwordx16 s[24:39], s[46:47], 0 glc")
        A("s_waitcnt lgkmcnt(0)")
        for i in range(8): A(f"s_xor_b32 s{8+i}, s{24+2*i}, s7")
        A("s_or_b64 s[8:9], s[8:9], s[10:11]")
        A("s_or_b64 s[12:13], s[12:13], s[14:15]")
        A("s_or_b64 s[8:9], s[8:9], s[12:13]")
        A("s_cbranch_scc0 L_SPXD")
        A("s_sub_u32 s22, s22, 1")
        A("s_cbranch_scc0 L_SPX")
        A("L_SPXD:")
else: spoll("X", 0)
ST(2)
G = 20
A(f"s_mov_b32 s22, {SPIN}")
A("L_XPOLL:")
for u in range(5):
    if u == 4: A("s_mov_b32 exec_hi, 0")
    A(f"buffer_load_dwordx4 v[{G+8*u}:{G+8*u+3}], v15, s[{sWS}:{sWS+3}], s17 offen offset:{256*u} sc1")
    A(f"buffer_load_dwordx4 v[{G+8*u+4}:{G+8*u+7}], v15, s[{sWS}:{sWS+3}], s16 offen offset:{256*u} sc1")
if GT:
    A(f"s_cmp_lg_u32 s22, {SPIN}")
    A("s_cbranch_scc1 L_NOADJ")
    A("s_sub_u32 s45, s25, s44")
    for i in range(1, 8):
        A(f"s_sub_u32 s23, s{25+2*i}, s44")
        A(("s_add_i32" if GT == 1 else "s_min_i32") + " s45, s45, s23")
    if GT == 1: A("s_ashr_i32 s45, s45, 3")
    A("s_max_i32 s45, s45, -300")
    A("s_min_i32 s45, s45, 300")
    if GB: A(f"s_sub_u32 s45, s45, {GB}")
    A("v_mov_b32 v18, s45")
    A(f"ds_write_b32 v13, v18 offset:{T_ADJ}")
    A("L_NOADJ:")
A(f"s_mov_b32 s23, {SPIN}")
A("L_AGP:")
A("s_load_dwordx8 s[8:15], s[68:69], 0 glc")
A("s_waitcnt lgkmcnt(0)")
for i in range(8): A(f"s_xor_b32 s{8+i}, s{8+i}, s66")
A("s_or_b64 s[8:9], s[8:9], s[10:11]")
A("s_or_b64 s[12:13], s[12:13], s[14:15]")
A("s_or_b64 s[8:9], s[8:9], s[12:13]")
A("s_or_b32 s8, s8, s9")
A("s_cmp_lt_u32 s8, 16")
A("s_cbranch_scc1 L_AGD")
A("s_sub_u32 s23, s23, 1")
A("s_cbranch_scc0 L_AGP")
A("L_AGD:")
A("s_cmp_eq_u32 s8, 0")
A("s_cselect_b32 s67, 2, 1")
A("v_mov_b32 v19, s67")
A("s_waitcnt vmcnt(0)")
for k, u in enumerate((4, 0, 1, 2, 3)):
    d = 24+4*k if k < 4 else 8
    A(f"v_cmp_ne_u64 s[{d}:{d+1}], s[20:21], v[{G+8*u}:{G+8*u+1}]")
    A(f"v_cmp_ne_u64 s[{26+4*k}:{27+4*k}], s[20:21], v[{G+8*u+6}:{G+8*u+7}]") if k < 4 else A(f"v_cmp_ne_u64 vcc, s[20:21], v[{G+8*u+6}:{G+8*u+7}]")
    if k == 0: A("s_mov_b32 exec_hi, -1")
for r in (24, 26, 28, 30, 32, 34, 36, 38): A(f"s_or_b64 vcc, vcc, s[{r}:{r+1}]")
A("s_or_b64 vcc, vcc, s[8:9]")
A("s_cbranch_scc0 L_XDONE")
A("s_sub_u32 s22, s22, 1")
A("s_cbranch_scc0 L_XPOLL")
A("L_XDONE:")
ST(3)
for qp in ("[1,0,3,2]", "[2,3,0,1]"):
    for u in range(5):
        for i in range(4):
            r = G+8*u+2+i
            A(f"v_add_f32_dpp v{r}, v{r}, v{r} quad_perm:{qp} row_mask:0xf bank_mask:0xf")
for u in range(5): sel4(G+8*u+2)
A(f"v_cvt_pk_bf16_f32 v{G}, v{G+2}, v{G+10}")
A(f"v_cvt_pk_bf16_f32 v{G+8}, v{G+18}, v{G+26}")
A(f"v_cvt_pk_bf16_f32 v{G+16}, v{G+34}, v{G+34}")
A(f"ds_write_b16 v16, v{G} offset:{XR}")
A(f"ds_write_b16_d16_hi v16, v{G} offset:{XR+8}")
A(f"ds_write_b16 v16, v{G+8} offset:{XR+16}")
A(f"ds_write_b16_d16_hi v16, v{G+8} offset:{XR+24}")
A("s_mov_b32 exec_hi, 0")
A(f"ds_write_b16 v16, v{G+16} offset:{XR+32}")
A(f"ds_write_b32 v13, v19 offset:{R_X}")
ST(4)
A("s_cmp_eq_u32 s67, 1")
A("s_cbranch_scc1 L_GLOBH")
if PD:
    A(f"ds_read_b32 v14, v13 offset:{PROG}")
    A("s_waitcnt lgkmcnt(0)")
    A("v_readfirstlane_b32 s8, v14")
    A(f"s_add_u32 s8, s8, {PD}")
    A(f"s_max_u32 s8, s8, {PH}")
    A("s_min_u32 s8, s8, 17")
    ldspin("L_PHL", PROG, "s8")
else: ldspin("L_PHL", PROG, PH)
A("s_branch L_SEND")
A("L_GLOBH:")
spoll("H", 32)
A("L_SEND:")
A(f"ds_write_b32 v13, v17 offset:{R_H}")
ST(5)
if STAMPS:
    A("s_waitcnt vmcnt(0) lgkmcnt(0)")
    A("; STAMPDUMP 0 6")
A("s_endpgm")

A("L_COMP:")
setsrd(sWS, WS_BYTES); setsrd(sV, 4608*9216); setsrd(sOUT, 4*9216)
lanes()
vaddr()
A("s_sub_u32 s6, s6, 2")
A("v_and_b32 v89, 1, v3")
A("v_lshl_add_u32 v89, v89, 2, v6")
A("v_lshlrev_b32 v88, 7, v89")
A("v_lshl_add_u32 v88, v7, 3, v88")
A("v_lshrrev_b32 v89, 1, v89")
A("v_lshrrev_b32 v90, 1, v3")
A("v_mov_b32 v60, 1")
A("v_lshlrev_b32 v55, 4, v2")
SZ = 64
if GT: A("v_mov_b32 v59, s66")
A("s_mul_i32 s66, s3, 2304")
A("s_lshl_b32 s19, s6, 8")
A("s_add_u32 s66, s66, s19")
A(f"s_add_u32 s66, s66, {HP_OFF}")
if HI == 1:
    for r in range(48, 52): A(f"v_mov_b32 v{r}, 0")
    A("s_mov_b64 exec, 0xffff")
    A(f"buffer_store_dwordx4 v[48:51], v55, s[{sWS}:{sWS+3}], s66 offen")
    A("s_mov_b64 exec, -1")
ST(1)
A("s_cmp_ge_u32 s2, 36")
A("s_cbranch_scc1 L_NOX")
A("s_cmp_lt_u32 s6, 4")
A("s_cbranch_scc1 L_XJOB")
A("s_mov_b64 exec, 1")
A(f"s_waitcnt vmcnt({1 if HI == 1 else 0})")
A(f"ds_add_u32 v13, v60 offset:{C_U}")
A("s_mov_b64 exec, -1")
A("s_branch L_NOX")
A("L_XJOB:")
A("s_setprio 2")
XA = 16
XB = 100
A("v_mul_u32_u24 v15, 288, v7")
A("v_lshl_add_u32 v15, v3, 3, v15")
A(f"v_add_u32 v15, {XL}, v15")
A(f"v_mov_b32 v{XA+18}, 0"); A(f"v_mov_b32 v{XA+19}, 0")
A("v_xor_b32 v56, s6, v89")
A("v_lshl_add_u32 v56, v56, 5, v88")
A("v_lshl_add_u32 v56, v90, 10, v56")
A(f"v_add_u32 v56, {UL}, v56")
A(f"v_mov_b32 v{XB+18}, 0"); A(f"v_mov_b32 v{XB+19}, 0")
A("s_mul_i32 s17, s10, 576*16")
A("s_lshl_b32 s18, s11, 10")
A("s_add_u32 s17, s17, s18")
A("s_lshl_b32 s18, s6, 8")
A("s_add_u32 s17, s17, s18")
A(f"s_add_u32 s17, s17, {XP_OFF}")
A(f"v_and_b32 v57, {7 if XS else 31}, v2")
A("v_lshlrev_b32 v57, 10, v57")
A("v_lshrrev_b32 v58, 5, v2")
A(f"v_mul_u32_u24 v58, {120 if GT else 124}, v58")
A("v_sub_u32 v57, v57, v58")
A("v_add_u32 v57, 128, v57")
A("s_lshl_b32 s18, s11, 7")
A(f"s_lshl_b32 s19, s10, {4 if GT else 3}")
A("s_add_u32 s18, s18, s19")
A(f"s_add_u32 s18, s18, {(XF_OFF if XS else FL_OFF) - 128}")
A("s_cmp_eq_u32 s11, 8")
A("s_cselect_b32 s8, 0, " + ("0xff" if XS else "-1"))
A("s_cmp_eq_u32 s11, 0")
A("s_cselect_b32 s9, 0, " + ("0xff" if XS else "-1"))
A("s_waitcnt lgkmcnt(0)")
make_tags()
A("v_mov_b32 v58, s7")
A("v_mov_b32 v38, s7"); A("v_not_b32 v39, s7"); A("v_mov_b32 v44, s7"); A("v_not_b32 v45, s7")
A(f"s_add_u32 s16, s17, {XPB}")
A("s_mov_b64 exec, 1")
A(f"s_waitcnt vmcnt({1 if HI == 1 else 0})")
A(f"ds_add_u32 v13, v60 offset:{C_U}")
A("s_mov_b64 exec, -1")
ldspin("L_RU", C_U, 10)
if GK:
    A("s_memrealtime s[12:13]")
    A("s_waitcnt lgkmcnt(0)")
    A(f"s_sub_u32 s12, s12, {GK}")
    A("v_mov_b32 v59, s12")
for t in range(5):
    if t < 4: A(f"ds_read2_b64 v[{XA+4*t}:{XA+4*t+3}], v15 offset0:{8*t} offset1:{8*t+4}")
    else: A(f"ds_read_b64 v[{XA+4*t}:{XA+4*t+1}], v15 offset:{64*t}")
    A(f"ds_read_b64_tr_b16 v[{XB+4*t}:{XB+4*t+1}], v56 offset:{4*t*1024}")
    if t < 4: A(f"ds_read_b64_tr_b16 v[{XB+4*t+2}:{XB+4*t+3}], v56 offset:{(4*t+2)*1024}")
for t in range(5):
    A(f"s_waitcnt lgkmcnt({max(0, 11-3*t)})")
    c = "0" if t == 0 else "v[40:43]"
    A(f"v_mfma_f32_16x16x32_bf16 v[40:43], v[{XA+4*t}:{XA+4*t+3}], v[{XB+4*t}:{XB+4*t+3}], {c}")
A("s_mov_b64 exec, 0xffff")
A("s_nop 6")
A(f"buffer_store_dwordx4 v[38:41], v55, s[{sWS}:{sWS+3}], s17 offen sc1")
A(f"buffer_store_dwordx4 v[42:45], v55, s[{sWS}:{sWS+3}], s16 offen sc1")
A("s_mov_b64 exec, 1")
A(f"ds_add_rtn_u32 v14, v13, v60 offset:{C_XW}")
A("s_waitcnt lgkmcnt(0)")
A("v_readfirstlane_b32 s23, v14")
A("s_cmp_lg_u32 s23, 3")
A("s_cbranch_scc1 L_XNF")
A("s_mov_b64 exec, s[8:9]")
A(f"buffer_store_dwordx2 v[58:59], v57, s[{sWS}:{sWS+3}], s18 offen sc1" if GT else f"buffer_store_dword v58, v57, s[{sWS}:{sWS+3}], s18 offen sc1")
if HI == 1:
    A("s_waitcnt vmcnt(3)")
    A("s_branch L_XEND")
A("L_XNF:")
if HI == 1: A("s_waitcnt vmcnt(2)")
A("s_branch L_XEND")
A("L_NOX:")
A("s_waitcnt lgkmcnt(0)")
make_tags()
if HI == 1: A("s_waitcnt vmcnt(0)")
A("L_XEND:")
A("s_setprio 0")
if HI == 1:
    A("s_mov_b64 exec, 1")
    A(f"ds_add_u32 v13, v60 offset:{C_I}")
A("s_mov_b64 exec, -1")
ST(2)
A("v_mul_u32_u24 v15, 576, v3")
A("v_lshl_add_u32 v15, v4, 2, v15")
A("s_lshl_b32 s12, s6, 6")
A(f"s_add_u32 s12, s12, {QL}")
A("v_add_u32 v15, s12, v15")
A("v_lshl_add_u32 v56, v3, 2, v7")
A("v_mul_u32_u24 v56, 48, v56")
A("s_and_b32 s12, s4, 3")
for k in (1, 2, 3):
    A(f"s_cmp_ge_u32 s12, {k}")
    A(f"s_cselect_b64 s[{12+2*k}:{13+2*k}], -1, 0")
A("v_lshlrev_b32 v57, 1, v4")
A("s_lshl_b32 s12, s6, 5")
A("v_add_u32 v57, s12, v57")
ldspin("L_RU2", R_U, 2)
for g in range(3):
    A(f"ds_read_u16 v{SZ+g}, v57 offset:{SCL + 288*g}")
    A(f"ds_read_u16 v{SZ+3+g}, v57 offset:{ZL + 288*g}")
A("s_waitcnt lgkmcnt(0)")
for g in range(6): A(f"v_lshlrev_b32 v{SZ+g}, 16, v{SZ+g}")
SP, ZP = 70, 79
def pairsz(p):
    base = p >> 2
    r = p & 3
    if r == 0: return SZ+base, SZ+3+base
    return SP+p, ZP+p
for p in range(9):
    base, r = p >> 2, p & 3
    if r:
        k = 4 - r
        A(f"v_cndmask_b32 v{SP+p}, v{SZ+base}, v{SZ+base+1}, s[{12+2*k}:{13+2*k}]")
        A(f"v_cndmask_b32 v{ZP+p}, v{SZ+3+base}, v{SZ+3+base+1}, s[{12+2*k}:{13+2*k}]")
QW = 16
B = 36
AX = 100
for r in (B+9, B+10, B+11, AX+9, AX+10, AX+11): A(f"v_mov_b32 v{r}, 0")
A("s_lshl_b32 s19, s6, 8")
A("s_mov_b32 s18, s66")
A("s_mul_i32 s17, s5, 8*2304")
A("s_add_u32 s17, s17, s19")
A(f"s_add_u32 s17, s17, {HP_OFF}")
A("v_lshlrev_b32 v61, 7, v2")
A("v_mov_b32 v62, s7")
A("s_lshl_b32 s16, s5, 10")
A("s_lshl_b32 s19, s4, 2")
A("s_add_u32 s16, s16, s19")
A(f"s_add_u32 s16, s16, {FL_OFF + 32}")
ldspin("L_RQ", R_Q, 1)
ST(3)
for p in range(9):
    A(f"ds_read2st64_b32 v[{QW+2*p}:{QW+2*p+1}], v15 offset0:{18*p} offset1:{18*p+9}")
for p in range(9):
    A(f"s_waitcnt lgkmcnt({8-p})")
    if p == 8:
        A("s_mov_b64 exec, 1")
        A(f"ds_add_u32 v13, v60 offset:{C_Q}")
        A("s_mov_b64 exec, -1")
    r0, r1 = QW+2*p, QW+2*p+1
    sr, zr = pairsz(p)
    A(f"v_cvt_f32_i32 v{r0}, v{r0}")
    A(f"v_cvt_f32_i32 v{r1}, v{r1}")
    A(f"v_cvt_pk_bf16_f32 v{r1}, v{r0}, v{r1}")
    A(f"v_lshlrev_b32 v{r0}, 16, v{r1}")
    A(f"v_and_b32 v{r1}, 0xffff0000, v{r1}")
    A(f"v_sub_f32 v{r0}, v{r0}, v{zr}")
    A(f"v_sub_f32 v{r1}, v{r1}, v{zr}")
    A(f"v_cvt_pk_bf16_f32 v{r1}, v{r0}, v{r1}")
    A(f"v_lshlrev_b32 v{r0}, 16, v{r1}")
    A(f"v_and_b32 v{r1}, 0xffff0000, v{r1}")
    A(f"v_mul_f32 v{r0}, v{r0}, v{sr}")
    A(f"v_mul_f32 v{r1}, v{r1}, v{sr}")
    A(f"v_cvt_pk_bf16_f32 v{B+p}, v{r0}, v{r1}")
if RM == 2:
    A("s_lshl_b32 s21, s6, 7")
    A("s_add_u32 s21, s20, s21")
    A(f"s_add_u32 s21, s21, {136*9216}")
    ldspin("L_RX", R_X, 1)
    A(f"buffer_load_dwordx4 v[112:115], v11, s[{sV}:{sV+3}], s21 offen nt")
else:
    ldspin("L_RX", R_X, 1)
A(f"ds_read_b128 v[{AX}:{AX+3}], v56 offset:{XR}")
A(f"ds_read_b128 v[{AX+4}:{AX+7}], v56 offset:{XR+16}")
A(f"ds_read_b32 v{AX+8}, v56 offset:{XR+32}")
for t in range(3):
    A(f"s_waitcnt lgkmcnt({2-t})")
    c = "0" if t == 0 else "v[48:51]"
    A(f"v_mfma_f32_16x16x32_bf16 v[48:51], v[{AX+4*t}:{AX+4*t+3}], v[{B+4*t}:{B+4*t+3}], {c}")
A("s_mov_b64 exec, 0xffff")
A("s_cmp_eq_u32 s23, 2")
A("s_nop 5")
if HI:
    for i in range(4): A(f"v_or_b32 v{48+i}, 1, v{48+i}")
else: tag(48)
A("s_cbranch_scc0 L_HGL")
A(f"buffer_store_dwordx4 v[48:51], v55, s[{sWS}:{sWS+3}], s18 offen")
A("s_branch L_HNF")
A("L_HGL:")
A(f"buffer_store_dwordx4 v[48:51], v55, s[{sWS}:{sWS+3}], s18 offen sc1")
A("s_mov_b64 exec, 1")
A("s_waitcnt vmcnt(0)")
A(f"ds_add_rtn_u32 v14, v13, v60 offset:{C_H}")
A("s_waitcnt lgkmcnt(0)")
A("v_readfirstlane_b32 s23, v14")
A("s_cmp_lg_u32 s23, 8")
A("s_cbranch_scc1 L_HNF")
A("s_mov_b64 exec, 0xff")
A(f"buffer_store_dword v62, v61, s[{sWS}:{sWS+3}], s16 offen sc1")
A("L_HNF:")
A("s_mov_b64 exec, -1")
REM = 112
A("s_lshl_b32 s21, s6, 7")
A("s_add_u32 s20, s20, s21")
A(f"s_add_u32 s20, s20, {136*9216}")
if not RM: A(f"buffer_load_dwordx4 v[{REM}:{REM+3}], v11, s[{sV}:{sV+3}], s20 offen nt")
else: A("v_mov_b32 v118, v11")
ST(4)
A("v_mul_u32_u24 v96, 2304, v10")
A("v_lshl_add_u32 v96, v8, 4, v96")
A("v_lshrrev_b32 v58, 2, v8")
A("v_lshlrev_b32 v58, 6, v58")
A("v_lshl_add_u32 v58, v7, 4, v58")
A("v_and_b32 v59, 3, v8")
A("v_lshl_add_u32 v58, v59, 1, v58")
A("s_lshr_b32 s18, s6, 1")
A("s_lshl_b32 s18, s18, 8")
A("s_and_b32 s19, s6, 1")
A("s_lshl_b32 s19, s19, 3")
A("s_add_u32 s18, s18, s19")
A("v_add_u32 v97, s18, v58")
A("v_mov_b32 v9, v55")
A("v_mov_b32 v15, v60")
AV = 16
def areg(t, i=0): return AV + 4*t
A("v_mul_u32_u24 v98, 9216, v90")
A("v_add_u32 v98, v98, v88")
A("s_lshl_b32 s18, s6, 10")
A(f"s_add_u32 s18, s18, {VL}")
A("v_add_u32 v98, s18, v98")
TRA, TRB = 100, 104
for i in range(4):
    A(f"v_xor_b32 v99, {i}, v89")
    A(f"v_lshl_add_u32 v{TRA+i}, v99, 5, v98")
    A(f"v_add_u32 v{TRB+i}, 73728, v{TRA+i}")
A("v_add_u32 v99, s18, v9")
A("v_lshlrev_b32 v98, 6, v3")
A("v_lshl_add_u32 v98, v7, 4, v98")
A("v_mov_b32 v34, 0"); A("v_mov_b32 v35, 0")
A(f"v_mov_b32 v117, {1 << (TB-1):#x}")
A("s_lshl_b32 s16, s4, 5")
A("s_add_u32 s14, s16, s5")
A("s_mul_i32 s14, s14, 9216")
A("s_lshl_b32 s19, s6, 10")
A("s_add_u32 s14, s14, s19")
A(f"s_add_u32 s14, s14, {YP_OFF}")
A("v_subrev_u32 v8, 128, v0")
A("v_mul_u32_u24 v10, 3641, v8")
A("v_lshrrev_b32 v10, 16, v10")
A("v_mul_u32_u24 v10, 8928, v10")
A("v_lshlrev_b32 v11, 4, v8")
A("v_add_u32 v10, v10, v11")
if OW:
    A("s_and_b32 s12, s2, 7")
    A("s_lshr_b32 s13, s2, 3")
else:
    A("s_mov_b32 s12, s4"); A("s_mov_b32 s13, s5")
A("s_mul_i32 s16, s12, 32*9216")
A("s_mul_i32 s19, s13, 288")
A("s_add_u32 s16, s16, s19")
A(f"s_add_u32 s16, s16, {YP_OFF}")
A("v_and_b32 v1, 7, v8")
A("v_mul_u32_u24 v1, 288, v1")
A("v_lshrrev_b32 v8, 3, v8")
A("v_lshl_add_u32 v1, v8, 2, v1")
A(f"v_add_u32 v1, {VL}, v1")
A("v_and_b32 v12, 3, v8")
A("v_mul_u32_u24 v12, 9216, v12")
A("v_lshrrev_b32 v8, 2, v8")
A("v_lshl_add_u32 v12, v8, 1, v12")
A("s_mul_i32 s15, s12, 1152")
A("s_mul_i32 s19, s13, 36")
A("s_add_u32 s15, s15, s19")
if os.environ.get("FAKEOUT"):
    A("v_subrev_u32 v12, 128, v0")
    A("v_lshrrev_b32 v12, 3, v12")
    A("v_lshlrev_b32 v12, 1, v12")
    A("s_mul_i32 s15, s3, 144")
BT = 48
ldspin("L_RH", R_H, 1)
H0, H1 = 48, 52
A(f"s_mov_b32 s22, {SPIN}")
A("L_HPOLL:")
A(f"buffer_load_dwordx4 v[{H0}:{H0+3}], v96, s[{sWS}:{sWS+3}], s17 offen sc1")
A(f"buffer_load_dwordx4 v[{H1}:{H1+3}], v96, s[{sWS}:{sWS+3}], s17 offen offset:128 sc1")
A("s_waitcnt vmcnt(0)")
if HI:
    for i in range(4): A(f"v_and_b32 v{56+i}, v{H0+i}, v{H1+i}")
    A("v_and_b32 v56, v56, v57")
    A("v_and_b32 v58, v58, v59")
    A("v_and_b32 v56, v56, v58")
    A("v_and_b32 v56, 1, v56")
    A("v_cmp_eq_u32 vcc, 0, v56")
else:
    check(H0, 56)
    check(H1, 57)
    A("v_or_b32 v56, v56, v57")
    A(f"v_and_b32 v56, {TM:#x}, v56")
    A("v_cmp_ne_u32 vcc, 0, v56")
A("s_and_b64 exec, vcc, vcc")
A("s_cbranch_scc0 L_HDONE")
A("s_sub_u32 s22, s22, 1")
A("s_cbranch_scc0 L_HPOLL")
A("L_HDONE:")
A("s_mov_b64 exec, -1")
if RM in (1, 3): A(f"buffer_load_dwordx4 v[{REM}:{REM+3}], v118, s[{sV}:{sV+3}], s20 offen nt")
ST(5)
for dp in ("quad_perm:[1,0,3,2]", "quad_perm:[2,3,0,1]", "row_half_mirror"):
    for i in range(8):
        A(f"v_add_f32_dpp v{H0+i}, v{H0+i}, v{H0+i} {dp} row_mask:0xf bank_mask:0xf")
sel4(H0); sel4(H1)
A(f"v_cvt_pk_bf16_f32 v{H0}, v{H0}, v{H1}")
A(f"ds_write_b16 v97, v{H0} offset:{HA}")
A(f"ds_write_b16_d16_hi v97, v{H0} offset:{HA+128}")
A("s_mov_b64 exec, 1")
A(f"ds_add_u32 v13, v15 offset:{C_A}")
A("s_mov_b64 exec, -1")
ldspin("L_CA", C_A, 9)
for t in range(4):
    a = areg(t)
    A(f"ds_read_b128 v[{a}:{a+3}], v98 offset:{HA + 256*t}")
A(f"ds_read_b64 v[32:33], v98 offset:{HA + 1024}")
Y = 108
YD = [36, 40, 44, 120]
def trreads(t, base):
    tr = TRA if t < 2 else TRB
    o = (1 + 4*(t % 2))*9216
    for i in range(4):
        A(f"ds_read_b64_tr_b16 v[{base+4*i}:{base+4*i+1}], v{tr+i} offset:{o}")
        A(f"ds_read_b64_tr_b16 v[{base+4*i+2}:{base+4*i+3}], v{tr+i} offset:{o + 2*9216}")
def mf(t, i, base, first=False):
    a = areg(t); d = YD[i]
    c = "0" if first else f"v[{d}:{d+3}]"
    A(f"v_mfma_f32_16x16x32_bf16 v[{d}:{d+3}], v[{a}:{a+3}], v[{base+4*i}:{base+4*i+3}], {c}")
def mfmas(t, base, first=False):
    for i in range(4): mf(t, i, base, first)
def kstep(t, base):
    trreads(t, base)
    for i in range(4):
        A(f"s_waitcnt lgkmcnt({6-2*i})")
        mf(t, i, base)
LG = (max(D1, D3) + 8)//9
ST(6)
if RM != 3:
    ldspin("L_EB", PROG, 9 + LG)
    trreads(0, BT)
    if RM: A("s_waitcnt vmcnt(0)")
    A(f"ds_write_b128 v99, v[{REM}:{REM+3}] offset:9216")
    trreads(1, BT+16)
    for i in range(4):
        A(f"v_mov_b32 v{BT+32+4*i+2}, 0"); A(f"v_mov_b32 v{BT+32+4*i+3}, 0")
    A("s_waitcnt lgkmcnt(9)")
    mfmas(0, BT, True)
    for i in range(4):
        A(f"ds_read_b64_tr_b16 v[{BT+32+4*i}:{BT+32+4*i+1}], v{TRA+i}")
    A("s_waitcnt lgkmcnt(4)")
    mfmas(1, BT+16)
    A("s_waitcnt lgkmcnt(0)")
    mfmas(4, BT+32)
    A(f"s_mov_b32 s22, {SPIN}")
    A("s_barrier")
    ST(7)
    kstep(2, BT)
else:
    ldspin("L_EB", PROG, 9 + LG)
    trreads(0, BT)
    trreads(1, BT+16)
    for i in range(4):
        A(f"v_mov_b32 v{BT+32+4*i+2}, 0"); A(f"v_mov_b32 v{BT+32+4*i+3}, 0")
    A("s_waitcnt lgkmcnt(8)")
    mfmas(0, BT, True)
    A("s_waitcnt lgkmcnt(0)")
    mfmas(1, BT+16)
    A(f"s_mov_b32 s22, {SPIN}")
    A("s_barrier")
    ST(7)
    trreads(2, BT)
    A("s_waitcnt vmcnt(0)")
    A(f"ds_write_b128 v99, v[{REM}:{REM+3}] offset:9216")
    for i in range(4):
        A(f"ds_read_b64_tr_b16 v[{BT+32+4*i}:{BT+32+4*i+1}], v{TRA+i}")
    A("s_waitcnt lgkmcnt(5)")
    mfmas(2, BT)
    A("s_waitcnt lgkmcnt(0)")
    mfmas(4, BT+32)
ST(8)
A("s_barrier")
ST(9)
kstep(3, BT+16)
A("s_nop 1")
for g in range(4):
    for r in range(4):
        A(f"v_add_u32_dpp v{Y+r}, v{YD[g]+r}, v117 quad_perm:[0,1,2,3] row_mask:{1 << g:#x} bank_mask:0xf")
for i in range(4): A(f"v_and_or_b32 v{Y+i}, v{Y+i}, v5, s{60+i}")
A(f"buffer_store_dwordx4 v[{Y}:{Y+3}], v9, s[{sWS}:{sWS+3}], s14 offen sc1")
ST(10)
A("s_barrier")
YG = 112
A(f"buffer_load_dwordx4 v[{YG}:{YG+3}], v10, s[{sWS}:{sWS+3}], s16 offen {YF1}")
A("L_YCHK:")
A("s_waitcnt vmcnt(0)")
check(YG, 116)
A(f"v_and_b32 v116, {TM:#x}, v116")
A("v_cmp_ne_u32 vcc, 0, v116")
A("s_cbranch_vccnz L_YRETRY")
A("L_YDONE:")
A("s_mov_b64 exec, -1")
ST(11)
A(f"ds_write_b128 v11, v[{YG}:{YG+3}] offset:{VL}")
A("s_waitcnt lgkmcnt(0)")
A("s_barrier")
A(f"ds_read2st64_b32 v[{YG}:{YG+1}], v1 offset0:0 offset1:9")
A(f"ds_read2st64_b32 v[{YG+2}:{YG+3}], v1 offset0:18 offset1:27")
A("s_waitcnt lgkmcnt(0)")
A(f"v_add_f32 v{YG}, v{YG}, v{YG+1}")
A(f"v_add_f32 v{YG+2}, v{YG+2}, v{YG+3}")
A(f"v_add_f32 v{YG}, v{YG}, v{YG+2}")
for dp in ("quad_perm:[1,0,3,2]", "quad_perm:[2,3,0,1]", "row_half_mirror"):
    A("s_nop 1")
    A(f"v_add_f32_dpp v{YG}, v{YG}, v{YG} {dp} row_mask:0xf bank_mask:0xf")
A(f"v_cvt_pk_bf16_f32 v{YG}, v{YG}, v{YG}")
A("s_mov_b32 exec_lo, 0x01010101")
A("s_mov_b32 exec_hi, 0x01010101")
A(f"buffer_store_short v{YG}, v12, s[{sOUT}:{sOUT+3}], s15 offen")
A("s_or_b32 s19, s2, s6")
A("s_cbranch_scc1 L_CEND")
A("s_mov_b64 exec, 1")
A("v_mov_b32 v14, s7")
A(f"buffer_store_dword v14, v13, s[{sWS}:{sWS+3}], 0 offen offset:{EP_OFF}")
A("L_CEND:")
if STAMPS:
    A("s_waitcnt vmcnt(0)")
    A("; STAMPDUMP 0 12")
A("s_endpgm")
A("L_YRETRY:")
A("s_sub_u32 s22, s22, 1")
A("s_cbranch_scc1 L_YDONE")
A("s_mov_b64 exec, vcc")
if YSL: A(f"s_sleep {YSL}")
A(f"buffer_load_dwordx4 v[{YG}:{YG+3}], v10, s[{sWS}:{sWS+3}], s16 offen " + ("sc1" if YF1 == "sc1" else "sc0 sc1"))
A("s_branch L_YCHK")
A("L_CODE_END:")

VG = 128
A('.section .rodata,"a"')
A(".p2align 6")
A(f""".amdhsa_kernel {KN}
  .amdhsa_next_free_vgpr {VG}
  .amdhsa_next_free_sgpr 70
  .amdhsa_accum_offset {(VG+3)//4*4}
  .amdhsa_group_segment_fixed_size 0
  .amdhsa_kernarg_size 72
  .amdhsa_user_sgpr_count 2
  .amdhsa_user_sgpr_kernarg_segment_ptr 1
  .amdhsa_system_sgpr_workgroup_id_x 1
  .amdhsa_float_denorm_mode_32 3
.end_amdhsa_kernel""")
dst = sys.argv[1]
if STAMPS:
    open(dst + ".pre", "w").write("\n".join(out) + "\n")
    import subprocess
    subprocess.check_call([sys.executable, "stamp.py", dst + ".pre", dst])
else:
    open(dst, "w").write("\n".join(out) + "\n")
```
